```python
import torch

def _softmax(x, axis=-1):
    return torch.softmax(x, dim=axis)
def _gelu(x):
    return torch.nn.functional.gelu(x, approximate="tanh")
def _silu(x):
    return torch.nn.functional.silu(x)
def _sigmoid(x):
    return torch.sigmoid(x)
def _layernorm(x, axis=-1, eps=1e-5):
    m = x.mean(dim=axis, keepdim=True)
    v = x.var(dim=axis, keepdim=True, unbiased=False)
    return (x - m) / torch.sqrt(v + eps)
def _scatter_add(tgt, idx, src, axis=0):
    return tgt.clone().index_add_(axis, idx, src)
def _segment_sum(src, seg, n):
    out = torch.zeros((n,) + src.shape[1:], dtype=src.dtype)
    return out.index_add_(0, seg, src)
def _pad(x, pw):
    flat = tuple(v for pair in reversed(pw) for v in pair)
    return torch.nn.functional.pad(x, flat)

kernel_name = 'concat_heads__linear_kernel_hedgehog__ssm_conv_s4d__prompt'

def setup_inputs():

    _w = (lambda a: (lambda t: t.to(torch.bfloat16) if t.is_floating_point() else t)(torch.as_tensor(a)))
    def _A_setup():
        B, S, D, H = 1, 2048, 640, 32
        Dh = D // H
        return {
            "x": _w((lambda *s: torch.randn(*s, dtype=torch.bfloat16) * 0.4)(B, S, D)),
            "wqkv": _w((lambda *s: torch.randn(*s, dtype=torch.bfloat16) * 0.4)(D, 3 * D)),
            "w_phi": _w((lambda *s: torch.randn(*s, dtype=torch.bfloat16) * 0.4)(H, Dh, Dh) * (Dh ** -0.5)),
            "wo": _w((lambda *s: torch.randn(*s, dtype=torch.bfloat16) * 0.05)(D, D)),
        }
    _A_in = _A_setup()

    def _B_setup():
        Bsz, L, D, N = 1, 2048, 640, 192
        return {
            "u": _w((lambda *s: torch.randn(*s, dtype=torch.bfloat16) * 0.05)(Bsz, L, D)),
            "log_A_real": _w((lambda *s: torch.randn(*s, dtype=torch.bfloat16) * 3.2)(D, N) * 0.5),
            "A_imag": _w((lambda *s: torch.randn(*s, dtype=torch.bfloat16) * 0.2)(D, N) * 3.14),
            "C_real": _w((lambda *s: torch.randn(*s, dtype=torch.bfloat16) * 3.2)(D, N) / N ** 0.5),
            "C_imag": _w((lambda *s: torch.randn(*s, dtype=torch.bfloat16) * 3.2)(D, N) / N ** 0.5),
            "log_dt": _w((lambda *s: torch.randn(*s, dtype=torch.bfloat16) * 0.2)(D) * 0.5 - 4.0),
            "D_skip": _w((lambda *s: torch.randn(*s, dtype=torch.bfloat16) * 0.4)(D)),
        }
    _B_in = _B_setup()

    return {
        "A_x": _A_in["x"],
        "A_wqkv": _A_in["wqkv"],
        "A_w_phi": _A_in["w_phi"],
        "A_wo": _A_in["wo"],
        "B_u": _B_in["u"],
        "B_log_A_real": _B_in["log_A_real"],
        "B_A_imag": _B_in["A_imag"],
        "B_C_real": _B_in["C_real"],
        "B_C_imag": _B_in["C_imag"],
        "B_log_dt": _B_in["log_dt"],
        "B_D_skip": _B_in["D_skip"],
    }

def reference(A_x, A_wqkv, A_w_phi, A_wo, B_u, B_log_A_real, B_A_imag, B_C_real, B_C_imag, B_log_dt, B_D_skip):
    def _A_ref(x, wqkv, w_phi, wo):
        B, S, D = x.shape
        H = 32; Dh = D // H
        qkv = (lambda x, *d: x.permute(*d))((x @ wqkv).reshape(B, S, 3, H, Dh), 2, 0, 3, 1, 4)
        q, k, v = qkv[0], qkv[1], qkv[2]
        pq = torch.einsum("bhsd,hdf->bhsf", q, w_phi)
        pk = torch.einsum("bhsd,hdf->bhsf", k, w_phi)
        phi_q = torch.concatenate([_softmax(pq, axis=-1), _softmax(-pq, axis=-1)], axis=-1)
        phi_k = torch.concatenate([_softmax(pk, axis=-1), _softmax(-pk, axis=-1)], axis=-1)
        kv = torch.einsum("bhsf,bhsd->bhfd", phi_k, v)
        z  = torch.einsum("bhsf->bhf", phi_k)
        num = torch.einsum("bhqf,bhfd->bhqd", phi_q, kv)
        den = torch.einsum("bhqf,bhf->bhq", phi_q, z)[..., None] + 1e-6
        o = num / den
        return (lambda x, *d: x.permute(*d))(o, 0, 2, 1, 3).reshape(B, S, D) @ wo

    def _B_ref(u, log_A_real, A_imag, C_real, C_imag, log_dt, D_skip):
        L = u.shape[1]
        dt = torch.exp(log_dt)
        A = -torch.exp(log_A_real) + 1j * A_imag
        C = (C_real + 1j * C_imag) * dt[:, None]
        pos = (lambda x, dt: x.to(dt))(torch.arange(L), log_dt.dtype)
        P = torch.exp((A * dt[:, None])[:, :, None] * pos[None, None, :])
        K = 2.0 * torch.einsum("dn,dnl->dl", C, P).real
        L2 = 2 * L
        u_t = (lambda x, *d: x.permute(*d))(u, 0, 2, 1)
        Kf = (lambda x, *a, **k: torch.fft.rfft(x.float(), *a, **k))(K, L2)
        Uf = (lambda x, *a, **k: torch.fft.rfft(x.float(), *a, **k))(u_t, L2)
        y = (lambda x, *a, **k: torch.fft.irfft(x, *a, **k).to(torch.bfloat16))(Uf * Kf[None, :, :], L2)[:, :, :L]
        y = (lambda x, *d: x.permute(*d))(y, 0, 2, 1)
        return y + u * D_skip[None, None, :]

    a = _A_ref(A_x, A_wqkv, A_w_phi, A_wo)
    b = _B_ref(B_u, B_log_A_real, B_A_imag, B_C_real, B_C_imag, B_log_dt, B_D_skip)
    return torch.concatenate([a, b], axis=-1)
```

```python
import re

REG = re.compile(r'(?<![\w.])([vas])(\d+)(?![\w\[])|(?<![\w.])([vas])\[(\d+):(\d+)\]|\b(vcc|exec|m0|scc)\b')
TRANS = ('v_exp_f32', 'v_log_f32', 'v_rcp_f32', 'v_rsq_f32', 'v_sqrt_f32', 'v_sin_f32', 'v_cos_f32', 'v_rcp_iflag_f32')


def regs_of(tok):
    out = []
    for m in REG.finditer(tok):
        if m.group(1):
            out.append((m.group(1), int(m.group(2))))
        elif m.group(3):
            out += [(m.group(3), i) for i in range(int(m.group(4)), int(m.group(5)) + 1)]
        else:
            out.append((m.group(6), 0))
    return out


class Ins:
    __slots__ = ('text', 'op', 'cls', 'dst', 'src', 'ops', 'passes', 'A', 'B', 'C', 'dpp', 'lds', 'wide', 'states', 'data')

    def __init__(self, text):
        self.text = text
        t = text.split(';')[0].strip()
        self.dst, self.src = set(), set()
        self.passes = 0
        self.A = self.B = self.C = ()
        self.dpp = self.lds = self.wide = False
        self.data = set()
        self.states = 1
        if not t or t.endswith(':') or t.startswith('.'):
            self.op = t
            self.cls = 'label' if t.endswith(':') else 'none'
            self.states = 0
            self.ops = []
            return
        sp = t.split(None, 1)
        op = sp[0]
        for suf in ('_e32', '_e64'):
            if op.endswith(suf):
                op = op[:-len(suf)]
        self.op = op
        rest = sp[1] if len(sp) > 1 else ''
        ops, depth, cur = [], 0, ''
        for ch in rest:
            if ch in '[(':
                depth += 1
            if ch in '])':
                depth -= 1
            if ch == ',' and depth == 0:
                ops.append(cur.strip()); cur = ''
            else:
                cur += ch
        if cur.strip():
            ops.append(cur.strip())
        mods = ''
        if ops:
            p = ops[-1].split(None, 1)
            ops[-1] = p[0]
            mods = p[1] if len(p) > 1 else ''
        self.ops = ops
        R = [regs_of(o) for o in ops]
        allr = lambda l: set(x for r in l for x in r)
        if op.startswith('v_mfma'):
            self.cls = 'mfma'
            self.passes = 8 if '32x32' in op else 4
            self.dst = set(R[0]); self.A, self.B, self.C = R[1], R[2], R[3]
            self.src = allr(R[1:])
        elif op.startswith('v_'):
            self.cls = 'valu'
            self.dpp = op.endswith('_dpp')
            if op in ('v_nop',):
                return
            nd = 2 if ('_co_' in op or op.startswith('v_div_scale') or op.startswith('v_mad_u64')) else 1
            self.dst = allr(R[:nd]); self.src = allr(R[nd:])
            if op.startswith(('v_fmac', 'v_writelane', 'v_pk_fmac', 'v_dot2c')) or self.dpp:
                self.src |= set(R[0])
            if op.startswith(('v_permlane', 'v_swap')):
                self.dst = allr(R); self.src = allr(R)
            if op.startswith('v_cndmask') and len(ops) == 3:
                self.src.add(('vcc', 0))
        elif op.startswith('ds_'):
            self.cls = 'ds'
            if op.startswith(('ds_read', 'ds_bpermute', 'ds_permute', 'ds_swizzle')) or '_rtn' in op:
                self.dst = set(R[0]); self.src = allr(R[1:])
            else:
                self.src = allr(R)
            if 'addtid' in op:
                self.src.add(('m0', 0)); self.lds = True
        elif op.startswith(('buffer_', 'global_')):
            self.cls = 'vmem'
            islds = ' lds' in (' ' + mods) or 'load_lds' in op
            if islds:
                self.src = allr(R); self.src.add(('m0', 0)); self.lds = True
            elif '_load' in op:
                self.dst = set(R[0]); self.src = allr(R[1:])
            elif 'atomic' in op and 'sc0' in mods:
                self.dst = set(R[0]); self.src = allr(R)
            else:
                self.src = allr(R)
                if op.endswith(('x3', 'x4')):
                    self.wide = True
                    self.data = set(R[0]) if op.startswith('buffer_') else set(R[1])
        elif op.startswith(('s_load', 's_buffer_load', 's_memtime', 's_memrealtime')):
            self.cls = 'smem'
            self.dst = set(R[0]); self.src = allr(R[1:])
        elif op.startswith('s_'):
            self.cls = 'salu'
            if op == 's_nop':
                self.states = int(ops[0], 0) + 1
            elif op.startswith(('s_cmp', 's_cbranch', 's_branch', 's_waitcnt', 's_barrier', 's_setprio', 's_sleep', 's_endpgm', 's_bitcmp')):
                self.src = allr(R)
                if 'vcc' in op:
                    self.src.add(('vcc', 0))
            else:
                self.dst = set(R[0]) if R else set(); self.src = allr(R[1:])
                if 'saveexec' in op:
                    self.dst.add(('exec', 0))
        else:
            raise ValueError('unknown instruction: ' + text)


def is_v(r):
    return r[0] in 'va'


def need_states(p, c):
    n = 0
    if p.cls == 'valu':
        vd = {r for r in p.dst if is_v(r)}
        sd = p.dst - vd
        if vd & c.src:
            if c.cls == 'mfma':
                n = max(n, 2)
            if c.cls == 'valu':
                if c.dpp or c.op.startswith('v_permlane'):
                    n = max(n, 2)
                if c.op.startswith(('v_readlane', 'v_readfirstlane')):
                    n = max(n, 1)
                if p.op in TRANS:
                    n = max(n, 1)
        if sd & c.src:
            if c.cls == 'valu':
                n = max(n, 4 if c.op.startswith(('v_readlane', 'v_writelane')) else 2)
            if c.cls == 'vmem':
                n = max(n, 5)
            if c.cls in ('salu', 'smem'):
                n = max(n, 1)
    if p.cls == 'mfma':
        big = 12 if p.passes == 8 else 8
        if c.cls == 'mfma':
            if p.dst & (set(c.A) | set(c.B)):
                n = max(n, big)
            if p.dst & set(c.C):
                if not (set(c.C) == p.dst and c.passes == p.passes):
                    n = max(n, big - 2)
            elif p.dst & c.dst and c.passes != p.passes:
                n = max(n, big)
        elif c.cls in ('valu', 'ds', 'vmem'):
            if p.dst & (c.src | c.dst):
                n = max(n, big)
            if c.cls == 'valu' and set(p.C) & c.dst:
                n = max(n, 7 if p.passes == 8 else 3)
    if p.cls == 'salu' and ('m0', 0) in p.dst and c.lds:
        n = max(n, 1)
    if p.wide and p.data & c.dst:
        n = max(n, 2)
    return n


WIN = 14


def deficit(hist, c):
    d, dist = 0, 0
    for p in reversed(hist):
        if dist >= WIN:
            break
        k = need_states(p, c)
        if k > dist:
            d = max(d, k - dist)
        dist += p.states
    return d


def parse_wait(ins):
    t = ins.text.split(';')[0]
    vm = re.search(r'vmcnt\((\d+)\)', t)
    lg = re.search(r'lgkmcnt\((\d+)\)', t)
    return (int(vm.group(1)) if vm else None, int(lg.group(1)) if lg else None)


def auto_wait(ins_list):
    out = []
    vq, lq = [], []
    auto = True
    for ins in ins_list:
        t = ins.text.strip()
        if t.startswith(';@'):
            d = t[2:].split()[0]
            if d == 'manual':
                auto = False
            elif d == 'auto':
                auto = True
            elif d == 'reset':
                vq, lq = [], []
            out.append(ins)
            continue
        if ins.cls in ('none', 'label'):
            out.append(ins)
            continue
        if ins.op == 's_waitcnt':
            vm, lg = parse_wait(ins)
            if vm is not None:
                vq = vq[len(vq) - vm:] if vm < len(vq) else vq
                if vm == 0:
                    vq = []
            if lg is not None:
                if lg == 0:
                    lq = []
                elif not any(s for _, s in lq):
                    lq = lq[len(lq) - lg:] if lg < len(lq) else lq
            out.append(ins)
            continue
        touched = ins.src | ins.dst
        vm = lg = None
        for i, d in enumerate(vq):
            if d & touched:
                vm = len(vq) - 1 - i
        for i, (d, s) in enumerate(lq):
            if d & touched:
                lg = len(lq) - 1 - i
        if lg is not None and any(s for _, s in lq):
            lg = 0
        if auto and (vm is not None or lg is not None):
            w = 's_waitcnt'
            if vm is not None:
                vm = min(vm, 63)
                w += f' vmcnt({vm})'
                vq = vq[len(vq) - vm:] if vm else []
            if lg is not None:
                lg = min(lg, 15)
                w += f' lgkmcnt({lg})'
                lq = lq[len(lq) - lg:] if lg else []
            out.append(Ins(w))
        out.append(ins)
        if ins.cls == 'vmem':
            vq.append(set(ins.dst))
        elif ins.cls == 'ds':
            lq.append((set(ins.dst), False))
        elif ins.cls == 'smem':
            lq.append((set(ins.dst), True))
    return out


def fix_hazards(ins_list):
    out = []
    for ins in ins_list:
        if ins.states and ins.op != 's_nop':
            d = deficit(out[-40:], ins)
            if d:
                out.append(Ins(f's_nop {d - 1}'))
        out.append(ins)
    labels = {ins.op[:-1]: i for i, ins in enumerate(out) if ins.cls == 'label'}
    i = 0
    while i < len(out):
        ins = out[i]
        if ins.op.startswith(('s_cbranch', 's_branch')):
            tgt = labels[ins.ops[0]]
            hist = out[max(0, i - 40):i + 1]
            need = 0
            for c in out[tgt:tgt + 24]:
                if c.states:
                    need = max(need, deficit(hist, c))
                hist = hist + [c]
                if c.op in ('s_branch', 's_endpgm'):
                    break
            if need:
                out.insert(i, Ins(f's_nop {need - 1}'))
                labels = {x.op[:-1]: k for k, x in enumerate(out) if x.cls == 'label'}
                i += 1
        i += 1
    return out


class Asm:
    def __init__(self):
        self.lines = []

    def __call__(self, text):
        if isinstance(text, (list, tuple)):
            for t in text:
                self(t)
            return
        for l in text.split('\n'):
            l = l.strip()
            if l:
                self.lines.append(l)

    def finish(self):
        ins = [Ins(l) for l in self.lines]
        ins = auto_wait(ins)
        ins = fix_hazards(ins)
        return [i.text for i in ins]


def interleave(main, fill, ratio=None, start=0):
    out = []
    n, m = len(main), len(fill)
    if ratio is None:
        ratio = m / max(1, n - start)
    acc, j = 0.0, 0
    for i, x in enumerate(main):
        out.append(x)
        if i >= start:
            acc += ratio
            while acc >= 1 - 1e-9 and j < m:
                out.append(fill[j]); j += 1; acc -= 1
    out += fill[j:]
    return out


def vr(a, n=1):
    return f'v{a}' if n == 1 else f'v[{a}:{a + n - 1}]'


def sr(a, n=1):
    return f's{a}' if n == 1 else f's[{a}:{a + n - 1}]'
```

```python
from asmlib import *
from gen_b import f32, LOG2E, zipl

SLOT = 49152
WOFF = 24576
WOB = 98304
WPB = 147456
KVI = 81920
FLAG = KVI + 4096
OBYTES = 2048 * 1280
KVS = 3456
KVBYTES = 11 * 16 * KVS
NCLEAR = 80
BIG = 0x7f000000

S_WAVE, S_XCD, S_IDX = 3, 4, 5
S_X, S_W, S_WPHI, S_WO, S_OUT, S_DBG, S_WS = 8, 10, 12, 14, 30, 32, 34
sRT, sP, sPQ, sT0, sT1, sT2, sT3 = 36, 37, 38, 39, 40, 41, 42
SRX, SRW, SRO, SRK = 44, 48, 52, 56
LANE = 1
MF32 = 'v_mfma_f32_32x32x16_bf16'
MF16 = 'v_mfma_f32_16x16x32_bf16'
CAP = 1 << 20


def srd(a, d, base, size, add=0):
    if add:
        a(f's_add_u32 s{d}, s{base}, {add}\ns_addc_u32 s{d+1}, s{base+1}, 0')
    else:
        a(f's_mov_b32 s{d}, s{base}\ns_mov_b32 s{d+1}, s{base+1}')
    a(f's_mov_b32 s{d+2}, {size}\ns_mov_b32 s{d+3}, 0x20000')


def gen_a(a, opts, stamp):
    a(f'''
    s_and_b32 s{sT0}, s{S_XCD}, 1
    s_mul_i32 s{sT0}, s{sT0}, 22
    s_add_u32 s{sT0}, s{sT0}, s{S_IDX}
    s_lshr_b32 s{sRT}, s{sT0}, 2
    s_and_b32 s{sT0}, s{sT0}, 3
    s_lshr_b32 s{sT1}, s{S_XCD}, 1
    s_lshl_b32 s{sT1}, s{sT1}, 2
    s_add_u32 s{sP}, s{sT0}, s{sT1}
    s_xor_b32 s{sPQ}, s{sP}, 1
    s_cmp_lt_u32 s{S_WAVE}, 4
    s_cbranch_scc1 L_a_C
    ''')
    gen_l(a, opts, stamp)
    a(';@reset\nL_a_C:')
    gen_c(a, opts, stamp)


def gen_l(a, opts, stamp):
    sLW, sSX, sSW, sCNT, sKC = 60, 61, 62, 63, 64
    VX, VW = 2, 8
    sa, sb = opts.get('stag', (0, 0))
    a(f'''
    s_sub_u32 s{sLW}, s{S_WAVE}, 4
    v_lshrrev_b32 v14, 3, v{LANE}
    v_lshrrev_b32 v15, 4, v{LANE}
    v_and_b32 v16, 7, v{LANE}
    s_and_b32 s{sT1}, s{sLW}, 1
    s_lshl_b32 s{sT1}, s{sT1}, 2
    v_xor_b32 v17, v15, v16
    v_xor_b32 v17, s{sT1}, v17
    v_mul_u32_u24 v18, 1280, v14
    v_lshl_add_u32 v{VX}, v17, 4, v18
    v_and_b32 v15, 1, v15
    v_lshlrev_b32 v15, 2, v15
    v_xor_b32 v17, v15, v16
    v_mul_u32_u24 v18, 3840, v14
    v_lshl_add_u32 v18, v17, 4, v18
    s_mul_i32 s{sT1}, s{sP}, 80
    s_and_b32 s{sT1}, s{sT1}, 0xffc0
    s_add_u32 s{sT1}, s{sT1}, 1280
    s_mul_i32 s{sT2}, s{sPQ}, 80
    s_and_b32 s{sT2}, s{sT2}, 0xffc0
    v_add_u32 v{VW}, s{sT1}, v18
    v_add_u32 v{VW+4}, s{sT2}, v18
    v_xor_b32 v18, 32, v18
    s_add_u32 s{sT1}, s{sT1}, 1280
    v_add_u32 v{VW+2}, s{sT1}, v18
    ''')
    for i in range(1, 6):
        a(f'v_add_u32 v{VX+i}, {i*32*1280}, v{VX}')
    for p in range(3):
        a(f'v_add_u32 v{VW+2*p+1}, {32*3840}, v{VW+2*p}')
    if sa or sb:
        a(f'''
        s_mul_i32 s{sKC}, s{sT0}, {sa}
        s_mul_i32 s{sT1}, s{sRT}, {sb}
        s_add_u32 s{sKC}, s{sKC}, s{sT1}
        s_lshr_b32 s{sKC}, s{sKC}, 2
        s_mul_i32 s{sT1}, s{sKC}, 6554
        s_lshr_b32 s{sT1}, s{sT1}, 16
        s_mul_i32 s{sT1}, s{sT1}, 10
        s_sub_u32 s{sKC}, s{sKC}, s{sT1}
        ''')
    else:
        a(f's_mov_b32 s{sKC}, 0')
    a(f'''
    s_mul_i32 s{sT2}, s{sRT}, 24
    s_add_u32 s{sT2}, s{sT2}, s{sLW}
    s_mul_i32 s{sT2}, s{sT2}, {8*1280}
    s_mul_i32 s{sT3}, s{sLW}, {8*3840}
    s_lshl_b32 s{sT1}, s{sLW}, 10
    s_add_u32 m0, s{sT1}, {SLOT}
    s_mov_b32 s{sCNT}, 0
    s_waitcnt lgkmcnt(0)
    ''')
    srd(a, SRX, S_X, 2048 * 1280)
    srd(a, SRW, S_W, 640 * 3840)
    a(f'''
    L_l_loop:
    s_lshl_b32 s{sSX}, s{sKC}, 7
    s_add_u32 s{sSX}, s{sSX}, s{sT2}
    s_mul_i32 s{sSW}, s{sKC}, {64*3840}
    s_add_u32 s{sSW}, s{sSW}, s{sT3}
    ''')
    for i in range(12):
        if i < 6:
            a(f'buffer_load_dwordx4 v{VX+i}, {sr(SRX,4)}, s{sSX} offen lds')
        else:
            a(f'buffer_load_dwordx4 v{VW+i-6}, {sr(SRW,4)}, s{sSW} offen lds')
        a('s_add_u32 m0, m0, 4096')
    a(f'''
    s_cmp_ge_u32 m0, {3*SLOT}
    s_cselect_b32 m0, s{sT1}, m0
    s_add_u32 s{sKC}, s{sKC}, 1
    s_cmp_eq_u32 s{sKC}, 10
    s_cselect_b32 s{sKC}, 0, s{sKC}
    s_add_u32 s{sCNT}, s{sCNT}, 1
    s_cmp_eq_u32 s{sCNT}, 1
    s_cbranch_scc1 L_l_loop
    s_waitcnt vmcnt(12)
    s_barrier
    s_cmp_lt_u32 s{sCNT}, 10
    s_cbranch_scc1 L_l_loop
    ''')
    sBLK, sCT, sWB = 65, 66, 67
    AWM, AWL, VWO = 2, 3, 4
    WO = 96
    a(f'''
    v_mov_b32 v20, 0
    global_load_dword v21, v20, {sr(S_DBG,2)} sc1
    s_mul_i32 s{sBLK}, s{S_IDX}, 13108
    s_lshr_b32 s{sBLK}, s{sBLK}, 16
    s_mul_i32 s{sCT}, s{sBLK}, 5
    s_sub_u32 s{sCT}, s{S_IDX}, s{sCT}
    s_lshl_b32 s{sT0}, s{S_XCD}, 2
    s_add_u32 s{sBLK}, s{sBLK}, s{sT0}
    s_lshl_b32 s{sCT}, s{sCT}, 2
    s_add_u32 s{sCT}, s{sCT}, s{sLW}
    s_lshl_b32 s{sCT}, s{sCT}, 6
    s_lshl_b32 s{sWB}, s{sLW}, 14
    s_add_u32 s{sWB}, s{sWB}, {WOB}
    v_lshrrev_b32 v14, 2, v{LANE}
    v_and_b32 v15, 3, v{LANE}
    v_mul_u32_u24 v16, 1280, v14
    v_lshl_add_u32 v{VWO}, v15, 4, v16
    v_add_u32 v{VWO}, s{sCT}, v{VWO}
    v_and_b32 v14, 3, v14                        ; r
    v_lshrrev_b32 v16, 5, v{LANE}                ; kh
    v_bfe_u32 v17, v{LANE}, 4, 1                 ; fh
    v_and_b32 v18, 1, v{LANE}
    v_lshlrev_b32 v18, 2, v18
    v_lshl_add_u32 v18, v17, 1, v18
    v_bfe_u32 v17, v{LANE}, 1, 1
    v_add_u32 v18, v18, v17
    v_lshlrev_b32 v18, 3, v18
    v_lshl_add_u32 v18, v14, 6, v18
    v_add_u32 v18, s{sWB}, v18
    v_lshl_add_u32 v{AWM}, v16, 9, v18
    v_mul_u32_u24 v16, {40*64}, v16
    v_add_u32 v{AWL}, v16, v18
    ''')
    srd(a, SRW, S_WO, 640 * 1280)
    srd(a, SRO, S_WS, OBYTES)
    srd(a, SRK, S_WS, KVBYTES, OBYTES)
    a('s_waitcnt vmcnt(1)\ns_barrier')
    stamp(a, 1)

    def wo_issue(g):
        for i in range(5):
            a(f's_add_u32 m0, s{sWB}, {(g%3)*5120 + i*1024}')
            a(f's_mov_b32 s{sT0}, {(80*g + 16*i)*1280}')
            a(f'buffer_load_dwordx4 v{VWO}, {sr(SRW,4)}, s{sT0} offen lds')

    def wo_read(g):
        for h in range(5):
            for t in range(2):
                r = WO + 4 * (5 * g + h) + 2 * t
                if h < 4:
                    a(f'ds_read_b64_tr_b16 {vr(r,2)}, v{AWM} offset:{(g%3)*5120 + (20*h+4*t)*64}')
                else:
                    a(f'ds_read_b64_tr_b16 {vr(r,2)}, v{AWL} offset:{(g%3)*5120 + (20*t+16)*64}')

    def clear_check(lbl):
        a(f'''
        s_mov_b32 s{sT1}, 0
        {lbl}:
        s_waitcnt vmcnt(0)
        v_readfirstlane_b32 s{sT0}, v21
        s_add_u32 s{sT1}, s{sT1}, 1
        s_cmp_ge_u32 s{sT1}, {CAP}
        s_cselect_b32 s{sT0}, {NCLEAR}, s{sT0}
        s_cmp_ge_u32 s{sT0}, {NCLEAR}
        s_cbranch_scc1 {lbl}_ok
        global_load_dword v21, v20, {sr(S_DBG,2)} sc1
        s_branch {lbl}
        {lbl}_ok:
        ;@reset
        ''')
    clear_check('L_l_clr')
    a(f's_cmp_ge_u32 s{S_IDX}, 20\ns_cbranch_scc1 L_l_nowo')
    NPRE = opts.get('wo_pre', 2)
    for g in range(3):
        wo_issue(g)
    for g in range(8):
        if g == NPRE:
            a('s_barrier')
        a(f's_waitcnt vmcnt({5*min(2, 7-g)})')
        wo_read(g)
        if g + 3 < 8:
            a('s_waitcnt lgkmcnt(0)')
            wo_issue(g + 3)
    a('''
    s_branch L_l_hop1
    L_l_nowo:
    s_barrier
    L_l_hop1:
    ''')
    stamp(a, 2)
    LD, RD, SEL = 32, 80, 88
    a(f'''
    v_and_b32 v14, 15, v{LANE}
    v_lshrrev_b32 v15, 4, v{LANE}
    s_lshl_b32 s{sT0}, s{sLW}, 6
    v_add_u32 v16, s{sT0}, v14
    s_mul_i32 s{sT1}, s{sPQ}, {KVS}
    v_mov_b32 v17, {16*KVS}
    v_mad_u32_u24 v17, v15, v17, s{sT1}
    ''')
    for c in range(4):
        a(f'''v_add_u32 v18, {16*c}, v16
        v_min_u32 v18, 209, v18
        v_lshl_add_u32 v{6+c}, v18, 4, v17''')
    a(f'''
    v_lshrrev_b32 v17, 1, v15
    v_lshl_add_u32 v16, v17, 4, v16
    v_and_b32 v17, 1, v15
    v_lshlrev_b32 v17, 3, v17
    v_lshl_add_u32 v10, v16, 4, v17
    v_add_u32 v10, {KVI}, v10
    v_and_b32 v16, 1, v14
    v_lshlrev_b32 v16, 4, v16
    v_mov_b32 v17, 0x3f80
    v_lshlrev_b32 v16, v16, v17
    v_lshrrev_b32 v17, 1, v14
    ''')
    for m in range(8):
        a(f'v_cmp_eq_u32 vcc, {m}, v17\nv_cndmask_b32 v{SEL+m}, 0, v16, vcc')
    a(f'''
    s_mov_b32 s{sT1}, {4*16*KVS}
    s_mov_b32 s{sT2}, {8*16*KVS}
    s_mov_b32 s{sCNT}, 0
    s_waitcnt lgkmcnt(0)
    L_l_poll1:
    ''')
    for c in range(4):
        for m in range(3):
            a(f'buffer_load_dwordx4 {vr(LD+4*(3*c+m),4)}, v{6+c}, {sr(SRK,4)}, {("0", f"s{sT1}", f"s{sT2}")[m]} offen sc1')
    a('v_mov_b32 v11, 0')
    for c in range(4):
        for m in range(3):
            r = LD + 4 * (3 * c + m)
            d = RD + 4 * (c >> 1)
            a(f'{MF16} {vr(d,4)}, {vr(SEL+4*(c&1),4)}, {vr(r,4)}, {"0" if (c & 1) == 0 and m == 0 else vr(d,4)}')
            a(f'v_max3_u32 v11, v11, v{r}, v{r+1}\nv_max3_u32 v11, v11, v{r+2}, v{r+3}')
    a(f'''
    v_cmp_eq_u32 vcc, -1, v11
    s_add_u32 s{sCNT}, s{sCNT}, 1
    s_cmp_ge_u32 s{sCNT}, {CAP}
    s_cbranch_scc1 L_l_got1
    s_cbranch_vccnz L_l_poll1
    L_l_got1:
    ''')
    for i in range(4):
        a(f'v_cvt_pk_bf16_f32 v{12+i}, v{RD+2*i}, v{RD+2*i+1}')
    a(f'''
    ds_write_b64 v10, v[12:13]
    ds_write_b64 v10, v[14:15] offset:512
    s_waitcnt lgkmcnt(0)
    s_barrier
    ''')
    stamp(a, 3)
    a(f's_cmp_ge_u32 s{S_IDX}, 20\ns_cbranch_scc1 L_end')
    AC, OF = 32, 64
    AM, AL = 6, 8
    a(f'''
    s_setprio 2
    v_lshlrev_b32 v{AM}, 4, v{LANE}
    v_add_u32 v{AM+1}, 40960, v{AM}
    v_and_b32 v14, 31, v{LANE}
    v_lshrrev_b32 v15, 5, v{LANE}
    v_mul_u32_u24 v16, 2560, v15
    v_lshl_add_u32 v{AL}, v14, 3, v16
    v_add_u32 v{AL+1}, 40960, v{AL}
    v_mul_u32_u24 v16, 80, v14
    v_lshl_add_u32 v16, v15, 5, v16
    v_add_u32 v10, s{sWB}, v16
    v_lshrrev_b32 v14, 2, v{LANE}
    v_and_b32 v15, 3, v{LANE}
    v_mul_u32_u24 v16, 80, v14
    v_lshl_add_u32 v16, v15, 4, v16
    v_add_u32 v11, s{sWB}, v16
    s_lshl_b32 s{sT0}, s{sBLK}, 6
    v_add_u32 v14, s{sT0}, v14
    v_mul_u32_u24 v14, 2560, v14
    v_lshl_add_u32 v14, v15, 4, v14
    v_add_u32 v12, s{sCT}, v14
    v_add_u32 v13, {16*2560}, v12
    v_add_u32 v14, {32*2560}, v12
    v_add_u32 v15, {48*2560}, v12
    v_mov_b32 v16, {FLAG}
    L_l_g2:
    ''')
    steps = [(g, h, tl) for g in range(8) for h in range(5) for tl in range(2)]

    def ofrag(n):
        g, h, tl = steps[n]
        r = OF + 4 * (n % 8)
        if h < 4:
            return [f'ds_read_b128 {vr(r,4)}, v{AM+tl} offset:{(4*g+h)*1280}']
        return [f'ds_read_b64 {vr(r+2*t,2)}, v{AL+tl} offset:{(4*g+t)*1280+1024}' for t in range(2)]
    LOOK = 5
    for n in range(80 + LOOK):
        if n < 80:
            if n % 20 == 0:
                a('s_barrier')
                if n == 0:
                    stamp(a, 4)
            a(ofrag(n))
        k = n - LOOK
        if k >= 0:
            g, h, tl = steps[k]
            d = vr(AC + 16 * tl, 16)
            a(f'{MF32} {d}, {vr(WO+4*(5*g+h),4)}, {vr(OF+4*(k%8),4)}, {"0" if k < 2 else d}')
    stamp(a, 5)
    for tl in range(2):
        for i in range(8):
            a(f'v_cvt_pk_bf16_f32 v{OF+8*tl+i}, v{AC+16*tl+2*i}, v{AC+16*tl+2*i+1}')
            if i % 4 == 3:
                a(f'ds_write_b128 v10, {vr(OF+8*tl+i-3,4)} offset:{tl*32*80 + (i//4)*16}')
    for i in range(4):
        a(f'ds_read_b128 {vr(OF+16+4*i,4)}, v11 offset:{i*16*80}')
    for i in range(4):
        a(f'global_store_dwordx4 v{12+i}, {vr(OF+16+4*i,4)}, {sr(S_OUT,2)}')
    a(f'''
    s_barrier
    ds_read_b32 v17, v16
    v_readfirstlane_b32 s{sT0}, v17
    s_cmp_eq_u32 s{sT0}, 0
    s_cbranch_scc1 L_l_done
    s_barrier
    s_branch L_l_g2
    L_l_done:
    ''')
    stamp(a, 6, final=True)
    a('s_endpgm')


def gen_c(a, opts, stamp):
    sHH, sPG, sDEL, sCNT, sC = 60, 61, 62, 63, 64
    sHM = 66
    AX, AW, AE, AKV, AO = 2, 6, 8, 16, 24
    ACC, FR, WP, PK = 32, 128, 168, 200
    ONE = 248
    AS = 251
    T = lambda i: FR + i
    a(f'''
    s_and_b32 s{sHH}, s{S_WAVE}, 1
    s_lshr_b32 s{sPG}, s{S_WAVE}, 1
    s_lshl_b32 s{sT0}, s{sP}, 1
    s_add_u32 s{sT0}, s{sT0}, s{sHH}
    s_mul_i32 s{sT0}, s{sT0}, 800
    s_lshl_b32 s{sT1}, s{sPQ}, 1
    s_add_u32 s{sT1}, s{sT1}, s{sHH}
    s_mul_i32 s{sT1}, s{sT1}, 800
    v_lshlrev_b32 v29, 4, v{LANE}
    s_lshl_b32 s{sT2}, s{S_WAVE}, 11
    s_add_u32 s{sT2}, s{sT2}, {WPB}
    s_mov_b32 m0, s{sT2}
    s_waitcnt lgkmcnt(0)
    ''')
    srd(a, SRX, S_WPHI, 32 * 800)
    a(f'''
    buffer_load_dwordx4 v29, {sr(SRX,4)}, s{sT0} offen lds
    s_add_u32 m0, m0, 1024
    buffer_load_dwordx4 v29, {sr(SRX,4)}, s{sT1} offen lds
    s_setprio 2
    ''')
    srd(a, SRO, S_WS, OBYTES)
    srd(a, SRK, S_WS, KVBYTES, OBYTES)
    c32, hf, r4, cq, fh, q4, c16 = (T(i) for i in range(7))
    t0, t1, t2, t3 = (T(i) for i in range(8, 12))
    a(f'''
    v_and_b32 v{c32}, 31, v{LANE}
    v_lshrrev_b32 v{hf}, 5, v{LANE}
    v_bfe_u32 v{r4}, v{LANE}, 2, 2
    v_and_b32 v{cq}, 3, v{LANE}
    v_bfe_u32 v{fh}, v{LANE}, 4, 1
    v_lshrrev_b32 v{q4}, 4, v{LANE}
    v_and_b32 v{c16}, 15, v{LANE}
    s_mov_b32 s{sHM}, 0
    s_mov_b32 s{sHM+1}, -1
    v_bfe_u32 v{t0}, v{LANE}, 1, 3
    v_xor_b32 v{t0}, v{t0}, v{hf}
    v_lshlrev_b32 v{t0}, 4, v{t0}
    v_lshl_add_u32 v{t0}, v{c32}, 7, v{t0}
    s_mul_i32 s{sT0}, s{sPG}, {96*128}
    s_add_u32 s{sT0}, s{sT0}, {SLOT}
    v_add_u32 v{AX}, s{sT0}, v{t0}
    v_xor_b32 v{AX+1}, 32, v{AX}
    v_xor_b32 v{AX+2}, 64, v{AX}
    v_xor_b32 v{AX+3}, 0x60, v{AX}
    s_mul_i32 s{sT0}, s{sP}, 80
    s_and_b32 s{sT0}, s{sT0}, 63
    s_mul_i32 s{sT1}, s{sPQ}, 80
    s_and_b32 s{sT1}, s{sT1}, 63
    s_mul_i32 s{sT3}, s{sHH}, 40
    s_add_u32 s{sT0}, s{sT0}, s{sT3}
    s_add_u32 s{sT1}, s{sT1}, s{sT3}
    v_lshl_add_u32 v{t0}, v{hf}, 3, v{r4}
    v_lshlrev_b32 v{t0}, 7, v{t0}
    v_add_u32 v{t0}, {SLOT + WOFF}, v{t0}
    v_lshrrev_b32 v{t1}, 1, v{r4}
    v_lshlrev_b32 v{t1}, 6, v{t1}
    v_lshl_add_u32 v{t2}, v{cq}, 3, s{sT0}
    v_mul_u32_u24 v{t3}, {8192 + 32}, v{fh}
    v_xor_b32 v{t2}, v{t2}, v{t3}
    v_xor_b32 v{t2}, v{t2}, v{t1}
    v_add_u32 v{AW}, v{t0}, v{t2}
    s_add_u32 s{sT0}, s{sT0}, 32                  ; k4
    s_xor_b32 s{sT3}, s{sT0}, {8192 + 32}         ; v4
    v_mov_b32 v{t2}, s{sT3}
    v_mov_b32 v{t3}, s{sT0}
    v_cmp_eq_u32 vcc, 0, v{cq}
    v_cndmask_b32 v{t2}, v{t2}, v{t3}, vcc
    s_add_u32 s{sT1}, s{sT1}, 16384
    s_add_u32 s{sT3}, s{sT1}, 32                  ; q4
    v_mov_b32 v{t3}, s{sT3}
    v_cmp_eq_u32 vcc, 1, v{cq}
    v_cndmask_b32 v{t2}, v{t2}, v{t3}, vcc
    v_lshl_add_u32 v{t3}, v{cq}, 3, s{sT1}
    v_cmp_eq_u32 vcc, 1, v{fh}
    v_cndmask_b32 v{t2}, v{t2}, v{t3}, vcc
    v_xor_b32 v{t2}, v{t2}, v{t1}
    v_add_u32 v{AW+1}, v{t0}, v{t2}
    v_and_b32 v{t0}, 9, v{LANE}
    v_bfe_u32 v{t1}, v{LANE}, 2, 1
    v_lshl_or_b32 v{t0}, v{t1}, 1, v{t0}
    v_bfe_u32 v{t1}, v{LANE}, 1, 1
    v_lshl_or_b32 v{t0}, v{t1}, 2, v{t0}         ; sigma
    s_lshl_b32 s{sT0}, s{sHH}, 1
    s_add_u32 s{sT0}, s{sT0}, s{sPG}
    s_mul_i32 s{sT0}, s{sT0}, {96*128}
    v_lshl_add_u32 v{t1}, v{c32}, 7, s{sT0}
    v_mul_u32_u24 v{t2}, 5, v{hf}
    ''')
    for i in range(8):
        if i < 5:
            a(f'v_add_u32 v{t3}, {i}, v{t2}')
        else:
            a(f'v_add_u32 v{t3}, {(12, 14, 10)[i-5]}, v{hf}')
        a(f'v_xor_b32 v{t3}, v{t3}, v{t0}\nv_lshl_add_u32 v{AE+i}, v{t3}, 3, v{t1}')
    a(f'''
    v_and_b32 v{t0}, 1, v{r4}
    v_lshrrev_b32 v{t1}, 1, v{r4}
    v_lshl_or_b32 v{t0}, v{t1}, 2, v{t0}
    v_lshl_or_b32 v{t0}, v{fh}, 3, v{t0}
    v_xor_b32 v{t0}, v{t0}, v{cq}
    v_lshl_add_u32 v{t1}, v{q4}, 3, v{r4}
    s_mul_i32 s{sT0}, s{sHH}, {192*128}
    v_lshl_add_u32 v{t1}, v{t1}, 7, s{sT0}
    v_lshl_add_u32 v{AKV}, v{t0}, 3, v{t1}
    v_xor_b32 v{AKV+2}, 32, v{AKV}
    v_xor_b32 v{AKV+4}, 64, v{AKV}
    s_lshl_b32 s{sT0}, s{sPG}, 5
    s_xor_b32 s{sT0}, s{sT0}, 0x60
    v_xor_b32 v{AKV+6}, s{sT0}, v{AKV}
    ''')
    for i in range(4):
        a(f'v_xor_b32 v{AKV+2*i+1}, 16, v{AKV+2*i}')
    oc = lambda ph: 16 * 21 * ph if ph < 4 else (16 * 21 * (ph - 4) + 8 if ph < 8 else 16 * 84 + 8 * (ph - 8))
    a(f'''
    v_bfe_u32 v{t0}, v{LANE}, 2, 1
    v_bfe_u32 v{t1}, v{LANE}, 3, 1
    v_lshl_add_u32 v{t1}, v{t0}, 1, v{t1}
    v_lshl_add_u32 v{t1}, v{t1}, 2, v{cq}
    v_add_u32 v{t2}, 16, v{cq}
    v_cmp_le_u32 vcc, 16, v{c32}
    v_cndmask_b32 v{t1}, v{t1}, v{t2}, vcc
    v_cmp_le_u32 vcc, 24, v{c32}
    v_cndmask_b32 v{t1}, v{t1}, 20, vcc
    s_mul_i32 s{sT0}, s{sHH}, {105*16}
    s_add_u32 s{sT0}, s{sT0}, {KVI}
    v_lshl_add_u32 v{t1}, v{t1}, 4, s{sT0}
    ''')
    for t in range(5):
        a(f'''v_mov_b32 v{t2}, {oc(t)}
        v_mov_b32 v{t3}, {oc(5+t)}
        v_cndmask_b32 v{t2}, v{t2}, v{t3}, {sr(sHM,2)}
        v_add_u32 v{AO+t}, v{t1}, v{t2}''')
    a(f'''
    s_lshl_b32 s{sT0}, s{sRT}, 4
    s_add_u32 s{sT0}, s{sT0}, s{sP}
    s_mul_i32 s{sT0}, s{sT0}, {KVS}
    s_mul_i32 s{sT1}, s{sHH}, {105*16}
    s_add_u32 s{sT0}, s{sT0}, s{sT1}
    s_lshl_b32 s{sT1}, s{sPG}, 3
    v_add_u32 v{t0}, s{sT1}, v{c16}              ; d
    v_lshl_add_u32 v{t1}, v{t0}, 4, s{sT0}
    s_lshl_b32 s{sT1}, s{sPG}, 4
    v_mov_b32 v{t3}, {BIG}
    v_cmp_gt_u32 vcc, s{sT1}, v{t0}
    v_cndmask_b32 v{t1}, v{t1}, v{t3}, vcc
    v_cmp_lt_u32 vcc, 20, v{t0}
    v_cndmask_b32 v{t1}, v{t1}, v{t3}, vcc
    v_mul_u32_u24 v{t2}, {21*16}, v{q4}
    v_add_u32 v{AS}, v{t1}, v{t2}
    v_lshl_add_u32 v{t2}, v{q4}, 3, v{t1}
    v_cndmask_b32 v{AS+1}, v{t2}, v{t3}, {sr(sHM,2)}
    s_mul_i32 s{sT0}, s{sRT}, 6
    s_mul_i32 s{sT1}, s{sPG}, 3
    s_add_u32 s{sT0}, s{sT0}, s{sT1}
    ''')
    for t in range(3):
        a(f'''s_cmp_lt_u32 s{sT0}, {64 - t}
        s_cselect_b32 s{sT1}, 0x3f80, 0
        v_mov_b32 v{ONE+t}, s{sT1}''')
    a(f'''
    s_lshl_b32 s{sT0}, s{sT0}, 5
    s_lshl_b32 s{sT1}, s{sPQ}, 1
    s_add_u32 s{sT0}, s{sT0}, s{sT1}
    s_add_u32 s{sT0}, s{sT0}, s{sHH}
    s_mul_i32 s{sT0}, s{sT0}, 1280
    v_lshl_add_u32 v{AS+2}, v{LANE}, 4, s{sT0}
    v_lshl_add_u32 v{t2}, v{LANE}, 3, s{sT0}
    v_cndmask_b32 v{AS+3}, v{t2}, v{t3}, {sr(sHM,2)}
    v_lshrrev_b32 v{t0}, 1, v{cq}
    v_lshl_add_u32 v{t0}, v{fh}, 1, v{t0}        ; a
    v_mul_u32_u24 v{t1}, 40, v{r4}
    v_add_u32 v{t1}, s{sT2}, v{t1}
    v_lshl_add_u32 v{t0}, v{t0}, 3, v{t1}
    v_mul_u32_u24 v{t3}, 160, v{hf}
    v_add_u32 v{t2}, v{t0}, v{t3}
    v_add_u32 v{t3}, v{t1}, v{t3}
    s_waitcnt vmcnt(0)
    ''')
    for w in range(2):
        for o in range(2):
            b = WP + 16 * w + 8 * o
            for t in range(2):
                a(f'ds_read_b64_tr_b16 {vr(b+2*t,2)}, v{t3 if o else t2} offset:{1024*w + 320*t + 32*o}')
            a(f'ds_read_b64_tr_b16 {vr(b+4,2)}, v{t1 if o else t0} offset:{1024*w + 640 + 32*o}')
    for i in range(96):
        a(f'v_mov_b32 v{ACC+i}, 0')
    a(f'''
    v_bfe_u32 v29, v{LANE}, 2, 1
    v_mov_b32 v30, 0x80008000
    v_mul_lo_u32 v29, v29, v30
    ''')
    for w in range(2):
        for o in range(2):
            b = WP + 16 * w + 8 * o
            for i in range(6):
                a(f'v_xor_b32 v{b+i}, v29, v{b+i}')
            for i in (4, 5):
                a(f'v_cndmask_b32 v{b+i}, 0, v{b+i}, {sr(sHM,2)}' if w else f'v_cndmask_b32 v{b+i}, v{b+i}, 0, {sr(sHM,2)}')
            a(f'v_mov_b32 v{b+6}, 0\nv_mov_b32 v{b+7}, 0')
    for i in range(20):
        a(f'v_mov_b32 v{FR+20+i}, 0')
    a(f'''
    s_mov_b32 s{sC}, {f32(LOG2E)}
    s_mov_b32 s{sCNT}, 0
    s_mov_b32 s{sT0}, 1
    ''')
    stamp(a, 0)

    def reads(ks):
        b = FR + 20 * (ks & 1)
        w = [f'ds_read_b64_tr_b16 {vr(b+12+4*j+2*t,2)}, v{AW+j} offset:{(16*ks+4*t)*128}' for j in range(2) for t in range(2)]
        x = [f'ds_read_b128 {vr(b+4*t,4)}, v{AX+ks} offset:{4096*t}' for t in range(3)]
        return [w[0], w[1], x[0], w[2], w[3], x[1], x[2]]

    def mfmas(ks):
        b = FR + 20 * (ks & 1)
        return [f'{MF32} {vr(ACC+32*t+16*j,16)}, {vr(b+12+4*j,4)}, {vr(b+4*t,4)}, {vr(ACC+32*t+16*j,16)}' for t in range(3) for j in range(2)]
    a('L_c_loop:\ns_barrier')
    for ks in range(4):
        rd, mm = reads(ks), mfmas(ks - 1)
        extra = []
        if ks == 3:
            extra = [f's_add_u32 s{sT0}, s{sT0}, 1', f's_cmp_eq_u32 s{sT0}, 3', f's_cselect_b32 s{sT0}, 0, s{sT0}',
                     f's_mov_b32 s{sDEL}, {SLOT}', f's_cselect_b32 s{sDEL}, {-2*SLOT}, s{sDEL}', f's_add_u32 s{sCNT}, s{sCNT}, 1']
            extra2 = [f'v_add_u32 v{AX+i}, s{sDEL}, v{AX+i}' for i in range(6)]
        if ks == 0:
            a([rd[0], rd[1], rd[2], mm[0], rd[3], rd[4], mm[1], rd[5], rd[6], mm[2], mm[3], mm[4], mm[5]])
        elif ks < 3:
            a([mm[0], rd[0], rd[1], mm[1], rd[2], rd[3], mm[2], rd[4], rd[5], mm[3], rd[6], mm[4], mm[5]])
        else:
            a([mm[0], rd[0], rd[1], rd[2], mm[1], rd[3], rd[4], rd[5], mm[2], rd[6]] + extra[:3] + [mm[3]] + extra[3:] + [mm[4]] + extra2 + [mm[5]])
    a(f'''
    s_waitcnt lgkmcnt(0)
    s_cmp_lt_u32 s{sCNT}, 10
    s_cbranch_scc1 L_c_loop
    ''')
    a(mfmas(3))
    stamp(a, 1)
    KM, VM, LF, QM = (lambda t, o=o: PK + 16 * t + o for o in (0, 4, 8, 12))

    def pack(t):
        b = ACC + 32 * t
        o = [f'v_cvt_pk_bf16_f32 v{PK+16*t+i}, v{b+2*i}, v{b+2*i+1}' for i in range(16)]
        o += [f'v_cndmask_b32 v{LF(t)+2}, v{LF(t)+2}, v{ONE+t}, {sr(sHM,2)}', f'v_cndmask_b32 v{LF(t)+3}, v{LF(t)+3}, 0, {sr(sHM,2)}']
        return o

    def vwr(t):
        return [f'ds_write_b64 v{AE+5}, {vr(VM(t),2)} offset:{4096*t}', f'ds_write_b64 v{AE+6}, {vr(VM(t)+2,2)} offset:{4096*t}',
                f'ds_write_b64 v{AE+7}, {vr(LF(t)+2,2)} offset:{4096*t}']

    def wphi(t, w):
        b = ACC + 32 * t
        m = QM(t) if w else KM(t)
        o = []
        for s in range(2):
            for j in range(2):
                d = vr(b + 16 * j, 16)
                o.append(f'{MF32} {d}, {vr(WP+16*w+8*j+4*s,4)}, {vr(LF(t) if s else m,4)}, {d if s else "0"}')
        return o

    def softmax(t, ph):
        b = ACC + 32 * t
        m, m2, s, s2 = b + 20, b + 21, b + 22, b + 24
        o = [f'v_max3_f32 v{m}, v{b}, v{b+1}, v{b+2}', f'v_max3_f32 v{m2}, v{b+3}, v{b+4}, v{b+5}']
        for i in range(6, 20, 2):
            x = m if i % 4 == 2 else m2
            o.append(f'v_max3_f32 v{x}, v{x}, v{b+i}, v{b+i+1}')
        o += [f'v_max_f32 v{m}, v{m}, v{m2}', f'v_mul_f32 v{m}, s{sC}, v{m}']
        fm = [f'v_pk_fma_f32 {vr(b+2*i,2)}, {vr(b+2*i,2)}, {sr(sC,2)}, {vr(m,2)} op_sel_hi:[1,0,0] neg_lo:[0,0,1] neg_hi:[0,0,1]' for i in range(10)]
        ex = [f'v_exp_f32 v{b+i}, v{b+i}' for i in range(20)]
        ad = {1: f'v_pk_add_f32 {vr(s,2)}, {vr(b,2)}, {vr(b+2,2)}'}
        for i in range(2, 10):
            ad[i] = f'v_pk_add_f32 {vr(s,2)}, {vr(s,2)}, {vr(b+2*i,2)}'
        o += fm[:2]
        for i in range(10):
            o += ex[2 * i:2 * i + 2]
            if i + 2 < 10:
                o.append(fm[i + 2])
            if i - 1 in ad:
                o.append(ad[i - 1])
        o += [ad[9], f'v_add_f32 v{s}, v{s}, v{s+1}', f'v_rcp_f32 v{s}, v{s}']
        tail = []
        for i in range(10):
            tail.append(f'v_pk_mul_f32 {vr(b+2*i,2)}, {vr(b+2*i,2)}, {vr(s,2)} op_sel_hi:[1,0]')
        cv = [f'v_cvt_pk_bf16_f32 v{ph+i}, v{b+2*i}, v{b+2*i+1}' for i in range(10)]
        return o, tail, cv
    a(pack(0))
    a(interleave(wphi(0, 0), pack(1) + vwr(0)))
    a(interleave(wphi(1, 0), pack(2) + vwr(1)))
    for t in range(3):
        ph = FR + 12 * t
        o, tail, cv = softmax(t, ph)
        if t == 0:
            a(interleave(wphi(2, 0), vwr(2) + o, ratio=5))
        else:
            a(o)
        a(tail[:2])
        for i in range(10):
            if i + 2 < 10:
                a(tail[i + 2])
            a(cv[i])
            if i & 1:
                a(f'ds_write_b64 v{AE+i//2}, {vr(ph+i-1,2)} offset:{4096*t}')
    a('s_waitcnt lgkmcnt(0)\ns_barrier')
    stamp(a, 2)
    KB = ACC

    def kvrd(ks):
        return [f'ds_read_b64_tr_b16 {vr(KB+16*ks+4*j+2*t,2)}, v{AKV+2*j+t} offset:{(32*ks+4*t)*128}' for j in (3, 0, 1, 2) for t in range(2)]
    a(kvrd(0) + kvrd(1)[:6])
    pend = kvrd(1)[6:] + kvrd(2) + kvrd(3) + kvrd(4) + kvrd(5)
    for ks in range(6):
        for j in range(3):
            d = vr(KM(j), 4)
            a(f'{MF16} {d}, {vr(KB+16*ks+4*j,4)}, {vr(KB+16*ks+12,4)}, {d if ks else "0"}')
            a(pend[:3]); pend = pend[3:]
    qm = [wphi(t, 1) for t in range(3)]
    a(qm[0][:2])
    for j in range(3):
        for i in range(2):
            r = FR + 2 * j + i
            a(f'v_cvt_pk_bf16_f32 v{r}, v{KM(j)+2*i}, v{KM(j)+2*i+1}\nv_min_u32 v{r}, -2, v{r}')
        if j == 1:
            a(f'buffer_store_dwordx4 {vr(FR,4)}, v{AS}, {sr(SRK,4)}, 0 offen sc1')
    a(f'buffer_store_dwordx2 {vr(FR+4,2)}, v{AS+1}, {sr(SRK,4)}, 0 offen offset:{84*16} sc1')
    stamp(a, 3)
    a('s_setprio 0')
    a(qm[0][2:] + qm[1])
    for t in range(3):
        ph = FR + 12 * t
        o, tail, cv = softmax(t, ph)
        if t == 0:
            a(interleave(qm[2], o, ratio=5))
        else:
            a(o)
        a(tail[:2])
        for i in range(10):
            if i + 2 < 10:
                a(tail[i + 2])
            a(cv[i])
        a(f'v_mov_b32 v{ph+10}, 0\nv_mov_b32 v{ph+11}, 0')
    KA = WP
    sO1, sO2, sOB, sEPS = 68, 69, 70, 71
    a(f'''
    v_mov_b32 v{KA+10}, 0
    v_mov_b32 v{KA+11}, 0
    s_mov_b32 s{sO1}, 40960
    s_mov_b32 s{sO2}, 81920
    s_mov_b32 s{sEPS}, {f32(1e-6)}
    s_mul_i32 s{sT0}, s{S_IDX}, 13108
    s_lshr_b32 s{sT0}, s{sT0}, 16
    s_lshl_b32 s{sT1}, s{S_XCD}, 2
    s_add_u32 s{sT0}, s{sT0}, s{sT1}
    s_mul_i32 s{sOB}, s{sT0}, 81920
    s_mul_i32 s{sT2}, s{sHH}, 40960
    s_mul_i32 s{sT1}, s{sPG}, 5120
    s_add_u32 s{sT2}, s{sT2}, s{sT1}
    s_add_u32 s{sOB}, s{sOB}, s{sT2}
    v_lshlrev_b32 v2, 4, v{LANE}
    v_add_u32 v3, s{sT2}, v2
    v_lshrrev_b32 v4, 4, v{LANE}
    v_mul_u32_u24 v4, 10240, v4
    v_and_b32 v5, 15, v{LANE}
    v_mul_u32_u24 v5, 320, v5
    v_add3_u32 v4, v4, v5, 32
    v_mov_b32 v6, {FLAG}
    v_mov_b32 v7, 0
    ds_write_b32 v6, v7
    s_setprio 2
    s_waitcnt lgkmcnt(0)
    s_barrier
    ''')
    stamp(a, 4)
    for t in range(5):
        a(f'ds_read_b64 {vr(KA+2*t,2)}, v{AO+t}')
    for t in range(3):
        for s in range(3):
            d = vr(ACC + 16 * t, 16)
            a(f'{MF32} {d}, {vr(KA+4*s,4)}, {vr(FR+12*t+4*s,4)}, {d if s else "0"}')
    for t in range(3):
        b = ACC + 16 * t
        o = PK + 8 * t
        a(f'v_add_f32 v{b+12}, s{sEPS}, v{b+12}\nv_rcp_f32 v{b+12}, v{b+12}')
        so = ('0', f's{sO1}', f's{sO2}')[t]
        for i in range(6):
            a(f'v_pk_mul_f32 {vr(b+2*i,2)}, {vr(b+2*i,2)}, {vr(b+12,2)} op_sel_hi:[1,0]')
        for i in range(6):
            a(f'v_cvt_pk_bf16_f32 v{o+i}, v{b+2*i}, v{b+2*i+1}\nv_min_u32 v{o+i}, -2, v{o+i}')
            if i == 3:
                a(f'buffer_store_dwordx4 {vr(o,4)}, v{AS+2}, {sr(SRO,4)}, {so} offen sc1')
        a(f'buffer_store_dwordx2 {vr(o+4,2)}, v{AS+3}, {sr(SRO,4)}, {so} offen offset:1024 sc1')
    stamp(a, 5)
    a(f'''
    s_cmp_ge_u32 s{S_IDX}, 20
    s_cbranch_scc1 L_c_done
    s_setprio 0
    s_mov_b32 s{sCNT}, 0
    s_waitcnt vmcnt({opts.get("o_wait", 0)})
    ''')

    def dma(s):
        a(f's_add_u32 m0, s{sT2}, {10240*s}\ns_add_u32 s{sT0}, s{sOB}, {10240*s}')
        for i in range(4):
            a(f'buffer_load_dwordx4 v2, {sr(SRO,4)}, s{sT0} offen offset:{1024*i} sc1 lds')
        a(f's_add_u32 m0, m0, 4096\ns_add_u32 s{sT0}, s{sT0}, 4096')
        a(f'buffer_load_dwordx4 v2, {sr(SRO,4)}, s{sT0} offen sc1 lds')

    def scan(s):
        for i in range(5):
            a(f'ds_read_b128 {vr(ACC+4*i,4)}, v3 offset:{10240*s + 1024*i}')
        for i in range(10):
            a(f'v_max3_u32 v8, v8, v{ACC+2*i}, v{ACC+2*i+1}')
    a(f'''
    L_c_poll2:
    buffer_load_dword v9, v4, {sr(SRO,4)}, s{sOB} offen offset:284 sc1
    ''')
    dma(0)
    dma(1)
    a(f'''
    v_cmp_eq_u32 vcc, -1, v9
    s_add_u32 s{sCNT}, s{sCNT}, 1
    s_cmp_ge_u32 s{sCNT}, {CAP}
    s_cbranch_scc1 L_c_got2
    s_cbranch_vccnz L_c_poll2
    L_c_got2:
    v_mov_b32 v8, 0
    s_waitcnt vmcnt(5)
    s_barrier
    ''')
    dma(2)
    a('s_waitcnt vmcnt(5)\ns_barrier')
    dma(3)
    scan(0)
    a('s_waitcnt vmcnt(5)\ns_barrier')
    scan(1)
    a('s_waitcnt vmcnt(0)\ns_barrier')
    scan(2)
    scan(3)
    a(f'''
    v_cmp_eq_u32 vcc, -1, v8
    s_cmp_ge_u32 s{sCNT}, {CAP}
    s_cbranch_scc1 L_c_ok2
    s_cbranch_vccz L_c_ok2
    v_mov_b32 v8, 1
    ds_write_b32 v6, v8
    L_c_ok2:
    s_waitcnt lgkmcnt(0)
    s_barrier
    ds_read_b32 v8, v6
    v_readfirstlane_b32 s{sT0}, v8
    s_cmp_eq_u32 s{sT0}, 0
    s_cbranch_scc1 L_c_done
    s_barrier
    ds_write_b32 v6, v7
    s_waitcnt lgkmcnt(0)
    s_branch L_c_poll2
    L_c_done:
    ''')
    stamp(a, 6, final=True)
```

```python
from asmlib import *
import struct


def f32(x):
    return '0x%08x' % struct.unpack('<I', struct.pack('<f', x))[0]


LOG2E = 1.4426950408889634
ROWS = 2064
XBASE = 32 * ROWS
XM = 57344
UBASE = 57 * ROWS
USTR = 4640
BAND = UBASE + 8 * USTR
TSTR = 8192
TQ, TG, TY = 1216, 2432, 3456
G4O = TG - 32 * 4
G8O = TG + 132 * 4 - 50 * 4
assert BAND + 7 * 1024 <= 163840

S_WAVE = 3
S_U, S_LOGA, S_AIM, S_CRE, S_CIM, S_LOGDT, S_DSK, S_OUT, S_DBG, S_WS = 16, 18, 20, 22, 24, 26, 28, 30, 32, 34


def cmul(d, x, y, t=None):
    if t is None:
        t = d
        assert d != x and d != y
    return [f'v_pk_mul_f32 {vr(t,2)}, {vr(x,2)}, {vr(y,2)} op_sel:[0,0] op_sel_hi:[0,1]',
            f'v_pk_fma_f32 {vr(d,2)}, {vr(x,2)}, {vr(y,2)}, {vr(t,2)} op_sel:[1,1,0] op_sel_hi:[1,0,1] neg_lo:[0,1,0]']


def zipl(*ls):
    out = []
    for i in range(max(map(len, ls))):
        for l in ls:
            if i < len(l):
                out.append(l[i])
    return out


def gen_b(a, S_BIDX, hooks):
    LANE = 1
    PAR = 2
    UD = 16
    sD, sT0, sT1, sT2, sLD, sDS, sUL = 40, 41, 42, 43, 44, 45, 46
    SRDU = 48
    a(f'''
    s_lshl_b32 s{sD}, s{S_BIDX}, 3
    s_add_u32 s{sD}, s{sD}, s{S_WAVE}            ; channel
    s_mul_i32 s{sT0}, s{sD}, 384
    v_lshl_add_u32 v14, v{LANE}, 1, s{sT0}
    s_lshr_b32 s{sT1}, s{sD}, 1
    s_lshl_b32 s{sT1}, s{sT1}, 2
    s_add_u32 s{sT2}, s{sT1}, {2047*1280}
    v_mul_u32_u24 v15, {4*1280}, v0
    s_waitcnt lgkmcnt(0)
    ''')
    for c in range(3):
        for k, sp in enumerate((S_LOGA, S_AIM, S_CRE, S_CIM)):
            a(f'global_load_ushort v{PAR+4*c+k}, v14, {sr(sp,2)} offset:{128*c}')
    a(f'''
    s_load_dword s{sLD}, {sr(S_LOGDT,2)}, s{sT1}
    s_load_dword s{sDS}, {sr(S_DSK,2)}, s{sT1}
    s_load_dword s{sUL}, {sr(S_U,2)}, s{sT2}
    s_mov_b32 s{SRDU}, s{S_U}
    s_mov_b32 s{SRDU+1}, s{S_U+1}
    s_mov_b32 s{SRDU+2}, {2048*1280}
    s_mov_b32 s{SRDU+3}, 0x20000
    s_lshl_b32 s{sT0}, s{S_BIDX}, 4
    v_subrev_u32 v14, 1280, v15
    ''')
    hooks['after_params'](a)
    a(f'''
    buffer_load_dwordx4 {vr(UD,4)}, v14, {sr(SRDU,4)}, s{sT0} offen
    buffer_load_dwordx4 {vr(UD+4,4)}, v15, {sr(SRDU,4)}, s{sT0} offen
    buffer_load_dwordx4 {vr(UD+8,4)}, v15, {sr(SRDU,4)}, s{sT0} offen offset:1280
    buffer_load_dwordx4 {vr(UD+12,4)}, v15, {sr(SRDU,4)}, s{sT0} offen offset:2560
    ''')
    hooks['after_u'](a)
    bt = [(off + 21 - h, 2 * h + 1) for off, h in ((-20, 1), (-16, 2), (-12, 1), (-8, 2), (-16, 4), (-8, 3))] + [(1, 7), (0, 1)]
    lo_pack = sum(l << (4 * i) for i, (l, w) in enumerate(bt))
    wd_pack = sum(w << (4 * i) for i, (l, w) in enumerate(bt))
    I16, QD = 32, 33
    a(f'''
    v_and_b32 v{I16}, 15, v{LANE}
    v_lshrrev_b32 v{QD}, 4, v{LANE}
    s_lshl_b32 s{sT1}, s{S_WAVE}, 2
    s_lshr_b32 s{sT2}, {hex(wd_pack)}, s{sT1}
    s_and_b32 s{sT2}, s{sT2}, 15
    s_bfm_b32 s{sT2}, s{sT2}, 0                   ; (1<<wid)-1
    s_lshr_b32 s{sT1}, {hex(lo_pack)}, s{sT1}
    s_and_b32 s{sT1}, s{sT1}, 15
    s_lshl_b32 s{sT2}, s{sT2}, s{sT1}
    v_lshlrev_b32 v34, v{I16}, s{sT2}
    v_lshlrev_b32 v35, 3, v{QD}
    v_lshrrev_b32 v34, v35, v34
    s_movk_i32 s{sT1}, 0x3f80
    s_cmp_eq_u32 s{S_WAVE}, 6
    s_cselect_b32 s{sT1}, 0xffff, s{sT1}
    s_mov_b32 s{sT2}, 0x10001
    ''')
    for r in range(4):
        a(f'''v_bfe_u32 v{36+r}, v34, {2*r}, 2
        v_lshl_or_b32 v{36+r}, v{36+r}, 15, v{36+r}
        v_and_b32 v{36+r}, s{sT2}, v{36+r}
        v_mul_u32_u24 v{36+r}, s{sT1}, v{36+r}''')
    a(f'''
    v_lshlrev_b32 v35, 4, v0
    v_add_u32 v35, {BAND}, v35
    s_cmp_eq_u32 s{S_WAVE}, 7
    s_cbranch_scc1 L_b_noband
    ds_write_b128 v35, v[36:39]
    L_b_noband:
    ''')
    AX, AY = 34, 35
    sM0Y, sM0X = 52, 53
    a(f'''
    v_and_b32 v36, 31, v{LANE}
    v_lshrrev_b32 v37, 5, v{LANE}
    s_lshl_b32 s{sM0Y}, s{S_WAVE}, 8
    s_add_u32 s{sM0X}, s{sM0Y}, {XM}
    v_lshl_add_u32 v37, v37, 4, s{sM0Y}
    v_mov_b32 v39, {ROWS}
    v_mad_u32_u24 v{AY}, v36, v39, v37
    v_cmp_eq_u32 vcc, 5, v36
    v_cndmask_b32 v38, v36, 4, vcc
    v_or_b32 v36, 1, v36
    v_cmp_eq_u32 vcc, 13, v36
    v_cndmask_b32 v38, v38, 7, vcc
    v_mad_u32_u24 v{AX}, v38, v39, v37
    v_add_u32 v{AX}, {XBASE}, v{AX}
    s_mov_b32 m0, s{sM0X}
    v_mov_b32 v36, 0x3f80
    ds_write_addtid_b32 v36 offset:{XBASE-XM}
    ''')
    a(f'''
    s_mul_i32 s{sT1}, s{S_WAVE}, {USTR}
    s_add_u32 s{sT1}, s{sT1}, {UBASE}
    v_mov_b32 v36, 0
    v_mov_b32 v37, 0
    v_lshl_add_u32 v38, v{LANE}, 3, s{sT1}
    ds_write_b64 v38, v[36:37]
    v_cmp_ne_u32 vcc, 0, v{LANE}
    v_mov_b32 v39, {512*8}
    v_cndmask_b32 v39, 0, v39, vcc
    v_add_u32 v38, v38, v39
    s_waitcnt lgkmcnt(0)
    s_bitcmp1_b32 s{sD}, 0
    s_cselect_b32 s{sT1}, 16, 0
    s_lshr_b32 s{sUL}, s{sUL}, s{sT1}
    s_and_b32 s{sUL}, s{sUL}, 0xffff
    s_lshr_b32 s{sLD}, s{sLD}, s{sT1}
    s_lshl_b32 s{sLD}, s{sLD}, 16
    s_lshr_b32 s{sDS}, s{sDS}, s{sT1}
    s_lshl_b32 s{sDS}, s{sDS}, 16
    v_writelane_b32 v36, s{sUL}, 1
    s_mov_b64 exec, 15
    ds_write_b64 v38, v[36:37] offset:512
    s_mov_b64 exec, -1
    ''')
    sDT, sC2, sL2E, sI2P = 54, 56, 58, 59
    l2e_hi = struct.unpack('<f', struct.pack('<f', LOG2E))[0]
    a(f'''
    s_mov_b32 s{sL2E}, {f32(LOG2E)}
    s_mov_b32 s{sI2P}, {f32(0.15915494309189535)}
    v_mov_b32 v36, s{sLD}
    v_mul_f32 v37, s{sL2E}, v36
    v_fma_f32 v38, v36, s{sL2E}, -v37
    v_fmac_f32 v38, {f32(LOG2E - l2e_hi)}, v36
    v_exp_f32 v37, v37
    v_mul_f32 v38, {f32(0.6931471805599453)}, v38
    v_fma_f32 v37, v37, v38, v37
    v_cvt_pk_bf16_f32 v37, v37, v37
    v_lshlrev_b32 v37, 16, v37
    v_add_f32 v38, v37, v37
    v_readfirstlane_b32 s{sDT}, v37
    v_readfirstlane_b32 s{sC2}, v38
    ''')
    ACC = 40
    W = {k: 56 + 2 * i for i, k in enumerate((1, 2, 3, 4, 5, 6, 7, 8, 64, 256, 512, 768, 1032))}
    Y0 = 82
    T0 = 98
    CV = 114
    FR = 124
    sCNT = 60
    for i in range(16):
        a(f'v_mov_b32 v{ACC+i}, 0')
    a(f's_mov_b32 s{sCNT}, 3')
    a(f's_waitcnt vmcnt({4 + hooks["n_after_params"] + hooks["n_after_u"]}) lgkmcnt(0)')
    a('L_b_kgen:')
    cvn = [0]

    def put(val, slot, isx):
        r = CV + cvn[0] % 8
        cvn[0] += 1
        off = (XBASE - XM + slot * ROWS) if isx else slot * ROWS
        return [f'v_cvt_pk_bf16_f32 v{r}, v{val}, {"" if isx else "-"}v{val+1}', f'ds_write_addtid_b32 v{r} offset:{off}']
    al, be = T0, T0 + 1
    a(f'''
    v_lshlrev_b32 v{PAR}, 16, v{PAR}
    v_lshlrev_b32 v{PAR+1}, 16, v{PAR+1}
    v_mul_f32 v{PAR}, s{sL2E}, v{PAR}
    v_mul_f32 v{be}, s{sDT}, v{PAR+1}
    v_exp_f32 v{PAR}, v{PAR}
    v_mul_f32 v{be}, s{sI2P}, v{be}
    v_lshlrev_b32 v{PAR+2}, 16, v{PAR+2}
    v_cvt_pk_bf16_f32 v{PAR}, v{PAR}, v{PAR}
    v_lshlrev_b32 v{PAR+3}, 16, v{PAR+3}
    v_lshlrev_b32 v{PAR}, 16, v{PAR}
    v_fract_f32 v{T0+2}, v{be}
    v_mul_f32 v{al}, s{sDT}, v{PAR}
    v_mul_f32 v{T0+3}, 0x42800000, v{be}
    v_mul_f32 v{al}, s{sL2E}, v{al}
    v_fract_f32 v{T0+3}, v{T0+3}
    v_mul_f32 v{T0+5}, 0x42800000, v{al}
    v_cos_f32 v{W[1]}, v{T0+2}
    v_sin_f32 v{W[1]+1}, v{T0+2}
    v_exp_f32 v{T0+4}, -v{al}
    v_cos_f32 v{W[64]}, v{T0+3}
    v_sin_f32 v{W[64]+1}, v{T0+3}
    v_exp_f32 v{T0+6}, -v{T0+5}
    v_pk_mul_f32 {vr(W[1],2)}, {vr(W[1],2)}, {vr(T0+4,2)} op_sel_hi:[1,0]
    v_pk_mul_f32 {vr(Y0,2)}, {vr(PAR+2,2)}, {sr(sC2,2)} op_sel_hi:[1,0]
    v_pk_mul_f32 {vr(W[64],2)}, {vr(W[64],2)}, {vr(T0+6,2)} op_sel_hi:[1,0]
    s_mov_b32 m0, s{sM0X}
    ''')
    xs = {1: 1, 2: 2, 3: 3, 256: 4, 258: 6, 260: 7, 4: 8, 5: 9, 6: 10, 7: 11, 262: 14, 264: 15,
          512: 16, 516: 17, 1032: 18, 1288: 19, 768: 20, 772: 21, 1544: 22, 1800: 23, 1024: 24}
    t = lambda i: T0 + 2 * i
    c1 = cmul(W[2], W[1], W[1]) + put(W[1], xs[1], 1) + cmul(W[4], W[2], W[2]) + put(W[2], xs[2], 1) + \
        cmul(W[8], W[4], W[4]) + put(W[4], xs[4], 1) + cmul(W[3], W[2], W[1]) + cmul(W[6], W[4], W[2]) + put(W[3], xs[3], 1) + \
        cmul(W[5], W[4], W[1]) + put(W[6], xs[6], 1) + cmul(W[7], W[4], W[3]) + put(W[5], xs[5], 1) + put(W[7], xs[7], 1)
    c2 = cmul(t(0), W[64], W[64]) + cmul(W[256], t(0), t(0)) + cmul(W[512], W[256], W[256]) + put(W[256], xs[256], 1) + \
        cmul(t(1), W[512], W[512]) + put(W[512], xs[512], 1) + cmul(W[768], W[512], W[256]) + put(t(1), xs[1024], 1) + \
        cmul(W[1032], t(1), W[8]) + put(W[768], xs[768], 1) + put(W[1032], xs[1032], 1)
    a(zipl(c1, c2))
    prods = [(258, 256, 2), (260, 256, 4), (262, 256, 6), (264, 256, 8), (516, 512, 4), (772, 768, 4), (1288, 1032, 256), (1544, 1032, 512), (1800, 1032, 768)]
    c3 = []
    for i, (p, x, y) in enumerate(prods):
        c3 += cmul(t(i % 4), W[x], W[y]) + put(t(i % 4), xs[p], 1)
    c4 = []
    for j in range(1, 8):
        c4 += cmul(Y0 + 2 * j, Y0 + 2 * j - 2, W[8])
    a(interleave(c3, c4))
    a(f's_mov_b32 m0, s{sM0Y}')
    for rnd in range(4):
        for j in range(0, 8, 2):
            p0, p1 = put(Y0 + 2 * j, 8 * rnd + j, 0), put(Y0 + 2 * j + 2, 8 * rnd + j + 1, 0)
            if rnd < 3:
                m0_, m1_ = cmul(Y0 + 2 * j, Y0 + 2 * j, W[64], t(4)), cmul(Y0 + 2 * j + 2, Y0 + 2 * j + 2, W[64], t(5))
                a([p0[0], m0_[0], p1[0], m1_[0], p0[1], m0_[1], p1[1], m1_[1]])
            else:
                a([p0[0], p1[0], p0[1], p1[1]])
    rd = lambda ks: [f'ds_read_b128 {vr(FR+8*(ks%4),4)}, v{AX} offset:{32*ks}', f'ds_read_b128 {vr(FR+8*(ks%4)+4,4)}, v{AY} offset:{32*ks}']
    for ks in range(4):
        a(rd(ks))
    for ks in range(8):
        a(f'v_mov_b32 v{PAR+ks}, v{PAR+4+ks}')
        a(f'v_mfma_f32_32x32x16_bf16 {vr(ACC,16)}, {vr(FR+8*(ks%4),4)}, {vr(FR+8*(ks%4)+4,4)}, {vr(ACC,16)}')
        if ks + 4 < 8:
            a(rd(ks + 4))
    a(f'''
    s_sub_u32 s{sCNT}, s{sCNT}, 1
    s_cmp_lg_u32 s{sCNT}, 0
    s_cbranch_scc1 L_b_kgen
    ''')
    sP0, sP1 = 62, 63
    a(f'''
    s_mov_b32 s{sP0}, 0x05040100
    s_mov_b32 s{sP1}, 0x07060302
    v_lshlrev_b32 v36, 3, v0
    v_add_u32 v36, {UBASE + 65*8}, v36
    ''')
    for c in range(8):
        d, sp = c >> 1, (sP1 if c & 1 else sP0)
        r = T0 + 2 * c
        a(f'''v_perm_b32 v{r}, v{UD+4+d}, v{UD+d}, s{sp}
        v_perm_b32 v{r+1}, v{UD+12+d}, v{UD+8+d}, s{sp}
        ds_write_b64 v36, {vr(r,2)} offset:{c*USTR}''')
    hooks['before_barrier'](a)
    sTB = 64
    P, Q = 56, 60
    a(f'''
    s_lshl_b32 s{sTB}, s{S_WAVE}, 13
    v_mov_b32 v36, 0
    v_writelane_b32 v36, s{sDS}, 0
    v_add_f32 v{ACC}, v{ACC}, v36
    v_mov_b32_dpp v37, v{ACC+7} wave_shr:1 row_mask:0xf bank_mask:0xf bound_ctrl:1
    ''')
    for tt in range(4):
        a(f'v_cvt_pk_bf16_f32 v{P+tt}, v{ACC+2*tt+1}, v{ACC+2*tt}')
        a(f'v_cvt_pk_bf16_f32 v{Q+tt}, v{ACC+2*tt}, v{ACC+2*tt-1 if tt else 37}')
    sS, sF = 65, 66
    LO, HI, ZZ = 0x0100, 0x0302, 0x0c0c
    sel = {16: (HI, HI), 17: (LO, HI), 18: (LO, LO), 48: (HI, HI), 49: (HI, HI), 50: (LO, LO), 51: (ZZ, LO)}
    a(f'''
    v_cvt_pk_bf16_f32 v64, v{ACC+9}, v{ACC+8}
    v_cvt_pk_bf16_f32 v65, v{ACC+10}, v{ACC+11}
    v_cvt_pk_bf16_f32 v66, v{ACC+12}, v{ACC+12}
    v_mov_b32 v67, 0x0c0c0c0c
    v_readfirstlane_b32 s{sS}, v64
    v_readfirstlane_b32 s{sF}, v66
    ''')
    for ln, (lo, hi) in sel.items():
        a(f's_mov_b32 s{sT1}, {hex(lo | hi << 16)}\nv_writelane_b32 v67, s{sT1}, {ln}')
    a(f'''
    v_writelane_b32 v64, 0, 0
    v_perm_b32 v67, s{sS}, s{sS}, v67
    v_lshl_add_u32 v68, v{LANE}, 4, s{sTB}
    v_mov_b32 v72, 0
    v_mov_b32 v73, 0
    v_mov_b32 v74, 0
    v_mov_b32 v75, 0
    v_lshl_add_u32 v69, v{LANE}, 2, s{sTB}
    v_bfe_u32 v70, v{LANE}, 4, 1
    v_lshl_add_u32 v70, v70, 10, v69
    v_lshrrev_b32 v71, 5, v{LANE}
    v_mov_b32 v76, {TQ - 128}
    v_mad_u32_u24 v70, v71, v76, v70
    v_lshl_add_u32 v76, v71, 5, v{LANE}             ; 64*half + j
    v_and_b32 v77, 1, v{LANE}
    v_lshlrev_b32 v76, 1, v76
    v_lshlrev_b32 v77, 2, v77
    v_sub_u32 v76, v76, v77
    s_add_u32 s{sT1}, s{sTB}, {G8O + 65*4 + 2}
    v_add_u32 v76, s{sT1}, v76
    s_waitcnt lgkmcnt(0)
    s_barrier
    ds_write_b128 v68, v[72:75] offset:{TG}
    ds_write_b128 v68, {vr(P,4)} offset:64
    ds_write_b128 v68, {vr(Q,4)} offset:{TQ+64}
    ds_write_b32 v70, v67
    ds_write_b32 v69, v64 offset:{G4O + 64*4}
    ds_write_b16 v76, v65
    ds_write_b16_d16_hi v76, v65 offset:64
    ''')
    hooks['after_barrier'](a)
    AK, AK2, AU, AG4, AG8, AB = 2, 3, 4, 5, 6, 7
    a(f'''
    v_add_u32 v8, 5, v{I16}
    v_lshrrev_b32 v8, 1, v8                          ; (i+5)>>1
    v_lshlrev_b32 v9, 2, v{QD}
    v_sub_u32 v8, v8, v9
    v_add_u32 v8, 13, v8                             ; z0-3+16
    v_and_b32 v10, 1, v{I16}
    v_mul_u32_u24 v10, {TQ}, v10
    v_lshl_add_u32 v{AK}, v8, 2, v10
    v_add_u32 v{AK}, s{sTB}, v{AK}
    v_add_u32 v{AK2}, 1024, v{AK}
    s_mul_i32 s{sT1}, s{S_WAVE}, {USTR}
    s_add_u32 s{sT1}, s{sT1}, {UBASE}
    v_lshl_add_u32 v8, v{I16}, 1, v{QD}
    v_lshl_add_u32 v{AU}, v8, 4, s{sT1}
    v_sub_u32 v8, v{I16}, v9
    s_add_u32 s{sT1}, s{sTB}, {G4O + 4*(64 - 4 + 2 - 3)}
    v_lshl_add_u32 v{AG4}, v8, 3, s{sT1}
    s_add_u32 s{sT1}, s{sTB}, {G8O + 4*(64 + 1 - 3)}
    v_lshl_add_u32 v{AG8}, v8, 2, s{sT1}
    v_lshlrev_b32 v{AB}, 4, v{LANE}
    v_add_u32 v{AB}, {BAND}, v{AB}
    ''')
    YA = 8
    VV = 40
    AP = 64
    pool = list(range(76, 256, 4))

    def r2(r, ad, o):
        return [f'ds_read2_b32 {vr(r,2)}, v{ad} offset0:{o+3} offset1:{o+2}', f'ds_read2_b32 {vr(r+2,2)}, v{ad} offset0:{o+1} offset1:{o}']

    def load(key, r):
        k = key[0]
        if k == 'K':
            return r2(r, AK, 16 * key[1]) if key[1] < 16 else r2(r, AK2, 0)
        if k == 'U':
            return [f'ds_read_b128 {vr(r,4)}, v{AU} offset:{64*(key[1]+8)}']
        if k == 'UB':
            return [f'ds_read_b128 {vr(r,4)}, v{AU} offset:{64*(8*key[1]+8)-32}']
        if k == 'G4':
            return r2(r, AG4, 32 * (key[1] - 2) + 4 * (1 - key[2]))
        if k == 'G8':
            return r2(r, AG8, 16 * (key[1] - 4))
        if k == 'B':
            return [f'ds_read_b128 {vr(r,4)}, v{AB} offset:{1024*key[1]}']
    seq = []
    started = set()

    def mm(R, ka, kb):
        c = vr(YA + 4 * R, 4) if R in started else '0'
        started.add(R)
        A = '{0}' if isinstance(ka, tuple) else vr(ka, 4)
        keys = ([ka] if isinstance(ka, tuple) else []) + [kb]
        B = '{%d}' % (len(keys) - 1)
        return (f'v_mfma_f32_16x16x32_bf16 {vr(YA+4*R,4)}, {A}, {B}, {c}', keys)
    for n, c in enumerate((1, 2, 3, 4, 5, 6, 7, 0)):
        band, cv, sg = [], [], []
        if n < 6:
            nt = 6 if n < 4 else 4
            band = [(f'v_mfma_f32_16x16x32_bf16 {vr(VV+4*e,4)}, {{0}}, {{1}}, 0', [('UB', n), ('B', e)]) for e in range(nt)]
            for hh in range(2):
                for m in range(4):
                    r = 2 * hh + (m >> 1); e = 2 * (m & 1)
                    cv.append((f'v_cvt_pk_bf16_f32 v{AP+4*hh+m}, v{VV+4*e+r}, v{VV+4*(e+1)+r}', []))
            if n < 4:
                for m in range(4):
                    cv.append((f'v_cvt_pk_bf16_f32 v{AP+8+m}, v{VV+16+m}, v{VV+20+m}', []))
        if n == 6:
            cv = [(f'v_and_b32 v{AP+m}, s{sF}, {{0:{m}}}', [('B', 6)]) for m in range(4)]
        dense = []
        for tt in range(-1 if c == 0 else 0, 8):
            for ka in (c, c + 8, 16, 32)[:4 if c == 0 else 2]:
                R = tt + ka // 8
                if 0 <= R < 8:
                    dense.append(mm(R, ('K', ka) if ka < 32 else AP, ('U', 8 * tt - c)))
        if n < 6:
            for dl in (2, 3, 4):
                for hh in range(2):
                    if n + dl < 8:
                        sg.append(mm(n + dl, AP + 4 * hh, ('G4', dl, hh)))
            for dl in range(4, 8):
                if n < 4 and n + dl < 8:
                    sg.append(mm(n + dl, AP + 8, ('G8', dl)))
        seq += band + interleave(dense, cv, ratio=2, start=6) + sg
    first, last = {}, {}
    for i, (_, keys) in enumerate(seq):
        for k in keys:
            first.setdefault(k, i); last[k] = i
    order = sorted(first, key=lambda k: first[k])
    reg, nxt, pend = {}, 0, []
    LOOK = 10

    class FragFmt:
        def __init__(self, r): self.r = r
        def __format__(self, spec): return vr(self.r + int(spec)) if spec else vr(self.r, 4)
    for i, (txt, keys) in enumerate(seq):
        while nxt < len(order) and first[order[nxt]] <= i + LOOK and pool:
            k = order[nxt]; nxt += 1
            reg[k] = pool.pop(0)
            pend += [(first[k], x) for x in load(k, reg[k])]
        cntr = 0
        while pend and (pend[0][0] <= i + 3 or cntr < 1):
            a(pend.pop(0)[1]); cntr += 1
        a(txt.format(*[FragFmt(reg[k]) for k in keys]))
        for k in set(keys):
            if last[k] == i:
                pool.append(reg[k])
    a(f'v_lshl_add_u32 v2, v{LANE}, 3, s{sTB}')
    for R in range(8):
        a(f'''v_cvt_pk_bf16_f32 v{40+2*R}, v{YA+4*R}, v{YA+4*R+1}
        v_cvt_pk_bf16_f32 v{41+2*R}, v{YA+4*R+2}, v{YA+4*R+3}
        ds_write_b64 v2, {vr(40+2*R,2)} offset:{TY+512*R}''')
    a(f'''
    v_lshlrev_b32 v3, 3, v0
    v_and_b32 v4, 15, v{LANE}
    v_lshrrev_b32 v5, 4, v{LANE}
    v_lshl_add_u32 v4, v4, 2, v5
    s_lshl_b32 s{sT1}, s{S_WAVE}, 6
    v_add_u32 v4, s{sT1}, v4
    v_mul_u32_u24 v4, {4*2560}, v4
    s_lshl_b32 s{sT1}, s{S_BIDX}, 4
    s_add_u32 s{sT1}, s{sT1}, {1280 + 2560}
    v_add_u32 v4, s{sT1}, v4
    v_add_u32 v5, {2*2560}, v4
    s_waitcnt lgkmcnt(0)
    s_barrier
    ''')
    for c in range(8):
        a(f'ds_read_b64 {vr(8+2*c,2)}, v3 offset:{TY + c*TSTR}')
    for r in range(4):
        for d in range(4):
            a(f'v_perm_b32 v{24+4*r+d}, v{8+4*d+2+(r>>1)}, v{8+4*d+(r>>1)}, s{sP1 if r & 1 else sP0}')
        a(f'global_store_dwordx4 v{4+(r>>1)}, {vr(24+4*r,4)}, {sr(S_OUT,2)} offset:{-2560 if not r & 1 else 0}')
    hooks['end'](a)
```

```python
import sys, json
from asmlib import *
import gen_b, gen_a
NAME = 'concat_heads__linear_kernel_hedgehog__ssm_conv_s4d__prompt'
HEAD = open('cdna_kernels/%s.s.ref' % NAME).read().split('; @launch')[0]
STAMP_OFF = 64 << 20

def build(opts=None):
    opts = opts or {}
    a = Asm()
    diag = opts.get('diag')
    def stamp(a, i, final=False):
        if not diag: return
        a(f's_memrealtime s[{80+2*i}:{81+2*i}]')
        if final:
            a('s_waitcnt lgkmcnt(0)\nv_mov_b32 v2, 0')
            for k in range(9):
                a(f'v_writelane_b32 v2, s{80+2*k}, {k}')
            a(f's_lshl_b32 s80, s2, 3\ns_add_u32 s80, s80, s3\ns_lshl_b32 s80, s80, 8\ns_add_u32 s80, s80, {STAMP_OFF}\nv_lshl_add_u32 v3, v1, 2, s80\nglobal_store_dword v3, v2, s[34:35]')
    if diag: a('s_memrealtime s[96:97]')
    a('''
    s_load_dwordx8 s[8:15], s[0:1], 0
    s_load_dwordx16 s[16:31], s[0:1], 32
    s_load_dwordx4 s[32:35], s[0:1], 96
    s_cmp_ge_u32 s2, 256
    s_cbranch_scc1 L_end
    v_lshrrev_b32 v2, 6, v0
    v_and_b32 v1, 63, v0
    s_and_b32 s4, s2, 7
    v_readfirstlane_b32 s3, v2
    s_lshr_b32 s5, s2, 3
    s_cmp_ge_u32 s5, 22
    s_cbranch_scc1 L_B
    ''')
    gen_a.gen_a(a, opts, stamp)
    a('''
    s_endpgm
    ;@reset
    L_B:
    s_mul_i32 s6, s4, 10
    s_add_u32 s6, s6, s5
    s_sub_u32 s6, s6, 22
    ''')
    nop = lambda a: None
    def clear(a):
        a('s_mul_i32 s70, s6, 40960\nv_lshl_add_u32 v160, v0, 4, s70')
        for i in range(4): a(f'v_mov_b32 v{164+i}, -1')
        for i in range(5):
            if i: a(f'v_add_u32 v160, 8192, v160')
            a('global_store_dwordx4 v160, v[164:167], s[34:35] sc1')
        stamp(a, 0)
    def before(a):
        stamp(a, 1)
        a('s_waitcnt vmcnt(0)')
    def after(a):
        a('''s_cmp_lg_u32 s3, 0
        s_cbranch_scc1 L_b_nosig
        v_mov_b32 v160, 0
        v_mov_b32 v161, 1
        s_mov_b64 exec, 1
        global_atomic_add v160, v161, s[32:33]
        s_mov_b64 exec, -1
        L_b_nosig:''')
        stamp(a, 2)
    def end(a):
        stamp(a, 3)
        if diag: a('s_waitcnt vmcnt(0)')
        stamp(a, 6, final=True)
    hooks = dict(after_params=nop, after_u=clear, n_after_params=0, n_after_u=5, before_barrier=before, after_barrier=after, end=end)
    gen_b.gen_b(a, 6, hooks)
    a('L_end:')
    body = a.finish()
    txt = HEAD + '; @launch grid=(256,1,1) block=(512,1,1) lds=163840\n'
    txt += f'''.amdgcn_target "amdgcn-amd-amdhsa--gfx950"
.text
.globl {NAME}_kernel
.p2align 8
.type {NAME}_kernel,@function
{NAME}_kernel:
'''
    txt += '\n'.join(l if l.endswith(':') else '    ' + l for l in body if not l.startswith(';@'))
    txt += f'''
    s_endpgm
.section .rodata,"a"
.p2align 6
.amdhsa_kernel {NAME}_kernel
  .amdhsa_next_free_vgpr 256
  .amdhsa_next_free_sgpr 102
  .amdhsa_accum_offset 256
  .amdhsa_group_segment_fixed_size 0
  .amdhsa_kernarg_size 112
  .amdhsa_user_sgpr_count 2
  .amdhsa_user_sgpr_kernarg_segment_ptr 1
  .amdhsa_system_sgpr_workgroup_id_x 1
.end_amdhsa_kernel
'''
    return txt
if __name__ == '__main__':
    out = sys.argv[1] if len(sys.argv) > 1 else 'k.s'
    opts = json.loads(sys.argv[2]) if len(sys.argv) > 2 else {}
    open(out, 'w').write(build(opts))
```

```python
from asmlib import *
from gen_b import f32, LOG2E, zipl

SLOT = 49152
WOFF = 24576
WOB = 98304
WPB = 147456
KVI = 81920
FLAG = KVI + 4096
OBYTES = 2048 * 1280
KVS = 3456
KVBYTES = 11 * 16 * KVS
NCLEAR = 176
BIG = 0x7f000000

S_WAVE, S_XCD, S_IDX = 3, 4, 5
S_X, S_W, S_WPHI, S_WO, S_OUT, S_DBG, S_WS = 8, 10, 12, 14, 30, 32, 34
sRT, sP, sPQ, sT0, sT1, sT2, sT3 = 36, 37, 38, 39, 40, 41, 42
SRX, SRW, SRO, SRK = 44, 48, 52, 56
LANE = 1
MF32 = 'v_mfma_f32_32x32x16_bf16'
MF16 = 'v_mfma_f32_16x16x32_bf16'
CAP = 1 << 20


def srd(a, d, base, size, add=0):
    if add:
        a(f's_add_u32 s{d}, s{base}, {add}\ns_addc_u32 s{d+1}, s{base+1}, 0')
    else:
        a(f's_mov_b32 s{d}, s{base}\ns_mov_b32 s{d+1}, s{base+1}')
    a(f's_mov_b32 s{d+2}, {size}\ns_mov_b32 s{d+3}, 0x20000')


def gen_a(a, opts, stamp):
    a(f'''
    s_and_b32 s{sT0}, s{S_XCD}, 1
    s_mul_i32 s{sT0}, s{sT0}, 22
    s_add_u32 s{sT0}, s{sT0}, s{S_IDX}
    s_lshr_b32 s{sRT}, s{sT0}, 2
    s_and_b32 s{sT0}, s{sT0}, 3
    s_lshr_b32 s{sT1}, s{S_XCD}, 1
    s_lshl_b32 s{sT1}, s{sT1}, 2
    s_add_u32 s{sP}, s{sT0}, s{sT1}
    s_xor_b32 s{sPQ}, s{sP}, 1
    s_cmp_lt_u32 s{S_WAVE}, 4
    s_cbranch_scc1 L_a_C
    ''')
    gen_l(a, opts, stamp)
    a(';@reset\nL_a_C:')
    gen_c(a, opts, stamp)


def gen_l(a, opts, stamp):
    sLW, sSX, sSW, sCNT, sKC = 60, 61, 62, 63, 64
    VX, VW = 2, 8
    sa, sb = opts.get('stag', (0, 0))
    a(f'''
    s_sub_u32 s{sLW}, s{S_WAVE}, 4
    v_lshrrev_b32 v14, 3, v{LANE}
    v_lshrrev_b32 v15, 4, v{LANE}
    v_and_b32 v16, 7, v{LANE}
    s_and_b32 s{sT1}, s{sLW}, 1
    s_lshl_b32 s{sT1}, s{sT1}, 2
    v_xor_b32 v17, v15, v16
    v_xor_b32 v17, s{sT1}, v17
    v_mul_u32_u24 v18, 1280, v14
    v_lshl_add_u32 v{VX}, v17, 4, v18
    v_and_b32 v15, 1, v15
    v_lshlrev_b32 v15, 2, v15
    v_xor_b32 v17, v15, v16
    v_mul_u32_u24 v18, 3840, v14
    v_lshl_add_u32 v18, v17, 4, v18
    s_mul_i32 s{sT1}, s{sP}, 80
    s_and_b32 s{sT1}, s{sT1}, 0xffc0
    s_add_u32 s{sT1}, s{sT1}, 1280
    s_mul_i32 s{sT2}, s{sPQ}, 80
    s_and_b32 s{sT2}, s{sT2}, 0xffc0
    v_add_u32 v{VW}, s{sT1}, v18
    v_add_u32 v{VW+4}, s{sT2}, v18
    v_xor_b32 v18, 32, v18
    s_add_u32 s{sT1}, s{sT1}, 1280
    v_add_u32 v{VW+2}, s{sT1}, v18
    ''')
    for i in range(1, 6):
        a(f'v_add_u32 v{VX+i}, {i*32*1280}, v{VX}')
    for p in range(3):
        a(f'v_add_u32 v{VW+2*p+1}, {32*3840}, v{VW+2*p}')
    if sa or sb:
        a(f'''
        s_mul_i32 s{sKC}, s{sT0}, {sa}
        s_mul_i32 s{sT1}, s{sRT}, {sb}
        s_add_u32 s{sKC}, s{sKC}, s{sT1}
        s_lshr_b32 s{sKC}, s{sKC}, 2
        s_mul_i32 s{sT1}, s{sKC}, 6554
        s_lshr_b32 s{sT1}, s{sT1}, 16
        s_mul_i32 s{sT1}, s{sT1}, 10
        s_sub_u32 s{sKC}, s{sKC}, s{sT1}
        ''')
    else:
        a(f's_mov_b32 s{sKC}, 0')
    a(f'''
    s_mul_i32 s{sT2}, s{sRT}, 24
    s_add_u32 s{sT2}, s{sT2}, s{sLW}
    s_mul_i32 s{sT2}, s{sT2}, {8*1280}
    s_mul_i32 s{sT3}, s{sLW}, {8*3840}
    s_lshl_b32 s{sT1}, s{sLW}, 10
    s_add_u32 m0, s{sT1}, {SLOT}
    s_mov_b32 s{sCNT}, 0
    s_waitcnt lgkmcnt(0)
    ''')
    srd(a, SRX, S_X, 2048 * 1280)
    srd(a, SRW, S_W, 640 * 3840)
    a(f'''
    L_l_loop:
    s_lshl_b32 s{sSX}, s{sKC}, 7
    s_add_u32 s{sSX}, s{sSX}, s{sT2}
    s_mul_i32 s{sSW}, s{sKC}, {64*3840}
    s_add_u32 s{sSW}, s{sSW}, s{sT3}
    ''')
    for i in range(12):
        if i < 6:
            a(f'buffer_load_dwordx4 v{VX+i}, {sr(SRX,4)}, s{sSX} offen lds')
        else:
            a(f'buffer_load_dwordx4 v{VW+i-6}, {sr(SRW,4)}, s{sSW} offen lds')
        a('s_add_u32 m0, m0, 4096')
    a(f'''
    s_cmp_ge_u32 m0, {3*SLOT}
    s_cselect_b32 m0, s{sT1}, m0
    s_add_u32 s{sKC}, s{sKC}, 1
    s_cmp_eq_u32 s{sKC}, 10
    s_cselect_b32 s{sKC}, 0, s{sKC}
    s_add_u32 s{sCNT}, s{sCNT}, 1
    s_cmp_eq_u32 s{sCNT}, 1
    s_cbranch_scc1 L_l_loop
    s_waitcnt vmcnt(12)
    s_barrier
    s_cmp_lt_u32 s{sCNT}, 10
    s_cbranch_scc1 L_l_loop
    ''')
    sBLK, sCT, sWB = 65, 66, 67
    AWM, AWL, VWO = 2, 3, 4
    WO = 96
    a(f'''
    v_mov_b32 v20, 0
    s_mul_i32 s{sBLK}, s{S_IDX}, 13108
    s_lshr_b32 s{sBLK}, s{sBLK}, 16
    s_mul_i32 s{sCT}, s{sBLK}, 5
    s_sub_u32 s{sCT}, s{S_IDX}, s{sCT}
    s_lshl_b32 s{sT0}, s{S_XCD}, 2
    s_add_u32 s{sBLK}, s{sBLK}, s{sT0}
    s_lshl_b32 s{sCT}, s{sCT}, 2
    s_add_u32 s{sCT}, s{sCT}, s{sLW}
    s_lshl_b32 s{sCT}, s{sCT}, 6
    s_lshl_b32 s{sWB}, s{sLW}, 14
    s_add_u32 s{sWB}, s{sWB}, {WOB}
    v_lshrrev_b32 v14, 2, v{LANE}
    v_and_b32 v15, 3, v{LANE}
    v_mul_u32_u24 v16, 1280, v14
    v_lshl_add_u32 v{VWO}, v15, 4, v16
    v_add_u32 v{VWO}, s{sCT}, v{VWO}
    v_and_b32 v14, 3, v14                        ; r
    v_lshrrev_b32 v16, 5, v{LANE}                ; kh
    v_bfe_u32 v17, v{LANE}, 4, 1                 ; fh
    v_and_b32 v18, 1, v{LANE}
    v_lshlrev_b32 v18, 2, v18
    v_lshl_add_u32 v18, v17, 1, v18
    v_bfe_u32 v17, v{LANE}, 1, 1
    v_add_u32 v18, v18, v17
    v_lshlrev_b32 v18, 3, v18
    v_lshl_add_u32 v18, v14, 6, v18
    v_add_u32 v18, s{sWB}, v18
    v_lshl_add_u32 v{AWM}, v16, 9, v18
    v_mul_u32_u24 v16, {40*64}, v16
    v_add_u32 v{AWL}, v16, v18
    ''')
    srd(a, SRW, S_WO, 640 * 1280)
    srd(a, SRO, S_WS, OBYTES)
    srd(a, SRK, S_WS, KVBYTES, OBYTES)
    a('s_waitcnt vmcnt(0)\ns_barrier')
    a(f'global_load_dword v21, v20, {sr(S_DBG,2)} sc1')
    stamp(a, 1)

    def wo_issue(g):
        for i in range(5):
            a(f's_add_u32 m0, s{sWB}, {(g%3)*5120 + i*1024}')
            a(f's_mov_b32 s{sT0}, {(80*g + 16*i)*1280}')
            a(f'buffer_load_dwordx4 v{VWO}, {sr(SRW,4)}, s{sT0} offen lds')

    def wo_read(g):
        for h in range(5):
            for t in range(2):
                r = WO + 4 * (5 * g + h) + 2 * t
                if h < 4:
                    a(f'ds_read_b64_tr_b16 {vr(r,2)}, v{AWM} offset:{(g%3)*5120 + (20*h+4*t)*64}')
                else:
                    a(f'ds_read_b64_tr_b16 {vr(r,2)}, v{AWL} offset:{(g%3)*5120 + (20*t+16)*64}')

    def clear_check(lbl):
        a(f'''
        s_mov_b32 s{sT1}, 0
        {lbl}:
        s_waitcnt vmcnt(0)
        v_readfirstlane_b32 s{sT0}, v21
        s_add_u32 s{sT1}, s{sT1}, 1
        s_cmp_ge_u32 s{sT1}, {CAP}
        s_cselect_b32 s{sT0}, {NCLEAR}, s{sT0}
        s_cmp_ge_u32 s{sT0}, {NCLEAR}
        s_cbranch_scc1 {lbl}_ok
        s_sleep 8
        global_load_dword v21, v20, {sr(S_DBG,2)} sc1
        s_branch {lbl}
        {lbl}_ok:
        ;@reset
        ''')
    a(f's_cmp_ge_u32 s{S_IDX}, 20\ns_cbranch_scc1 L_l_nowo')
    NPRE = opts.get('wo_pre', 2)
    for g in range(3):
        wo_issue(g)
    for g in range(8):
        if g == NPRE:
            a('s_barrier')
        a(f's_waitcnt vmcnt({5*min(2, 7-g)})')
        wo_read(g)
        if g + 3 < 8:
            a('s_waitcnt lgkmcnt(0)')
            wo_issue(g + 3)
    a('''
    s_branch L_l_hop1
    L_l_nowo:
    s_barrier
    L_l_hop1:
    ''')
    if not opts.get('noclear'):
        clear_check('L_l_clr')
    stamp(a, 2)
    LD, RD, SEL = 32, 80, 88
    a(f'''
    v_and_b32 v14, 15, v{LANE}
    v_lshrrev_b32 v15, 4, v{LANE}
    s_lshl_b32 s{sT0}, s{sLW}, 6
    v_add_u32 v16, s{sT0}, v14
    s_mul_i32 s{sT1}, s{sPQ}, {KVS}
    v_mov_b32 v17, {16*KVS}
    v_mad_u32_u24 v17, v15, v17, s{sT1}
    ''')
    for c in range(4):
        a(f'''v_add_u32 v18, {16*c}, v16
        v_min_u32 v18, 209, v18
        v_lshl_add_u32 v{6+c}, v18, 4, v17''')
    a(f'''
    v_lshrrev_b32 v17, 1, v15
    v_lshl_add_u32 v16, v17, 4, v16
    v_and_b32 v17, 1, v15
    v_lshlrev_b32 v17, 3, v17
    v_lshl_add_u32 v10, v16, 4, v17
    v_add_u32 v10, {KVI}, v10
    v_and_b32 v16, 1, v14
    v_lshlrev_b32 v16, 4, v16
    v_mov_b32 v17, 0x3f80
    v_lshlrev_b32 v16, v16, v17
    v_lshrrev_b32 v17, 1, v14
    ''')
    for m in range(8):
        a(f'v_cmp_eq_u32 vcc, {m}, v17\nv_cndmask_b32 v{SEL+m}, 0, v16, vcc')
    a(f'''
    s_mov_b32 s{sT1}, {4*16*KVS}
    s_mov_b32 s{sT2}, {8*16*KVS}
    s_mov_b32 s{sCNT}, 0
    s_waitcnt lgkmcnt(0)
    L_l_poll1:
    ''')
    for c in range(4):
        for m in range(3):
            a(f'buffer_load_dwordx4 {vr(LD+4*(3*c+m),4)}, v{6+c}, {sr(SRK,4)}, {("0", f"s{sT1}", f"s{sT2}")[m]} offen sc1')
    a('v_mov_b32 v11, 0')
    for c in range(4):
        for m in range(3):
            r = LD + 4 * (3 * c + m)
            d = RD + 4 * (c >> 1)
            a(f'{MF16} {vr(d,4)}, {vr(SEL+4*(c&1),4)}, {vr(r,4)}, {"0" if (c & 1) == 0 and m == 0 else vr(d,4)}')
            a(f'v_max3_u32 v11, v11, v{r}, v{r+1}\nv_max3_u32 v11, v11, v{r+2}, v{r+3}')
    a(f'''
    v_cmp_eq_u32 vcc, -1, v11
    s_add_u32 s{sCNT}, s{sCNT}, 1
    s_cmp_ge_u32 s{sCNT}, {CAP}
    s_cbranch_scc1 L_l_got1
    s_cbranch_vccnz L_l_poll1
    L_l_got1:
    ''')
    for i in range(4):
        a(f'v_cvt_pk_bf16_f32 v{12+i}, v{RD+2*i}, v{RD+2*i+1}')
    a(f'''
    ds_write_b64 v10, v[12:13]
    ds_write_b64 v10, v[14:15] offset:512
    s_waitcnt lgkmcnt(0)
    s_barrier
    ''')
    stamp(a, 3)
    a(f's_cmp_ge_u32 s{S_IDX}, 20\ns_cbranch_scc1 L_end')
    AC, OF = 32, 64
    AM, AL = 6, 8
    a(f'''
    s_setprio 2
    v_lshlrev_b32 v{AM}, 4, v{LANE}
    v_add_u32 v{AM+1}, 40960, v{AM}
    v_and_b32 v14, 31, v{LANE}
    v_lshrrev_b32 v15, 5, v{LANE}
    v_mul_u32_u24 v16, 2560, v15
    v_lshl_add_u32 v{AL}, v14, 3, v16
    v_add_u32 v{AL+1}, 40960, v{AL}
    v_mul_u32_u24 v16, 80, v14
    v_lshl_add_u32 v16, v15, 5, v16
    v_add_u32 v10, s{sWB}, v16
    v_lshrrev_b32 v14, 2, v{LANE}
    v_and_b32 v15, 3, v{LANE}
    v_mul_u32_u24 v16, 80, v14
    v_lshl_add_u32 v16, v15, 4, v16
    v_add_u32 v11, s{sWB}, v16
    s_lshl_b32 s{sT0}, s{sBLK}, 6
    v_add_u32 v14, s{sT0}, v14
    v_mul_u32_u24 v14, 2560, v14
    v_lshl_add_u32 v14, v15, 4, v14
    v_add_u32 v12, s{sCT}, v14
    v_add_u32 v13, {16*2560}, v12
    v_add_u32 v14, {32*2560}, v12
    v_add_u32 v15, {48*2560}, v12
    v_mov_b32 v16, {FLAG}
    L_l_g2:
    ''')
    steps = [(g, h, tl) for g in range(8) for h in range(5) for tl in range(2)]

    def ofrag(n):
        g, h, tl = steps[n]
        r = OF + 4 * (n % 8)
        if h < 4:
            return [f'ds_read_b128 {vr(r,4)}, v{AM+tl} offset:{(4*g+h)*1280}']
        return [f'ds_read_b64 {vr(r+2*t,2)}, v{AL+tl} offset:{(4*g+t)*1280+1024}' for t in range(2)]
    LOOK = 5
    for n in range(80 + LOOK):
        if n < 80:
            if n % 20 == 0:
                a('s_barrier')
                if n == 0:
                    stamp(a, 4)
            a(ofrag(n))
        k = n - LOOK
        if k >= 0:
            g, h, tl = steps[k]
            d = vr(AC + 16 * tl, 16)
            a(f'{MF32} {d}, {vr(WO+4*(5*g+h),4)}, {vr(OF+4*(k%8),4)}, {"0" if k < 2 else d}')
    stamp(a, 5)
    for tl in range(2):
        for i in range(8):
            a(f'v_cvt_pk_bf16_f32 v{OF+8*tl+i}, v{AC+16*tl+2*i}, v{AC+16*tl+2*i+1}')
            if i % 4 == 3:
                a(f'ds_write_b128 v10, {vr(OF+8*tl+i-3,4)} offset:{tl*32*80 + (i//4)*16}')
    for i in range(4):
        a(f'ds_read_b128 {vr(OF+16+4*i,4)}, v11 offset:{i*16*80}')
    for i in range(4):
        a(f'global_store_dwordx4 v{12+i}, {vr(OF+16+4*i,4)}, {sr(S_OUT,2)}')
    a(f'''
    s_barrier
    ds_read_b32 v17, v16
    v_readfirstlane_b32 s{sT0}, v17
    s_cmp_eq_u32 s{sT0}, 0
    s_cbranch_scc1 L_l_done
    s_barrier
    s_branch L_l_g2
    L_l_done:
    ''')
    stamp(a, 6, final=True)
    a('s_endpgm')


def gen_c(a, opts, stamp):
    sHH, sPG, sDEL, sCNT, sC = 60, 61, 62, 63, 64
    sHM = 66
    sO1, sO2, sOB, sEPS, sSIG = 68, 69, 70, 71, 72
    AX, AW, AE, AKV, AO = 2, 6, 8, 16, 24
    ACC, FR, WP, PK = 32, 128, 168, 200
    ONE = 248
    AS = 251
    T = lambda i: FR + i
    a(f'''
    s_and_b32 s{sHH}, s{S_WAVE}, 1
    s_lshr_b32 s{sPG}, s{S_WAVE}, 1
    s_lshl_b32 s{sT0}, s{sP}, 1
    s_add_u32 s{sT0}, s{sT0}, s{sHH}
    s_mul_i32 s{sT0}, s{sT0}, 800
    s_lshl_b32 s{sT1}, s{sPQ}, 1
    s_add_u32 s{sT1}, s{sT1}, s{sHH}
    s_mul_i32 s{sT1}, s{sT1}, 800
    v_lshlrev_b32 v29, 4, v{LANE}
    s_lshl_b32 s{sT2}, s{S_WAVE}, 11
    s_add_u32 s{sT2}, s{sT2}, {WPB}
    s_mov_b32 m0, s{sT2}
    s_waitcnt lgkmcnt(0)
    ''')
    srd(a, SRX, S_WPHI, 32 * 800)
    a(f'''
    buffer_load_dwordx4 v29, {sr(SRX,4)}, s{sT0} offen lds
    s_add_u32 m0, m0, 1024
    buffer_load_dwordx4 v29, {sr(SRX,4)}, s{sT1} offen lds
    s_setprio 2
    ''')
    srd(a, SRO, S_WS, OBYTES)
    srd(a, SRK, S_WS, KVBYTES, OBYTES)
    c32, hf, r4, cq, fh, q4, c16 = (T(i) for i in range(7))
    t0, t1, t2, t3 = (T(i) for i in range(8, 12))
    a(f'''
    v_and_b32 v{c32}, 31, v{LANE}
    v_lshrrev_b32 v{hf}, 5, v{LANE}
    v_bfe_u32 v{r4}, v{LANE}, 2, 2
    v_and_b32 v{cq}, 3, v{LANE}
    v_bfe_u32 v{fh}, v{LANE}, 4, 1
    v_lshrrev_b32 v{q4}, 4, v{LANE}
    v_and_b32 v{c16}, 15, v{LANE}
    s_mov_b32 s{sHM}, 0
    s_mov_b32 s{sHM+1}, -1
    v_bfe_u32 v{t0}, v{LANE}, 1, 3
    v_xor_b32 v{t0}, v{t0}, v{hf}
    v_lshlrev_b32 v{t0}, 4, v{t0}
    v_lshl_add_u32 v{t0}, v{c32}, 7, v{t0}
    s_mul_i32 s{sT0}, s{sPG}, {96*128}
    s_add_u32 s{sT0}, s{sT0}, {SLOT}
    v_add_u32 v{AX}, s{sT0}, v{t0}
    v_xor_b32 v{AX+1}, 32, v{AX}
    v_xor_b32 v{AX+2}, 64, v{AX}
    v_xor_b32 v{AX+3}, 0x60, v{AX}
    s_mul_i32 s{sT0}, s{sP}, 80
    s_and_b32 s{sT0}, s{sT0}, 63
    s_mul_i32 s{sT1}, s{sPQ}, 80
    s_and_b32 s{sT1}, s{sT1}, 63
    s_mul_i32 s{sT3}, s{sHH}, 40
    s_add_u32 s{sT0}, s{sT0}, s{sT3}
    s_add_u32 s{sT1}, s{sT1}, s{sT3}
    v_lshl_add_u32 v{t0}, v{hf}, 3, v{r4}
    v_lshlrev_b32 v{t0}, 7, v{t0}
    v_add_u32 v{t0}, {SLOT + WOFF}, v{t0}
    v_lshrrev_b32 v{t1}, 1, v{r4}
    v_lshlrev_b32 v{t1}, 6, v{t1}
    v_lshl_add_u32 v{t2}, v{cq}, 3, s{sT0}
    v_mul_u32_u24 v{t3}, {8192 + 32}, v{fh}
    v_xor_b32 v{t2}, v{t2}, v{t3}
    v_xor_b32 v{t2}, v{t2}, v{t1}
    v_add_u32 v{AW}, v{t0}, v{t2}
    s_add_u32 s{sT0}, s{sT0}, 32                  ; k4
    s_xor_b32 s{sT3}, s{sT0}, {8192 + 32}         ; v4
    v_mov_b32 v{t2}, s{sT3}
    v_mov_b32 v{t3}, s{sT0}
    v_cmp_eq_u32 vcc, 0, v{cq}
    v_cndmask_b32 v{t2}, v{t2}, v{t3}, vcc
    s_add_u32 s{sT1}, s{sT1}, 16384
    s_add_u32 s{sT3}, s{sT1}, 32                  ; q4
    v_mov_b32 v{t3}, s{sT3}
    v_cmp_eq_u32 vcc, 1, v{cq}
    v_cndmask_b32 v{t2}, v{t2}, v{t3}, vcc
    v_lshl_add_u32 v{t3}, v{cq}, 3, s{sT1}
    v_cmp_eq_u32 vcc, 1, v{fh}
    v_cndmask_b32 v{t2}, v{t2}, v{t3}, vcc
    v_xor_b32 v{t2}, v{t2}, v{t1}
    v_add_u32 v{AW+1}, v{t0}, v{t2}
    v_and_b32 v{t0}, 9, v{LANE}
    v_bfe_u32 v{t1}, v{LANE}, 2, 1
    v_lshl_or_b32 v{t0}, v{t1}, 1, v{t0}
    v_bfe_u32 v{t1}, v{LANE}, 1, 1
    v_lshl_or_b32 v{t0}, v{t1}, 2, v{t0}         ; sigma
    s_lshl_b32 s{sT0}, s{sHH}, 1
    s_add_u32 s{sT0}, s{sT0}, s{sPG}
    s_mul_i32 s{sT0}, s{sT0}, {96*128}
    v_lshl_add_u32 v{t1}, v{c32}, 7, s{sT0}
    v_mul_u32_u24 v{t2}, 5, v{hf}
    ''')
    for i in range(8):
        if i < 5:
            a(f'v_add_u32 v{t3}, {i}, v{t2}')
        else:
            a(f'v_add_u32 v{t3}, {(12, 14, 10)[i-5]}, v{hf}')
        a(f'v_xor_b32 v{t3}, v{t3}, v{t0}\nv_lshl_add_u32 v{AE+i}, v{t3}, 3, v{t1}')
    a(f'''
    v_and_b32 v{t0}, 1, v{r4}
    v_lshrrev_b32 v{t1}, 1, v{r4}
    v_lshl_or_b32 v{t0}, v{t1}, 2, v{t0}
    v_lshl_or_b32 v{t0}, v{fh}, 3, v{t0}
    v_xor_b32 v{t0}, v{t0}, v{cq}
    v_lshl_add_u32 v{t1}, v{q4}, 3, v{r4}
    s_mul_i32 s{sT0}, s{sHH}, {192*128}
    v_lshl_add_u32 v{t1}, v{t1}, 7, s{sT0}
    v_lshl_add_u32 v{AKV}, v{t0}, 3, v{t1}
    v_xor_b32 v{AKV+2}, 32, v{AKV}
    v_xor_b32 v{AKV+4}, 64, v{AKV}
    s_lshl_b32 s{sT0}, s{sPG}, 5
    s_xor_b32 s{sT0}, s{sT0}, 0x60
    v_xor_b32 v{AKV+6}, s{sT0}, v{AKV}
    ''')
    for i in range(4):
        a(f'v_xor_b32 v{AKV+2*i+1}, 16, v{AKV+2*i}')
    oc = lambda ph: 16 * 21 * ph if ph < 4 else (16 * 21 * (ph - 4) + 8 if ph < 8 else 16 * 84 + 8 * (ph - 8))
    a(f'''
    v_bfe_u32 v{t0}, v{LANE}, 2, 1
    v_bfe_u32 v{t1}, v{LANE}, 3, 1
    v_lshl_add_u32 v{t1}, v{t0}, 1, v{t1}
    v_lshl_add_u32 v{t1}, v{t1}, 2, v{cq}
    v_add_u32 v{t2}, 16, v{cq}
    v_cmp_le_u32 vcc, 16, v{c32}
    v_cndmask_b32 v{t1}, v{t1}, v{t2}, vcc
    v_cmp_le_u32 vcc, 24, v{c32}
    v_cndmask_b32 v{t1}, v{t1}, 20, vcc
    s_mul_i32 s{sT0}, s{sHH}, {105*16}
    s_add_u32 s{sT0}, s{sT0}, {KVI}
    v_lshl_add_u32 v{t1}, v{t1}, 4, s{sT0}
    ''')
    for t in range(5):
        a(f'''v_mov_b32 v{t2}, {oc(t)}
        v_mov_b32 v{t3}, {oc(5+t)}
        v_cndmask_b32 v{t2}, v{t2}, v{t3}, {sr(sHM,2)}
        v_add_u32 v{AO+t}, v{t1}, v{t2}''')
    a(f'''
    s_lshl_b32 s{sT0}, s{sRT}, 4
    s_add_u32 s{sT0}, s{sT0}, s{sP}
    s_mul_i32 s{sT0}, s{sT0}, {KVS}
    s_mul_i32 s{sT1}, s{sHH}, {105*16}
    s_add_u32 s{sT0}, s{sT0}, s{sT1}
    s_lshl_b32 s{sT1}, s{sPG}, 3
    v_add_u32 v{t0}, s{sT1}, v{c16}              ; d
    v_lshl_add_u32 v{t1}, v{t0}, 4, s{sT0}
    s_lshl_b32 s{sT1}, s{sPG}, 4
    v_mov_b32 v{t3}, {BIG}
    v_cmp_gt_u32 vcc, s{sT1}, v{t0}
    v_cndmask_b32 v{t1}, v{t1}, v{t3}, vcc
    v_cmp_lt_u32 vcc, 20, v{t0}
    v_cndmask_b32 v{t1}, v{t1}, v{t3}, vcc
    v_mul_u32_u24 v{t2}, {21*16}, v{q4}
    v_add_u32 v{AS}, v{t1}, v{t2}
    v_lshl_add_u32 v{t2}, v{q4}, 3, v{t1}
    v_cndmask_b32 v{AS+1}, v{t2}, v{t3}, {sr(sHM,2)}
    s_mul_i32 s{sT0}, s{sRT}, 6
    s_mul_i32 s{sT1}, s{sPG}, 3
    s_add_u32 s{sT0}, s{sT0}, s{sT1}
    ''')
    for t in range(3):
        a(f'''s_cmp_lt_u32 s{sT0}, {64 - t}
        s_cselect_b32 s{sT1}, 0x3f80, 0
        v_mov_b32 v{ONE+t}, s{sT1}''')
    a(f'''
    s_lshl_b32 s{sT0}, s{sT0}, 5
    s_lshl_b32 s{sT1}, s{sPQ}, 1
    s_add_u32 s{sT0}, s{sT0}, s{sT1}
    s_add_u32 s{sT0}, s{sT0}, s{sHH}
    s_mul_i32 s{sT0}, s{sT0}, 1280
    v_lshl_add_u32 v{AS+2}, v{LANE}, 4, s{sT0}
    v_lshl_add_u32 v{t2}, v{LANE}, 3, s{sT0}
    v_cndmask_b32 v{AS+3}, v{t2}, v{t3}, {sr(sHM,2)}
    ''')
    if not opts.get('noclear'):
        a(f'''
        s_mov_b32 s{sO1}, 40960
        s_mov_b32 s{sO2}, 81920
        v_mov_b32 v{ACC}, -1
        v_mov_b32 v{ACC+1}, -1
        v_mov_b32 v{ACC+2}, -1
        v_mov_b32 v{ACC+3}, -1
        buffer_store_dwordx4 {vr(ACC,4)}, v{AS}, {sr(SRK,4)}, 0 offen sc1
        buffer_store_dwordx2 {vr(ACC,2)}, v{AS+1}, {sr(SRK,4)}, 0 offen offset:{84*16} sc1
        ''')
        for so in ('0', f's{sO1}', f's{sO2}'):
            a(f'buffer_store_dwordx4 {vr(ACC,4)}, v{AS+2}, {sr(SRO,4)}, {so} offen sc1')
            a(f'buffer_store_dwordx2 {vr(ACC,2)}, v{AS+3}, {sr(SRO,4)}, {so} offen offset:1024 sc1')
        a(f'''s_lshl_b32 s{sT0}, s2, 10
        s_add_u32 s{sT0}, s{sT0}, {4 << 20}
        v_lshl_add_u32 v{t0}, v0, 2, s{sT0}
        global_store_dword v{t0}, v{ACC}, {sr(S_WS,2)}''')
    a(f'''
    v_lshrrev_b32 v{t0}, 1, v{cq}
    v_lshl_add_u32 v{t0}, v{fh}, 1, v{t0}        ; a
    v_mul_u32_u24 v{t1}, 40, v{r4}
    v_add_u32 v{t1}, s{sT2}, v{t1}
    v_lshl_add_u32 v{t0}, v{t0}, 3, v{t1}
    v_mul_u32_u24 v{t3}, 160, v{hf}
    v_add_u32 v{t2}, v{t0}, v{t3}
    v_add_u32 v{t3}, v{t1}, v{t3}
    s_waitcnt vmcnt({0 if opts.get('noclear') else 9})
    ''')
    for w in range(2):
        for o in range(2):
            b = WP + 16 * w + 8 * o
            for t in range(2):
                a(f'ds_read_b64_tr_b16 {vr(b+2*t,2)}, v{t3 if o else t2} offset:{1024*w + 320*t + 32*o}')
            a(f'ds_read_b64_tr_b16 {vr(b+4,2)}, v{t1 if o else t0} offset:{1024*w + 640 + 32*o}')
    for i in range(96):
        a(f'v_mov_b32 v{ACC+i}, 0')
    a(f'''
    v_bfe_u32 v29, v{LANE}, 2, 1
    v_mov_b32 v30, 0x80008000
    v_mul_lo_u32 v29, v29, v30
    ''')
    for w in range(2):
        for o in range(2):
            b = WP + 16 * w + 8 * o
            for i in range(6):
                a(f'v_xor_b32 v{b+i}, v29, v{b+i}')
            for i in (4, 5):
                a(f'v_cndmask_b32 v{b+i}, 0, v{b+i}, {sr(sHM,2)}' if w else f'v_cndmask_b32 v{b+i}, v{b+i}, 0, {sr(sHM,2)}')
            a(f'v_mov_b32 v{b+6}, 0\nv_mov_b32 v{b+7}, 0')
    for i in range(20):
        a(f'v_mov_b32 v{FR+20+i}, 0')
    a(f'''
    s_mov_b32 s{sC}, {f32(LOG2E)}
    s_mov_b32 s{sCNT}, 0
    s_mov_b32 s{sT0}, 1
    s_cmp_eq_u32 s{S_WAVE}, 0
    s_cselect_b32 s{sSIG}, 2, 100
    v_mov_b32 v29, 0
    v_mov_b32 v30, 1
    ''')
    stamp(a, 0)

    def reads(ks):
        b = FR + 20 * (ks & 1)
        w = [f'ds_read_b64_tr_b16 {vr(b+12+4*j+2*t,2)}, v{AW+j} offset:{(16*ks+4*t)*128}' for j in range(2) for t in range(2)]
        x = [f'ds_read_b128 {vr(b+4*t,4)}, v{AX+ks} offset:{4096*t}' for t in range(3)]
        return [w[0], w[1], x[0], w[2], w[3], x[1], x[2]]

    def mfmas(ks):
        b = FR + 20 * (ks & 1)
        return [f'{MF32} {vr(ACC+32*t+16*j,16)}, {vr(b+12+4*j,4)}, {vr(b+4*t,4)}, {vr(ACC+32*t+16*j,16)}' for t in range(3) for j in range(2)]
    a(f'''
    s_branch L_c_loop
    L_c_sig:
    s_mov_b64 exec, 1
    global_atomic_add v29, v30, {sr(S_DBG,2)}
    s_mov_b64 exec, -1
    L_c_loop:
    s_barrier''')
    for ks in range(4):
        rd, mm = reads(ks), mfmas(ks - 1)
        extra = []
        if ks == 3:
            extra = [f's_add_u32 s{sT0}, s{sT0}, 1', f's_cmp_eq_u32 s{sT0}, 3', f's_cselect_b32 s{sT0}, 0, s{sT0}',
                     f's_mov_b32 s{sDEL}, {SLOT}', f's_cselect_b32 s{sDEL}, {-2*SLOT}, s{sDEL}', f's_add_u32 s{sCNT}, s{sCNT}, 1']
            extra2 = [f'v_add_u32 v{AX+i}, s{sDEL}, v{AX+i}' for i in range(6)]
        if ks == 0:
            a([rd[0], rd[1], rd[2], mm[0], rd[3], rd[4], mm[1], rd[5], rd[6], mm[2], mm[3], mm[4], mm[5]])
        elif ks < 3:
            a([mm[0], rd[0], rd[1], mm[1], rd[2], rd[3], mm[2], rd[4], rd[5], mm[3], rd[6], mm[4], mm[5]])
        else:
            a([mm[0], rd[0], rd[1], rd[2], mm[1], rd[3], rd[4], rd[5], mm[2], rd[6]] + extra[:3] + [mm[3]] + extra[3:] + [mm[4]] + extra2 + [mm[5]])
    a(f'''
    s_waitcnt vmcnt(1) lgkmcnt(0)
    s_cmp_eq_u32 s{sCNT}, s{sSIG}
    s_cbranch_scc1 L_c_sig
    s_cmp_lt_u32 s{sCNT}, 10
    s_cbranch_scc1 L_c_loop
    ''')
    a(mfmas(3))
    stamp(a, 1)
    KM, VM, LF, QM = (lambda t, o=o: PK + 16 * t + o for o in (0, 4, 8, 12))

    def pack(t):
        b = ACC + 32 * t
        o = [f'v_cvt_pk_bf16_f32 v{PK+16*t+i}, v{b+2*i}, v{b+2*i+1}' for i in range(16)]
        o += [f'v_cndmask_b32 v{LF(t)+2}, v{LF(t)+2}, v{ONE+t}, {sr(sHM,2)}', f'v_cndmask_b32 v{LF(t)+3}, v{LF(t)+3}, 0, {sr(sHM,2)}']
        return o

    def vwr(t):
        return [f'ds_write_b64 v{AE+5}, {vr(VM(t),2)} offset:{4096*t}', f'ds_write_b64 v{AE+6}, {vr(VM(t)+2,2)} offset:{4096*t}',
                f'ds_write_b64 v{AE+7}, {vr(LF(t)+2,2)} offset:{4096*t}']

    def wphi(t, w):
        b = ACC + 32 * t
        m = QM(t) if w else KM(t)
        o = []
        for s in range(2):
            for j in range(2):
                d = vr(b + 16 * j, 16)
                o.append(f'{MF32} {d}, {vr(WP+16*w+8*j+4*s,4)}, {vr(LF(t) if s else m,4)}, {d if s else "0"}')
        return o

    def softmax(t, ph):
        b = ACC + 32 * t
        m, m2, s, s2 = b + 20, b + 21, b + 22, b + 24
        o = [f'v_max3_f32 v{m}, v{b}, v{b+1}, v{b+2}', f'v_max3_f32 v{m2}, v{b+3}, v{b+4}, v{b+5}']
        for i in range(6, 20, 2):
            x = m if i % 4 == 2 else m2
            o.append(f'v_max3_f32 v{x}, v{x}, v{b+i}, v{b+i+1}')
        o += [f'v_max_f32 v{m}, v{m}, v{m2}', f'v_mul_f32 v{m}, s{sC}, v{m}']
        fm = [f'v_pk_fma_f32 {vr(b+2*i,2)}, {vr(b+2*i,2)}, {sr(sC,2)}, {vr(m,2)} op_sel_hi:[1,0,0] neg_lo:[0,0,1] neg_hi:[0,0,1]' for i in range(10)]
        ex = [f'v_exp_f32 v{b+i}, v{b+i}' for i in range(20)]
        ad = {1: f'v_pk_add_f32 {vr(s,2)}, {vr(b,2)}, {vr(b+2,2)}'}
        for i in range(2, 10):
            ad[i] = f'v_pk_add_f32 {vr(s,2)}, {vr(s,2)}, {vr(b+2*i,2)}'
        o += fm[:2]
        for i in range(10):
            o += ex[2 * i:2 * i + 2]
            if i + 2 < 10:
                o.append(fm[i + 2])
            if i - 1 in ad:
                o.append(ad[i - 1])
        o += [ad[9], f'v_add_f32 v{s}, v{s}, v{s+1}', f'v_rcp_f32 v{s}, v{s}']
        tail = []
        for i in range(10):
            tail.append(f'v_pk_mul_f32 {vr(b+2*i,2)}, {vr(b+2*i,2)}, {vr(s,2)} op_sel_hi:[1,0]')
        cv = [f'v_cvt_pk_bf16_f32 v{ph+i}, v{b+2*i}, v{b+2*i+1}' for i in range(10)]
        return o, tail, cv
    a(pack(0))
    a(interleave(wphi(0, 0), pack(1) + vwr(0)))
    a(interleave(wphi(1, 0), pack(2) + vwr(1)))
    for t in range(3):
        ph = FR + 12 * t
        o, tail, cv = softmax(t, ph)
        if t == 0:
            a(interleave(wphi(2, 0), vwr(2) + o, ratio=5))
        else:
            a(o)
        a(tail[:2])
        for i in range(10):
            if i + 2 < 10:
                a(tail[i + 2])
            a(cv[i])
            if i & 1:
                a(f'ds_write_b64 v{AE+i//2}, {vr(ph+i-1,2)} offset:{4096*t}')
    a('s_waitcnt lgkmcnt(0)\ns_barrier')
    stamp(a, 2)
    KB = ACC

    def kvrd(ks):
        return [f'ds_read_b64_tr_b16 {vr(KB+16*ks+4*j+2*t,2)}, v{AKV+2*j+t} offset:{(32*ks+4*t)*128}' for j in (3, 0, 1, 2) for t in range(2)]
    a(kvrd(0) + kvrd(1)[:6])
    pend = kvrd(1)[6:] + kvrd(2) + kvrd(3) + kvrd(4) + kvrd(5)
    for ks in range(6):
        for j in range(3):
            d = vr(KM(j), 4)
            a(f'{MF16} {d}, {vr(KB+16*ks+4*j,4)}, {vr(KB+16*ks+12,4)}, {d if ks else "0"}')
            a(pend[:3]); pend = pend[3:]
    qm = [wphi(t, 1) for t in range(3)]
    a(qm[0][:2])
    for j in range(3):
        for i in range(2):
            r = FR + 2 * j + i
            a(f'v_cvt_pk_bf16_f32 v{r}, v{KM(j)+2*i}, v{KM(j)+2*i+1}\nv_min_u32 v{r}, -2, v{r}')
        if j == 1:
            a(f'buffer_store_dwordx4 {vr(FR,4)}, v{AS}, {sr(SRK,4)}, 0 offen sc1')
    a(f'buffer_store_dwordx2 {vr(FR+4,2)}, v{AS+1}, {sr(SRK,4)}, 0 offen offset:{84*16} sc1')
    stamp(a, 3)
    a('s_setprio 0')
    a(qm[0][2:] + qm[1])
    for t in range(3):
        ph = FR + 12 * t
        o, tail, cv = softmax(t, ph)
        if t == 0:
            a(interleave(qm[2], o, ratio=5))
        else:
            a(o)
        a(tail[:2])
        for i in range(10):
            if i + 2 < 10:
                a(tail[i + 2])
            a(cv[i])
        a(f'v_mov_b32 v{ph+10}, 0\nv_mov_b32 v{ph+11}, 0')
    KA = WP
    a(f'''
    v_mov_b32 v{KA+10}, 0
    v_mov_b32 v{KA+11}, 0
    s_mov_b32 s{sO1}, 40960
    s_mov_b32 s{sO2}, 81920
    s_mov_b32 s{sEPS}, {f32(1e-6)}
    s_mul_i32 s{sT0}, s{S_IDX}, 13108
    s_lshr_b32 s{sT0}, s{sT0}, 16
    s_lshl_b32 s{sT1}, s{S_XCD}, 2
    s_add_u32 s{sT0}, s{sT0}, s{sT1}
    s_mul_i32 s{sOB}, s{sT0}, 81920
    s_mul_i32 s{sT2}, s{sHH}, 40960
    s_mul_i32 s{sT1}, s{sPG}, 5120
    s_add_u32 s{sT2}, s{sT2}, s{sT1}
    s_add_u32 s{sOB}, s{sOB}, s{sT2}
    v_lshlrev_b32 v2, 4, v{LANE}
    v_add_u32 v3, s{sT2}, v2
    v_lshrrev_b32 v4, 4, v{LANE}
    v_mul_u32_u24 v4, 10240, v4
    v_and_b32 v5, 15, v{LANE}
    v_mul_u32_u24 v5, 320, v5
    v_add3_u32 v4, v4, v5, 32
    v_mov_b32 v6, {FLAG}
    v_mov_b32 v7, 0
    ds_write_b32 v6, v7
    s_setprio 2
    s_waitcnt lgkmcnt(0)
    s_barrier
    ''')
    stamp(a, 4)
    for t in range(5):
        a(f'ds_read_b64 {vr(KA+2*t,2)}, v{AO+t}')
    for t in range(3):
        for s in range(3):
            d = vr(ACC + 16 * t, 16)
            a(f'{MF32} {d}, {vr(KA+4*s,4)}, {vr(FR+12*t+4*s,4)}, {d if s else "0"}')
    for t in range(3):
        b = ACC + 16 * t
        o = PK + 8 * t
        a(f'v_add_f32 v{b+12}, s{sEPS}, v{b+12}\nv_rcp_f32 v{b+12}, v{b+12}')
        so = ('0', f's{sO1}', f's{sO2}')[t]
        for i in range(6):
            a(f'v_pk_mul_f32 {vr(b+2*i,2)}, {vr(b+2*i,2)}, {vr(b+12,2)} op_sel_hi:[1,0]')
        for i in range(6):
            a(f'v_cvt_pk_bf16_f32 v{o+i}, v{b+2*i}, v{b+2*i+1}\nv_min_u32 v{o+i}, -2, v{o+i}')
            if i == 3:
                a(f'buffer_store_dwordx4 {vr(o,4)}, v{AS+2}, {sr(SRO,4)}, {so} offen sc1')
        a(f'buffer_store_dwordx2 {vr(o+4,2)}, v{AS+3}, {sr(SRO,4)}, {so} offen offset:1024 sc1')
    stamp(a, 5)
    a(f'''
    s_cmp_ge_u32 s{S_IDX}, 20
    s_cbranch_scc1 L_c_done
    s_setprio 0
    s_mov_b32 s{sCNT}, 0
    s_waitcnt vmcnt({opts.get("o_wait", 0)})
    ''')

    def dma(s):
        a(f's_add_u32 m0, s{sT2}, {10240*s}\ns_add_u32 s{sT0}, s{sOB}, {10240*s}')
        for i in range(4):
            a(f'buffer_load_dwordx4 v2, {sr(SRO,4)}, s{sT0} offen offset:{1024*i} sc1 lds')
        a(f's_add_u32 m0, m0, 4096\ns_add_u32 s{sT0}, s{sT0}, 4096')
        a(f'buffer_load_dwordx4 v2, {sr(SRO,4)}, s{sT0} offen sc1 lds')

    def scan(s):
        for i in range(5):
            a(f'ds_read_b128 {vr(ACC+4*i,4)}, v3 offset:{10240*s + 1024*i}')
        for i in range(10):
            a(f'v_max3_u32 v8, v8, v{ACC+2*i}, v{ACC+2*i+1}')
    a(f'''
    L_c_poll2:
    buffer_load_dword v9, v4, {sr(SRO,4)}, s{sOB} offen offset:284 sc1
    ''')
    dma(0)
    dma(1)
    a(f'''
    v_cmp_eq_u32 vcc, -1, v9
    s_add_u32 s{sCNT}, s{sCNT}, 1
    s_cmp_ge_u32 s{sCNT}, {CAP}
    s_cbranch_scc1 L_c_got2
    s_cbranch_vccnz L_c_poll2
    L_c_got2:
    v_mov_b32 v8, 0
    s_waitcnt vmcnt(5)
    s_barrier
    ''')
    dma(2)
    a('s_waitcnt vmcnt(5)\ns_barrier')
    dma(3)
    scan(0)
    a('s_waitcnt vmcnt(5)\ns_barrier')
    scan(1)
    a('s_waitcnt vmcnt(0)\ns_barrier')
    scan(2)
    scan(3)
    a(f'''
    v_cmp_eq_u32 vcc, -1, v8
    s_cmp_ge_u32 s{sCNT}, {CAP}
    s_cbranch_scc1 L_c_ok2
    s_cbranch_vccz L_c_ok2
    v_mov_b32 v8, 1
    ds_write_b32 v6, v8
    L_c_ok2:
    s_waitcnt lgkmcnt(0)
    s_barrier
    ds_read_b32 v8, v6
    v_readfirstlane_b32 s{sT0}, v8
    s_cmp_eq_u32 s{sT0}, 0
    s_cbranch_scc1 L_c_done
    s_barrier
    ds_write_b32 v6, v7
    s_waitcnt lgkmcnt(0)
    s_branch L_c_poll2
    L_c_done:
    ''')
    stamp(a, 6, final=True)
```

```python
from asmlib import *
import struct


def f32(x):
    return '0x%08x' % struct.unpack('<I', struct.pack('<f', x))[0]


LOG2E = 1.4426950408889634
ROWS = 2064
XBASE = 32 * ROWS
XM = 57344
UBASE = 57 * ROWS
USTR = 4640
BAND = UBASE + 8 * USTR
TSTR = 8192
TQ, TG, TY = 1216, 2432, 3456
G4O = TG - 32 * 4
G8O = TG + 132 * 4 - 50 * 4
assert BAND + 7 * 1024 <= 163840

S_WAVE = 3
S_U, S_LOGA, S_AIM, S_CRE, S_CIM, S_LOGDT, S_DSK, S_OUT, S_DBG, S_WS = 16, 18, 20, 22, 24, 26, 28, 30, 32, 34


def cmul(d, x, y, t=None):
    if t is None:
        t = d
        assert d != x and d != y
    return [f'v_pk_mul_f32 {vr(t,2)}, {vr(x,2)}, {vr(y,2)} op_sel:[0,0] op_sel_hi:[0,1]',
            f'v_pk_fma_f32 {vr(d,2)}, {vr(x,2)}, {vr(y,2)}, {vr(t,2)} op_sel:[1,1,0] op_sel_hi:[1,0,1] neg_lo:[0,1,0]']


def zipl(*ls):
    out = []
    for i in range(max(map(len, ls))):
        for l in ls:
            if i < len(l):
                out.append(l[i])
    return out


def gen_b(a, S_BIDX, hooks):
    LANE = 1
    PAR = 2
    UD = 16
    sD, sT0, sT1, sT2, sLD, sDS, sUL = 40, 41, 42, 43, 44, 45, 46
    SRDU = 48
    a(f'''
    s_lshl_b32 s{sD}, s{S_BIDX}, 3
    s_add_u32 s{sD}, s{sD}, s{S_WAVE}            ; channel
    s_mul_i32 s{sT0}, s{sD}, 384
    v_lshl_add_u32 v14, v{LANE}, 1, s{sT0}
    s_lshr_b32 s{sT1}, s{sD}, 1
    s_lshl_b32 s{sT1}, s{sT1}, 2
    s_add_u32 s{sT2}, s{sT1}, {2047*1280}
    v_mul_u32_u24 v15, {4*1280}, v0
    s_waitcnt lgkmcnt(0)
    ''')
    for c in range(3):
        for k, sp in enumerate((S_LOGA, S_AIM, S_CRE, S_CIM)):
            a(f'global_load_ushort v{PAR+4*c+k}, v14, {sr(sp,2)} offset:{128*c}')
    a(f'''
    s_load_dword s{sLD}, {sr(S_LOGDT,2)}, s{sT1}
    s_load_dword s{sDS}, {sr(S_DSK,2)}, s{sT1}
    s_load_dword s{sUL}, {sr(S_U,2)}, s{sT2}
    s_mov_b32 s{SRDU}, s{S_U}
    s_mov_b32 s{SRDU+1}, s{S_U+1}
    s_mov_b32 s{SRDU+2}, {2048*1280}
    s_mov_b32 s{SRDU+3}, 0x20000
    s_lshl_b32 s{sT0}, s{S_BIDX}, 4
    v_subrev_u32 v14, 1280, v15
    ''')
    hooks['after_params'](a)
    sUO, sEX = 47, 68
    a(f's_mov_b32 s{sUO}, s{sT0}\ns_mov_b32 s{sEX}, {(1 << 22) - 1}\ns_mov_b32 s{sEX+1}, 0')
    uld = [[f's_mov_b64 exec, {sr(sEX,2)}', x, 's_mov_b64 exec, -1'] for x in (
        f'buffer_load_dwordx4 {vr(UD,4)}, v14, {sr(SRDU,4)}, s{sUO} offen',
        f'buffer_load_dwordx4 {vr(UD+4,4)}, v15, {sr(SRDU,4)}, s{sUO} offen',
        f'buffer_load_dwordx4 {vr(UD+8,4)}, v15, {sr(SRDU,4)}, s{sUO} offen offset:1280',
        f'buffer_load_dwordx4 {vr(UD+12,4)}, v15, {sr(SRDU,4)}, s{sUO} offen offset:2560')]
    hooks['after_u'](a)
    bt = [(off + 21 - h, 2 * h + 1) for off, h in ((-20, 1), (-16, 2), (-12, 1), (-8, 2), (-16, 4), (-8, 3))] + [(1, 7), (0, 1)]
    lo_pack = sum(l << (4 * i) for i, (l, w) in enumerate(bt))
    wd_pack = sum(w << (4 * i) for i, (l, w) in enumerate(bt))
    I16, QD = 32, 33
    a(f'''
    v_and_b32 v{I16}, 15, v{LANE}
    v_lshrrev_b32 v{QD}, 4, v{LANE}
    s_lshl_b32 s{sT1}, s{S_WAVE}, 2
    s_lshr_b32 s{sT2}, {hex(wd_pack)}, s{sT1}
    s_and_b32 s{sT2}, s{sT2}, 15
    s_bfm_b32 s{sT2}, s{sT2}, 0                   ; (1<<wid)-1
    s_lshr_b32 s{sT1}, {hex(lo_pack)}, s{sT1}
    s_and_b32 s{sT1}, s{sT1}, 15
    s_lshl_b32 s{sT2}, s{sT2}, s{sT1}
    v_lshlrev_b32 v34, v{I16}, s{sT2}
    v_lshlrev_b32 v35, 3, v{QD}
    v_lshrrev_b32 v34, v35, v34
    s_movk_i32 s{sT1}, 0x3f80
    s_cmp_eq_u32 s{S_WAVE}, 6
    s_cselect_b32 s{sT1}, 0xffff, s{sT1}
    s_mov_b32 s{sT2}, 0x10001
    ''')
    for r in range(4):
        a(f'''v_bfe_u32 v{36+r}, v34, {2*r}, 2
        v_lshl_or_b32 v{36+r}, v{36+r}, 15, v{36+r}
        v_and_b32 v{36+r}, s{sT2}, v{36+r}
        v_mul_u32_u24 v{36+r}, s{sT1}, v{36+r}''')
    a(f'''
    v_lshlrev_b32 v35, 4, v0
    v_add_u32 v35, {BAND}, v35
    s_cmp_eq_u32 s{S_WAVE}, 7
    s_cbranch_scc1 L_b_noband
    ds_write_b128 v35, v[36:39]
    L_b_noband:
    ''')
    AX, AY = 34, 35
    sM0Y, sM0X = 52, 53
    a(f'''
    v_and_b32 v36, 31, v{LANE}
    v_lshrrev_b32 v37, 5, v{LANE}
    s_lshl_b32 s{sM0Y}, s{S_WAVE}, 8
    s_add_u32 s{sM0X}, s{sM0Y}, {XM}
    v_lshl_add_u32 v37, v37, 4, s{sM0Y}
    v_mov_b32 v39, {ROWS}
    v_mad_u32_u24 v{AY}, v36, v39, v37
    v_cmp_eq_u32 vcc, 5, v36
    v_cndmask_b32 v38, v36, 4, vcc
    v_or_b32 v36, 1, v36
    v_cmp_eq_u32 vcc, 13, v36
    v_cndmask_b32 v38, v38, 7, vcc
    v_mad_u32_u24 v{AX}, v38, v39, v37
    v_add_u32 v{AX}, {XBASE}, v{AX}
    s_mov_b32 m0, s{sM0X}
    v_mov_b32 v36, 0x3f80
    ds_write_addtid_b32 v36 offset:{XBASE-XM}
    ''')
    a(f'''
    s_mul_i32 s{sT1}, s{S_WAVE}, {USTR}
    s_add_u32 s{sT1}, s{sT1}, {UBASE}
    v_mov_b32 v36, 0
    v_mov_b32 v37, 0
    v_lshl_add_u32 v38, v{LANE}, 3, s{sT1}
    ds_write_b64 v38, v[36:37]
    v_cmp_ne_u32 vcc, 0, v{LANE}
    v_mov_b32 v39, {512*8}
    v_cndmask_b32 v39, 0, v39, vcc
    v_add_u32 v38, v38, v39
    s_waitcnt lgkmcnt(0)
    s_bitcmp1_b32 s{sD}, 0
    s_cselect_b32 s{sT1}, 16, 0
    s_lshr_b32 s{sUL}, s{sUL}, s{sT1}
    s_and_b32 s{sUL}, s{sUL}, 0xffff
    s_lshr_b32 s{sLD}, s{sLD}, s{sT1}
    s_lshl_b32 s{sLD}, s{sLD}, 16
    s_lshr_b32 s{sDS}, s{sDS}, s{sT1}
    s_lshl_b32 s{sDS}, s{sDS}, 16
    v_writelane_b32 v36, s{sUL}, 1
    s_mov_b64 exec, 15
    ds_write_b64 v38, v[36:37] offset:512
    s_mov_b64 exec, -1
    ''')
    sDT, sC2, sL2E, sI2P = 54, 56, 58, 59
    l2e_hi = struct.unpack('<f', struct.pack('<f', LOG2E))[0]
    a(f'''
    s_mov_b32 s{sL2E}, {f32(LOG2E)}
    s_mov_b32 s{sI2P}, {f32(0.15915494309189535)}
    v_mov_b32 v36, s{sLD}
    v_mul_f32 v37, s{sL2E}, v36
    v_fma_f32 v38, v36, s{sL2E}, -v37
    v_fmac_f32 v38, {f32(LOG2E - l2e_hi)}, v36
    v_exp_f32 v37, v37
    v_mul_f32 v38, {f32(0.6931471805599453)}, v38
    v_fma_f32 v37, v37, v38, v37
    v_cvt_pk_bf16_f32 v37, v37, v37
    v_lshlrev_b32 v37, 16, v37
    v_add_f32 v38, v37, v37
    v_readfirstlane_b32 s{sDT}, v37
    v_readfirstlane_b32 s{sC2}, v38
    ''')
    ACC = 40
    W = {k: 56 + 2 * i for i, k in enumerate((1, 2, 3, 4, 5, 6, 7, 8, 64, 256, 512, 768, 1032))}
    Y0 = 82
    T0 = 98
    CV = 114
    FR = 124
    sCNT = 60
    for i in range(16):
        a(f'v_mov_b32 v{ACC+i}, 0')
    a(f's_mov_b32 s{sCNT}, 3')
    a(f's_waitcnt vmcnt({hooks["n_after_params"] + hooks["n_after_u"]}) lgkmcnt(0)')
    a('L_b_kgen:')
    a(uld[0])
    cvn = [0]

    def put(val, slot, isx):
        r = CV + cvn[0] % 8
        cvn[0] += 1
        off = (XBASE - XM + slot * ROWS) if isx else slot * ROWS
        return [f'v_cvt_pk_bf16_f32 v{r}, v{val}, {"" if isx else "-"}v{val+1}', f'ds_write_addtid_b32 v{r} offset:{off}']
    al, be = T0, T0 + 1
    a(f'''
    v_lshlrev_b32 v{PAR}, 16, v{PAR}
    v_lshlrev_b32 v{PAR+1}, 16, v{PAR+1}
    v_mul_f32 v{PAR}, s{sL2E}, v{PAR}
    v_mul_f32 v{be}, s{sDT}, v{PAR+1}
    v_exp_f32 v{PAR}, v{PAR}
    v_mul_f32 v{be}, s{sI2P}, v{be}
    v_lshlrev_b32 v{PAR+2}, 16, v{PAR+2}
    v_cvt_pk_bf16_f32 v{PAR}, v{PAR}, v{PAR}
    v_lshlrev_b32 v{PAR+3}, 16, v{PAR+3}
    v_lshlrev_b32 v{PAR}, 16, v{PAR}
    v_fract_f32 v{T0+2}, v{be}
    v_mul_f32 v{al}, s{sDT}, v{PAR}
    v_mul_f32 v{T0+3}, 0x42800000, v{be}
    v_mul_f32 v{al}, s{sL2E}, v{al}
    v_fract_f32 v{T0+3}, v{T0+3}
    v_mul_f32 v{T0+5}, 0x42800000, v{al}
    v_cos_f32 v{W[1]}, v{T0+2}
    v_sin_f32 v{W[1]+1}, v{T0+2}
    v_exp_f32 v{T0+4}, -v{al}
    v_cos_f32 v{W[64]}, v{T0+3}
    v_sin_f32 v{W[64]+1}, v{T0+3}
    v_exp_f32 v{T0+6}, -v{T0+5}
    v_pk_mul_f32 {vr(W[1],2)}, {vr(W[1],2)}, {vr(T0+4,2)} op_sel_hi:[1,0]
    v_pk_mul_f32 {vr(Y0,2)}, {vr(PAR+2,2)}, {sr(sC2,2)} op_sel_hi:[1,0]
    v_pk_mul_f32 {vr(W[64],2)}, {vr(W[64],2)}, {vr(T0+6,2)} op_sel_hi:[1,0]
    s_mov_b32 m0, s{sM0X}
    ''')
    xs = {1: 1, 2: 2, 3: 3, 256: 4, 258: 6, 260: 7, 4: 8, 5: 9, 6: 10, 7: 11, 262: 14, 264: 15,
          512: 16, 516: 17, 1032: 18, 1288: 19, 768: 20, 772: 21, 1544: 22, 1800: 23, 1024: 24}
    t = lambda i: T0 + 2 * i
    c1 = cmul(W[2], W[1], W[1]) + put(W[1], xs[1], 1) + cmul(W[4], W[2], W[2]) + put(W[2], xs[2], 1) + \
        cmul(W[8], W[4], W[4]) + put(W[4], xs[4], 1) + cmul(W[3], W[2], W[1]) + cmul(W[6], W[4], W[2]) + put(W[3], xs[3], 1) + \
        cmul(W[5], W[4], W[1]) + put(W[6], xs[6], 1) + cmul(W[7], W[4], W[3]) + put(W[5], xs[5], 1) + put(W[7], xs[7], 1)
    c2 = cmul(t(0), W[64], W[64]) + cmul(W[256], t(0), t(0)) + cmul(W[512], W[256], W[256]) + put(W[256], xs[256], 1) + \
        cmul(t(1), W[512], W[512]) + put(W[512], xs[512], 1) + cmul(W[768], W[512], W[256]) + put(t(1), xs[1024], 1) + \
        cmul(W[1032], t(1), W[8]) + put(W[768], xs[768], 1) + put(W[1032], xs[1032], 1)
    a(zipl(c1, c2))
    a(uld[1])
    prods = [(258, 256, 2), (260, 256, 4), (262, 256, 6), (264, 256, 8), (516, 512, 4), (772, 768, 4), (1288, 1032, 256), (1544, 1032, 512), (1800, 1032, 768)]
    c3 = []
    for i, (p, x, y) in enumerate(prods):
        c3 += cmul(t(i % 4), W[x], W[y]) + put(t(i % 4), xs[p], 1)
    c4 = []
    for j in range(1, 8):
        c4 += cmul(Y0 + 2 * j, Y0 + 2 * j - 2, W[8])
    a(interleave(c3, c4))
    a(f's_mov_b32 m0, s{sM0Y}')
    for rnd in range(4):
        if rnd in (0, 2):
            a(uld[2 + rnd // 2])
        for j in range(0, 8, 2):
            p0, p1 = put(Y0 + 2 * j, 8 * rnd + j, 0), put(Y0 + 2 * j + 2, 8 * rnd + j + 1, 0)
            if rnd < 3:
                m0_, m1_ = cmul(Y0 + 2 * j, Y0 + 2 * j, W[64], t(4)), cmul(Y0 + 2 * j + 2, Y0 + 2 * j + 2, W[64], t(5))
                a([p0[0], m0_[0], p1[0], m1_[0], p0[1], m0_[1], p1[1], m1_[1]])
            else:
                a([p0[0], p1[0], p0[1], p1[1]])
    rd = lambda ks: [f'ds_read_b128 {vr(FR+8*(ks%4),4)}, v{AX} offset:{32*ks}', f'ds_read_b128 {vr(FR+8*(ks%4)+4,4)}, v{AY} offset:{32*ks}']
    for ks in range(4):
        a(rd(ks))
    for ks in range(8):
        a(f'v_mov_b32 v{PAR+ks}, v{PAR+4+ks}')
        a(f'v_mfma_f32_32x32x16_bf16 {vr(ACC,16)}, {vr(FR+8*(ks%4),4)}, {vr(FR+8*(ks%4)+4,4)}, {vr(ACC,16)}')
        if ks + 4 < 8:
            a(rd(ks + 4))
    a(f'''
    s_lshl_b64 {sr(sEX,2)}, {sr(sEX,2)}, 22
    s_sub_u32 s{sCNT}, s{sCNT}, 1
    s_cmp_lg_u32 s{sCNT}, 0
    s_cbranch_scc1 L_b_kgen
    ''')
    sP0, sP1 = 62, 63
    a(f'''
    s_mov_b32 s{sP0}, 0x05040100
    s_mov_b32 s{sP1}, 0x07060302
    v_lshlrev_b32 v36, 3, v0
    v_add_u32 v36, {UBASE + 65*8}, v36
    ''')
    for c in range(8):
        d, sp = c >> 1, (sP1 if c & 1 else sP0)
        r = T0 + 2 * c
        a(f'''v_perm_b32 v{r}, v{UD+4+d}, v{UD+d}, s{sp}
        v_perm_b32 v{r+1}, v{UD+12+d}, v{UD+8+d}, s{sp}
        ds_write_b64 v36, {vr(r,2)} offset:{c*USTR}''')
    hooks['before_barrier'](a)
    sTB = 64
    P, Q = 56, 60
    a(f'''
    s_lshl_b32 s{sTB}, s{S_WAVE}, 13
    v_mov_b32 v36, 0
    v_writelane_b32 v36, s{sDS}, 0
    v_add_f32 v{ACC}, v{ACC}, v36
    v_mov_b32_dpp v37, v{ACC+7} wave_shr:1 row_mask:0xf bank_mask:0xf bound_ctrl:1
    ''')
    for tt in range(4):
        a(f'v_cvt_pk_bf16_f32 v{P+tt}, v{ACC+2*tt+1}, v{ACC+2*tt}')
        a(f'v_cvt_pk_bf16_f32 v{Q+tt}, v{ACC+2*tt}, v{ACC+2*tt-1 if tt else 37}')
    sS, sF = 65, 66
    LO, HI, ZZ = 0x0100, 0x0302, 0x0c0c
    sel = {16: (HI, HI), 17: (LO, HI), 18: (LO, LO), 48: (HI, HI), 49: (HI, HI), 50: (LO, LO), 51: (ZZ, LO)}
    a(f'''
    v_cvt_pk_bf16_f32 v64, v{ACC+9}, v{ACC+8}
    v_cvt_pk_bf16_f32 v65, v{ACC+10}, v{ACC+11}
    v_cvt_pk_bf16_f32 v66, v{ACC+12}, v{ACC+12}
    v_mov_b32 v67, 0x0c0c0c0c
    v_readfirstlane_b32 s{sS}, v64
    v_readfirstlane_b32 s{sF}, v66
    ''')
    for ln, (lo, hi) in sel.items():
        a(f's_mov_b32 s{sT1}, {hex(lo | hi << 16)}\nv_writelane_b32 v67, s{sT1}, {ln}')
    a(f'''
    v_writelane_b32 v64, 0, 0
    v_perm_b32 v67, s{sS}, s{sS}, v67
    v_lshl_add_u32 v68, v{LANE}, 4, s{sTB}
    v_mov_b32 v72, 0
    v_mov_b32 v73, 0
    v_mov_b32 v74, 0
    v_mov_b32 v75, 0
    v_lshl_add_u32 v69, v{LANE}, 2, s{sTB}
    v_bfe_u32 v70, v{LANE}, 4, 1
    v_lshl_add_u32 v70, v70, 10, v69
    v_lshrrev_b32 v71, 5, v{LANE}
    v_mov_b32 v76, {TQ - 128}
    v_mad_u32_u24 v70, v71, v76, v70
    v_lshl_add_u32 v76, v71, 5, v{LANE}             ; 64*half + j
    v_and_b32 v77, 1, v{LANE}
    v_lshlrev_b32 v76, 1, v76
    v_lshlrev_b32 v77, 2, v77
    v_sub_u32 v76, v76, v77
    s_add_u32 s{sT1}, s{sTB}, {G8O + 65*4 + 2}
    v_add_u32 v76, s{sT1}, v76
    s_waitcnt lgkmcnt(0)
    s_barrier
    ds_write_b128 v68, v[72:75] offset:{TG}
    ds_write_b128 v68, {vr(P,4)} offset:64
    ds_write_b128 v68, {vr(Q,4)} offset:{TQ+64}
    ds_write_b32 v70, v67
    ds_write_b32 v69, v64 offset:{G4O + 64*4}
    ds_write_b16 v76, v65
    ds_write_b16_d16_hi v76, v65 offset:64
    ''')
    hooks['after_barrier'](a)
    AK, AK2, AU, AG4, AG8, AB = 2, 3, 4, 5, 6, 7
    a(f'''
    v_add_u32 v8, 5, v{I16}
    v_lshrrev_b32 v8, 1, v8                          ; (i+5)>>1
    v_lshlrev_b32 v9, 2, v{QD}
    v_sub_u32 v8, v8, v9
    v_add_u32 v8, 13, v8                             ; z0-3+16
    v_and_b32 v10, 1, v{I16}
    v_mul_u32_u24 v10, {TQ}, v10
    v_lshl_add_u32 v{AK}, v8, 2, v10
    v_add_u32 v{AK}, s{sTB}, v{AK}
    v_add_u32 v{AK2}, 1024, v{AK}
    s_mul_i32 s{sT1}, s{S_WAVE}, {USTR}
    s_add_u32 s{sT1}, s{sT1}, {UBASE}
    v_lshl_add_u32 v8, v{I16}, 1, v{QD}
    v_lshl_add_u32 v{AU}, v8, 4, s{sT1}
    v_sub_u32 v8, v{I16}, v9
    s_add_u32 s{sT1}, s{sTB}, {G4O + 4*(64 - 4 + 2 - 3)}
    v_lshl_add_u32 v{AG4}, v8, 3, s{sT1}
    s_add_u32 s{sT1}, s{sTB}, {G8O + 4*(64 + 1 - 3)}
    v_lshl_add_u32 v{AG8}, v8, 2, s{sT1}
    v_lshlrev_b32 v{AB}, 4, v{LANE}
    v_add_u32 v{AB}, {BAND}, v{AB}
    ''')
    YA = 8
    VV = 40
    AP = 64
    pool = list(range(76, 256, 4))

    def r2(r, ad, o):
        return [f'ds_read2_b32 {vr(r,2)}, v{ad} offset0:{o+3} offset1:{o+2}', f'ds_read2_b32 {vr(r+2,2)}, v{ad} offset0:{o+1} offset1:{o}']

    def load(key, r):
        k = key[0]
        if k == 'K':
            return r2(r, AK, 16 * key[1]) if key[1] < 16 else r2(r, AK2, 0)
        if k == 'U':
            return [f'ds_read_b128 {vr(r,4)}, v{AU} offset:{64*(key[1]+8)}']
        if k == 'UB':
            return [f'ds_read_b128 {vr(r,4)}, v{AU} offset:{64*(8*key[1]+8)-32}']
        if k == 'G4':
            return r2(r, AG4, 32 * (key[1] - 2) + 4 * (1 - key[2]))
        if k == 'G8':
            return r2(r, AG8, 16 * (key[1] - 4))
        if k == 'B':
            return [f'ds_read_b128 {vr(r,4)}, v{AB} offset:{1024*key[1]}']
    seq = []
    started = set()

    def mm(R, ka, kb):
        c = vr(YA + 4 * R, 4) if R in started else '0'
        started.add(R)
        A = '{0}' if isinstance(ka, tuple) else vr(ka, 4)
        keys = ([ka] if isinstance(ka, tuple) else []) + [kb]
        B = '{%d}' % (len(keys) - 1)
        return (f'v_mfma_f32_16x16x32_bf16 {vr(YA+4*R,4)}, {A}, {B}, {c}', keys)
    for n, c in enumerate((1, 2, 3, 4, 5, 6, 7, 0)):
        band, cv, sg = [], [], []
        if n < 6:
            nt = 6 if n < 4 else 4
            band = [(f'v_mfma_f32_16x16x32_bf16 {vr(VV+4*e,4)}, {{0}}, {{1}}, 0', [('UB', n), ('B', e)]) for e in range(nt)]
            for hh in range(2):
                for m in range(4):
                    r = 2 * hh + (m >> 1); e = 2 * (m & 1)
                    cv.append((f'v_cvt_pk_bf16_f32 v{AP+4*hh+m}, v{VV+4*e+r}, v{VV+4*(e+1)+r}', []))
            if n < 4:
                for m in range(4):
                    cv.append((f'v_cvt_pk_bf16_f32 v{AP+8+m}, v{VV+16+m}, v{VV+20+m}', []))
        if n == 6:
            cv = [(f'v_and_b32 v{AP+m}, s{sF}, {{0:{m}}}', [('B', 6)]) for m in range(4)]
        dense = []
        for tt in range(-1 if c == 0 else 0, 8):
            for ka in (c, c + 8, 16, 32)[:4 if c == 0 else 2]:
                R = tt + ka // 8
                if 0 <= R < 8:
                    dense.append(mm(R, ('K', ka) if ka < 32 else AP, ('U', 8 * tt - c)))
        if n < 6:
            for dl in (2, 3, 4):
                for hh in range(2):
                    if n + dl < 8:
                        sg.append(mm(n + dl, AP + 4 * hh, ('G4', dl, hh)))
            for dl in range(4, 8):
                if n < 4 and n + dl < 8:
                    sg.append(mm(n + dl, AP + 8, ('G8', dl)))
        seq += band + interleave(dense, cv, ratio=2, start=6) + sg
    first, last = {}, {}
    for i, (_, keys) in enumerate(seq):
        for k in keys:
            first.setdefault(k, i); last[k] = i
    order = sorted(first, key=lambda k: first[k])
    reg, nxt, pend = {}, 0, []
    LOOK = 10

    class FragFmt:
        def __init__(self, r): self.r = r
        def __format__(self, spec): return vr(self.r + int(spec)) if spec else vr(self.r, 4)
    for i, (txt, keys) in enumerate(seq):
        while nxt < len(order) and first[order[nxt]] <= i + LOOK and pool:
            k = order[nxt]; nxt += 1
            reg[k] = pool.pop(0)
            pend += [(first[k], x) for x in load(k, reg[k])]
        cntr = 0
        while pend and (pend[0][0] <= i + 3 or cntr < 1):
            a(pend.pop(0)[1]); cntr += 1
        a(txt.format(*[FragFmt(reg[k]) for k in keys]))
        for k in set(keys):
            if last[k] == i:
                pool.append(reg[k])
    a(f'v_lshl_add_u32 v2, v{LANE}, 3, s{sTB}')
    for R in range(8):
        a(f'''v_cvt_pk_bf16_f32 v{40+2*R}, v{YA+4*R}, v{YA+4*R+1}
        v_cvt_pk_bf16_f32 v{41+2*R}, v{YA+4*R+2}, v{YA+4*R+3}
        ds_write_b64 v2, {vr(40+2*R,2)} offset:{TY+512*R}''')
    a(f'''
    v_lshlrev_b32 v3, 3, v0
    v_and_b32 v4, 15, v{LANE}
    v_lshrrev_b32 v5, 4, v{LANE}
    v_lshl_add_u32 v4, v4, 2, v5
    s_lshl_b32 s{sT1}, s{S_WAVE}, 6
    v_add_u32 v4, s{sT1}, v4
    v_mul_u32_u24 v4, {4*2560}, v4
    s_lshl_b32 s{sT1}, s{S_BIDX}, 4
    s_add_u32 s{sT1}, s{sT1}, {1280 + 2560}
    v_add_u32 v4, s{sT1}, v4
    v_add_u32 v5, {2*2560}, v4
    s_waitcnt lgkmcnt(0)
    s_barrier
    ''')
    for c in range(8):
        a(f'ds_read_b64 {vr(8+2*c,2)}, v3 offset:{TY + c*TSTR}')
    for r in range(4):
        for d in range(4):
            a(f'v_perm_b32 v{24+4*r+d}, v{8+4*d+2+(r>>1)}, v{8+4*d+(r>>1)}, s{sP1 if r & 1 else sP0}')
        a(f'global_store_dwordx4 v{4+(r>>1)}, {vr(24+4*r,4)}, {sr(S_OUT,2)} offset:{-2560 if not r & 1 else 0}')
    hooks['end'](a)
```

```python
import sys, json
from asmlib import *
import gen_b, gen_a
NAME = 'concat_heads__linear_kernel_hedgehog__ssm_conv_s4d__prompt'
HEAD = open('cdna_kernels/%s.s.ref' % NAME).read().split('; @launch')[0]
STAMP_OFF = 64 << 20

def build(opts=None):
    opts = opts or {}
    a = Asm()
    diag = opts.get('diag')
    def stamp(a, i, final=False):
        if not diag: return
        a(f's_memrealtime s[{80+2*i}:{81+2*i}]')
        if final:
            a('s_waitcnt lgkmcnt(0)\nv_mov_b32 v2, 0')
            for k in range(9):
                a(f'v_writelane_b32 v2, s{80+2*k}, {k}')
            a(f's_lshl_b32 s80, s2, 3\ns_add_u32 s80, s80, s3\ns_lshl_b32 s80, s80, 8\ns_add_u32 s80, s80, {STAMP_OFF}\nv_lshl_add_u32 v3, v1, 2, s80\nglobal_store_dword v3, v2, s[34:35]')
    if diag: a('s_memrealtime s[96:97]')
    a('''
    s_load_dwordx8 s[8:15], s[0:1], 0
    s_load_dwordx16 s[16:31], s[0:1], 32
    s_load_dwordx4 s[32:35], s[0:1], 96
    s_cmp_ge_u32 s2, 256
    s_cbranch_scc1 L_end
    v_lshrrev_b32 v2, 6, v0
    v_and_b32 v1, 63, v0
    s_and_b32 s4, s2, 7
    v_readfirstlane_b32 s3, v2
    s_lshr_b32 s5, s2, 3
    ''')
    if opts.get('probe'):
        ptr, n = opts['probe']
        a(f'''s_waitcnt lgkmcnt(0)
        s_cmp_lg_u32 s3, 0
        s_cbranch_scc1 L_probe_done
        s_mul_i32 s36, s2, {n*128}
        v_mov_b32 v2, s36
        s_mov_b32 s37, {n}
        L_probe:
        global_load_dword v3, v2, s[{ptr}:{ptr+1}]
        s_waitcnt vmcnt(0)
        v_add_u32 v2, 128, v2
        s_sub_u32 s37, s37, 1
        s_cmp_lg_u32 s37, 0
        s_cbranch_scc1 L_probe
        L_probe_done:
        s_barrier''')
    a('''
    s_cmp_ge_u32 s5, 22
    s_cbranch_scc1 L_B
    ''')
    gen_a.gen_a(a, opts, stamp)
    a('''
    s_endpgm
    ;@reset
    L_B:
    s_mul_i32 s6, s4, 10
    s_add_u32 s6, s6, s5
    s_sub_u32 s6, s6, 22
    ''')
    nop = lambda a: None
    def clear(a): stamp(a, 0)
    def before(a): stamp(a, 1)
    def after(a): stamp(a, 2)
    def end(a):
        stamp(a, 3)
        if diag: a('s_waitcnt vmcnt(0)')
        stamp(a, 6, final=True)
    hooks = dict(after_params=nop, after_u=clear, n_after_params=0, n_after_u=0, before_barrier=before, after_barrier=after, end=end)
    gen_b.gen_b(a, 6, hooks)
    a('L_end:')
    body = a.finish()
    txt = HEAD + '; @launch grid=(256,1,1) block=(512,1,1) lds=163840\n'
    txt += f'''.amdgcn_target "amdgcn-amd-amdhsa--gfx950"
.text
.globl {NAME}_kernel
.p2align 8
.type {NAME}_kernel,@function
{NAME}_kernel:
'''
    txt += '\n'.join(l if l.endswith(':') else '    ' + l for l in body if not l.startswith(';@'))
    txt += f'''
    s_endpgm
.section .rodata,"a"
.p2align 6
.amdhsa_kernel {NAME}_kernel
  .amdhsa_next_free_vgpr 256
  .amdhsa_next_free_sgpr 102
  .amdhsa_accum_offset 256
  .amdhsa_group_segment_fixed_size 0
  .amdhsa_kernarg_size 112
  .amdhsa_user_sgpr_count 2
  .amdhsa_user_sgpr_kernarg_segment_ptr 1
  .amdhsa_system_sgpr_workgroup_id_x 1
.end_amdhsa_kernel
'''
    return txt
if __name__ == '__main__':
    out = sys.argv[1] if len(sys.argv) > 1 else 'k.s'
    opts = json.loads(sys.argv[2]) if len(sys.argv) > 2 else {}
    open(out, 'w').write(build(opts))
```

```python
import sys, json
from asmlib import *
import gen_b, gen_a
NAME = 'concat_heads__linear_kernel_hedgehog__ssm_conv_s4d__prompt'
HEAD = open('cdna_kernels/%s.s.ref' % NAME).read().split('; @launch')[0]
STAMP_OFF = 64 << 20

def build(opts=None):
    opts = opts or {}
    a = Asm()
    diag = opts.get('diag')
    amp = opts.get('amp')
    role = ['L']
    def stamp(a, i, final=False):
        if amp:
            r = role[0]
            if final: role[0] = {'L': 'C', 'C': 'B', 'B': ''}[r]
            if r != amp[0]: return
            if i == amp[1]: a('s_memrealtime s[80:81]')
            if final:
                a(f'''s_waitcnt vmcnt(0) lgkmcnt(0)
                s_sub_u32 s80, s80, s96
                s_mul_i32 s80, s80, {amp[2]}
                s_add_u32 s80, s80, 10000
                L_amp:
                s_sleep 2
                s_memrealtime s[82:83]
                s_waitcnt lgkmcnt(0)
                s_sub_u32 s82, s82, s96
                s_cmp_lt_u32 s82, s80
                s_cbranch_scc1 L_amp''')
            return
        if not diag: return
        a(f's_memrealtime s[{80+2*i}:{81+2*i}]')
        if final:
            a('s_waitcnt lgkmcnt(0)\nv_mov_b32 v2, 0')
            for k in range(9):
                a(f'v_writelane_b32 v2, s{80+2*k}, {k}')
            a(f's_lshl_b32 s80, s2, 3\ns_add_u32 s80, s80, s3\ns_lshl_b32 s80, s80, 8\ns_add_u32 s80, s80, {STAMP_OFF}\nv_lshl_add_u32 v3, v1, 2, s80\nglobal_store_dword v3, v2, s[34:35]')
    if diag or amp: a('s_memrealtime s[96:97]')
    a('''
    s_load_dwordx8 s[8:15], s[0:1], 0
    s_load_dwordx16 s[16:31], s[0:1], 32
    s_load_dwordx4 s[32:35], s[0:1], 96
    s_cmp_ge_u32 s2, 256
    s_cbranch_scc1 L_end
    v_lshrrev_b32 v2, 6, v0
    v_and_b32 v1, 63, v0
    s_and_b32 s4, s2, 7
    v_readfirstlane_b32 s3, v2
    s_lshr_b32 s5, s2, 3
    ''')
    if opts.get('probe'):
        ptr, n = opts['probe']
        a(f'''s_waitcnt lgkmcnt(0)
        s_cmp_lg_u32 s3, 0
        s_cbranch_scc1 L_probe_done
        s_mul_i32 s36, s2, {n*128}
        v_mov_b32 v2, s36
        s_mov_b32 s37, {n}
        L_probe:
        global_load_dword v3, v2, s[{ptr}:{ptr+1}]
        s_waitcnt vmcnt(0)
        v_add_u32 v2, 128, v2
        s_sub_u32 s37, s37, 1
        s_cmp_lg_u32 s37, 0
        s_cbranch_scc1 L_probe
        L_probe_done:
        s_barrier''')
    a('''
    s_cmp_ge_u32 s5, 22
    s_cbranch_scc1 L_B
    ''')
    gen_a.gen_a(a, opts, stamp)
    a('''
    s_endpgm
    ;@reset
    L_B:
    s_mul_i32 s6, s4, 10
    s_add_u32 s6, s6, s5
    s_sub_u32 s6, s6, 22
    ''')
    nop = lambda a: None
    def clear(a): stamp(a, 0)
    def before(a): stamp(a, 1)
    def after(a): stamp(a, 2)
    def end(a):
        stamp(a, 3)
        if diag: a('s_waitcnt vmcnt(0)')
        stamp(a, 6, final=True)
    hooks = dict(after_params=nop, after_u=clear, n_after_params=0, n_after_u=0, before_barrier=before, after_barrier=after, end=end)
    gen_b.gen_b(a, 6, hooks)
    a('L_end:')
    body = a.finish()
    txt = HEAD + '; @launch grid=(256,1,1) block=(512,1,1) lds=163840\n'
    txt += f'''.amdgcn_target "amdgcn-amd-amdhsa--gfx950"
.text
.globl {NAME}_kernel
.p2align 8
.type {NAME}_kernel,@function
{NAME}_kernel:
'''
    txt += '\n'.join(l if l.endswith(':') else '    ' + l for l in body if not l.startswith(';@'))
    txt += f'''
    s_endpgm
.section .rodata,"a"
.p2align 6
.amdhsa_kernel {NAME}_kernel
  .amdhsa_next_free_vgpr 256
  .amdhsa_next_free_sgpr 102
  .amdhsa_accum_offset 256
  .amdhsa_group_segment_fixed_size 0
  .amdhsa_kernarg_size 112
  .amdhsa_user_sgpr_count 2
  .amdhsa_user_sgpr_kernarg_segment_ptr 1
  .amdhsa_system_sgpr_workgroup_id_x 1
.end_amdhsa_kernel
'''
    return txt
if __name__ == '__main__':
    out = sys.argv[1] if len(sys.argv) > 1 else 'k.s'
    opts = json.loads(sys.argv[2]) if len(sys.argv) > 2 else {}
    open(out, 'w').write(build(opts))
```

```python
import sys, json
from asmlib import *
import gen_b, gen_a
NAME = 'concat_heads__linear_kernel_hedgehog__ssm_conv_s4d__prompt'
HEAD = open('cdna_kernels/%s.s.ref' % NAME).read().split('; @launch')[0]
STAMP_OFF = 64 << 20

def build(opts=None):
    opts = opts or {}
    a = Asm()
    diag = opts.get('diag')
    amp = opts.get('amp')
    role = ['L']
    def stamp(a, i, final=False):
        if amp:
            r = role[0]
            if final: role[0] = {'L': 'C', 'C': 'B', 'B': ''}[r]
            if r != amp[0]: return
            if i == amp[1]: a('s_memrealtime s[80:81]')
            if final:
                a(f'''s_waitcnt vmcnt(0) lgkmcnt(0)
                s_sub_u32 s80, s80, s96
                s_mul_i32 s80, s80, {amp[2]}
                s_add_u32 s80, s80, 10000''')
                if opts.get('wbl2'):
                    a('''L_amp0:
                    s_sleep 2
                    s_memrealtime s[82:83]
                    s_waitcnt lgkmcnt(0)
                    s_sub_u32 s82, s82, s96
                    s_cmp_lt_u32 s82, 5000
                    s_cbranch_scc1 L_amp0
                    buffer_wbl2 sc1
                    s_waitcnt vmcnt(0)''')
                a('''L_amp:
                s_sleep 2
                s_memrealtime s[82:83]
                s_waitcnt lgkmcnt(0)
                s_sub_u32 s82, s82, s96
                s_cmp_lt_u32 s82, s80
                s_cbranch_scc1 L_amp''')
            return
        if not diag: return
        a(f's_memrealtime s[{80+2*i}:{81+2*i}]')
        if final:
            a('s_waitcnt lgkmcnt(0)\nv_mov_b32 v2, 0')
            for k in range(9):
                a(f'v_writelane_b32 v2, s{80+2*k}, {k}')
            a(f's_lshl_b32 s80, s2, 3\ns_add_u32 s80, s80, s3\ns_lshl_b32 s80, s80, 8\ns_add_u32 s80, s80, {STAMP_OFF}\nv_lshl_add_u32 v3, v1, 2, s80\nglobal_store_dword v3, v2, s[34:35]')
    if diag or amp: a('s_memrealtime s[96:97]')
    a('''
    s_load_dwordx8 s[8:15], s[0:1], 0
    s_load_dwordx16 s[16:31], s[0:1], 32
    s_load_dwordx4 s[32:35], s[0:1], 96
    s_cmp_ge_u32 s2, 256
    s_cbranch_scc1 L_end
    v_lshrrev_b32 v2, 6, v0
    v_and_b32 v1, 63, v0
    s_and_b32 s4, s2, 7
    v_readfirstlane_b32 s3, v2
    s_lshr_b32 s5, s2, 3
    ''')
    if opts.get('probe'):
        ptr, n = opts['probe']
        a(f'''s_waitcnt lgkmcnt(0)
        s_cmp_lg_u32 s3, 0
        s_cbranch_scc1 L_probe_done
        s_mul_i32 s36, s2, {n*128}
        v_mov_b32 v2, s36
        s_mov_b32 s37, {n}
        L_probe:
        global_load_dword v3, v2, s[{ptr}:{ptr+1}]
        s_waitcnt vmcnt(0)
        v_add_u32 v2, 128, v2
        s_sub_u32 s37, s37, 1
        s_cmp_lg_u32 s37, 0
        s_cbranch_scc1 L_probe
        L_probe_done:
        s_barrier''')
    a('''
    s_cmp_ge_u32 s5, 22
    s_cbranch_scc1 L_B
    ''')
    gen_a.gen_a(a, opts, stamp)
    a('''
    s_endpgm
    ;@reset
    L_B:
    s_mul_i32 s6, s4, 10
    s_add_u32 s6, s6, s5
    s_sub_u32 s6, s6, 22
    ''')
    nop = lambda a: None
    def clear(a): stamp(a, 0)
    def before(a): stamp(a, 1)
    def after(a): stamp(a, 2)
    def end(a):
        stamp(a, 3)
        if diag: a('s_waitcnt vmcnt(0)')
        stamp(a, 6, final=True)
    hooks = dict(after_params=nop, after_u=clear, n_after_params=0, n_after_u=0, before_barrier=before, after_barrier=after, end=end)
    gen_b.gen_b(a, 6, hooks)
    a('L_end:')
    body = a.finish()
    txt = HEAD + '; @launch grid=(256,1,1) block=(512,1,1) lds=163840\n'
    txt += f'''.amdgcn_target "amdgcn-amd-amdhsa--gfx950"
.text
.globl {NAME}_kernel
.p2align 8
.type {NAME}_kernel,@function
{NAME}_kernel:
'''
    txt += '\n'.join(l if l.endswith(':') else '    ' + l for l in body if not l.startswith(';@'))
    txt += f'''
    s_endpgm
.section .rodata,"a"
.p2align 6
.amdhsa_kernel {NAME}_kernel
  .amdhsa_next_free_vgpr 256
  .amdhsa_next_free_sgpr 102
  .amdhsa_accum_offset 256
  .amdhsa_group_segment_fixed_size 0
  .amdhsa_kernarg_size 112
  .amdhsa_user_sgpr_count 2
  .amdhsa_user_sgpr_kernarg_segment_ptr 1
  .amdhsa_system_sgpr_workgroup_id_x 1
.end_amdhsa_kernel
'''
    return txt
if __name__ == '__main__':
    out = sys.argv[1] if len(sys.argv) > 1 else 'k.s'
    opts = json.loads(sys.argv[2]) if len(sys.argv) > 2 else {}
    open(out, 'w').write(build(opts))
```

```python
import re

REG = re.compile(r'(?<![\w.])([vas])(\d+)(?![\w\[])|(?<![\w.])([vas])\[(\d+):(\d+)\]|\b(vcc|exec|m0|scc)(?:_lo|_hi)?\b')
TRANS = ('v_exp_f32', 'v_log_f32', 'v_rcp_f32', 'v_rsq_f32', 'v_sqrt_f32', 'v_sin_f32', 'v_cos_f32', 'v_rcp_iflag_f32')


def regs_of(tok):
    out = []
    for m in REG.finditer(tok):
        if m.group(1):
            out.append((m.group(1), int(m.group(2))))
        elif m.group(3):
            out += [(m.group(3), i) for i in range(int(m.group(4)), int(m.group(5)) + 1)]
        else:
            out.append((m.group(6), 0))
    return out


class Ins:
    __slots__ = ('text', 'op', 'cls', 'dst', 'src', 'ops', 'passes', 'A', 'B', 'C', 'dpp', 'lds', 'wide', 'states', 'data')

    def __init__(self, text):
        self.text = text
        t = text.split(';')[0].strip()
        self.dst, self.src = set(), set()
        self.passes = 0
        self.A = self.B = self.C = ()
        self.dpp = self.lds = self.wide = False
        self.data = set()
        self.states = 1
        if not t or t.endswith(':') or t.startswith('.'):
            self.op = t
            self.cls = 'label' if t.endswith(':') else 'none'
            self.states = 0
            self.ops = []
            return
        sp = t.split(None, 1)
        op = sp[0]
        for suf in ('_e32', '_e64'):
            if op.endswith(suf):
                op = op[:-len(suf)]
        self.op = op
        rest = sp[1] if len(sp) > 1 else ''
        ops, depth, cur = [], 0, ''
        for ch in rest:
            if ch in '[(':
                depth += 1
            if ch in '])':
                depth -= 1
            if ch == ',' and depth == 0:
                ops.append(cur.strip()); cur = ''
            else:
                cur += ch
        if cur.strip():
            ops.append(cur.strip())
        mods = ''
        if ops:
            p = ops[-1].split(None, 1)
            ops[-1] = p[0]
            mods = p[1] if len(p) > 1 else ''
        self.ops = ops
        R = [regs_of(o) for o in ops]
        allr = lambda l: set(x for r in l for x in r)
        if op.startswith('v_mfma'):
            self.cls = 'mfma'
            self.passes = 8 if '32x32' in op else 4
            self.dst = set(R[0]); self.A, self.B, self.C = R[1], R[2], R[3]
            self.src = allr(R[1:])
        elif op.startswith('v_'):
            self.cls = 'valu'
            self.dpp = op.endswith('_dpp')
            if op in ('v_nop',):
                return
            nd = 2 if ('_co_' in op or op.startswith('v_div_scale') or op.startswith('v_mad_u64')) else 1
            self.dst = allr(R[:nd]); self.src = allr(R[nd:])
            if op.startswith(('v_fmac', 'v_writelane', 'v_pk_fmac', 'v_dot2c')) or self.dpp:
                self.src |= set(R[0])
            if op.startswith(('v_permlane', 'v_swap')):
                self.dst = allr(R); self.src = allr(R)
            if op.startswith('v_cndmask') and len(ops) == 3:
                self.src.add(('vcc', 0))
        elif op.startswith('ds_'):
            self.cls = 'ds'
            if op.startswith(('ds_read', 'ds_bpermute', 'ds_permute', 'ds_swizzle')) or '_rtn' in op:
                self.dst = set(R[0]); self.src = allr(R[1:])
            else:
                self.src = allr(R)
            if 'addtid' in op:
                self.src.add(('m0', 0)); self.lds = True
        elif op.startswith(('buffer_', 'global_')):
            self.cls = 'vmem'
            islds = ' lds' in (' ' + mods) or 'load_lds' in op
            if islds:
                self.src = allr(R); self.src.add(('m0', 0)); self.lds = True
            elif '_load' in op:
                self.dst = set(R[0]); self.src = allr(R[1:])
                if ';touch' in text:
                    self.dst = set()
            elif 'atomic' in op and 'sc0' in mods:
                self.dst = set(R[0]); self.src = allr(R)
            else:
                self.src = allr(R)
                if op.endswith(('x3', 'x4')):
                    self.wide = True
                    self.data = set(R[0]) if op.startswith('buffer_') else set(R[1])
        elif op.startswith(('s_load', 's_buffer_load', 's_memtime', 's_memrealtime')):
            self.cls = 'smem'
            self.dst = set(R[0]); self.src = allr(R[1:])
        elif op.startswith('s_'):
            self.cls = 'salu'
            if op == 's_nop':
                self.states = int(ops[0], 0) + 1
            elif op.startswith(('s_cmp', 's_cmpk', 's_cbranch', 's_branch', 's_waitcnt', 's_barrier', 's_setprio', 's_sleep', 's_endpgm', 's_bitcmp')):
                self.src = allr(R)
                if 'vcc' in op:
                    self.src.add(('vcc', 0))
            else:
                self.dst = set(R[0]) if R else set(); self.src = allr(R[1:])
                if 'saveexec' in op:
                    self.dst.add(('exec', 0))
        else:
            raise ValueError('unknown instruction: ' + text)


def is_v(r):
    return r[0] in 'va'


def need_states(p, c):
    n = 0
    if p.cls == 'valu':
        vd = {r for r in p.dst if is_v(r)}
        sd = p.dst - vd
        if vd & c.src:
            if c.cls == 'mfma':
                n = max(n, 2)
            if c.cls == 'valu':
                if c.dpp or c.op.startswith('v_permlane'):
                    n = max(n, 2)
                if c.op.startswith(('v_readlane', 'v_readfirstlane')):
                    n = max(n, 1)
                if p.op in TRANS:
                    n = max(n, 1)
        if sd & c.src:
            if c.cls == 'valu':
                n = max(n, 4 if c.op.startswith(('v_readlane', 'v_writelane')) else 2)
            if c.cls == 'vmem':
                n = max(n, 5)
            if c.cls in ('salu', 'smem'):
                n = max(n, 1)
    if p.cls == 'mfma':
        big = 12 if p.passes == 8 else 8
        if c.cls == 'mfma':
            if p.dst & (set(c.A) | set(c.B)):
                n = max(n, big)
            if p.dst & set(c.C):
                if not (set(c.C) == p.dst and c.passes == p.passes):
                    n = max(n, big - 2)
            elif p.dst & c.dst and c.passes != p.passes:
                n = max(n, big)
        elif c.cls in ('valu', 'ds', 'vmem'):
            if p.dst & (c.src | c.dst):
                n = max(n, big)
            if c.cls == 'valu' and set(p.C) & c.dst:
                n = max(n, 7 if p.passes == 8 else 3)
    if p.cls == 'salu' and ('m0', 0) in p.dst and c.lds:
        n = max(n, 1)
    if p.wide and p.data & c.dst:
        n = max(n, 2)
    return n


WIN = 14


def deficit(hist, c):
    d, dist = 0, 0
    for p in reversed(hist):
        if dist >= WIN:
            break
        k = need_states(p, c)
        if k > dist:
            d = max(d, k - dist)
        dist += p.states
    return d


def parse_wait(ins):
    t = ins.text.split(';')[0]
    vm = re.search(r'vmcnt\((\d+)\)', t)
    lg = re.search(r'lgkmcnt\((\d+)\)', t)
    return (int(vm.group(1)) if vm else None, int(lg.group(1)) if lg else None)


def auto_wait(ins_list):
    out = []
    vq, lq = [], []
    auto = True
    age, clock, lt = None, 0, []
    for ins in ins_list:
        t = ins.text.strip()
        if t.startswith(';@'):
            d = t[2:].split()[0]
            if d == 'manual':
                auto = False
            elif d == 'auto':
                auto = True
            elif d == 'reset':
                vq, lq = [], []
            elif d == 'age':
                age = int(t.split()[1]) or None
            out.append(ins)
            continue
        if ins.cls in ('none', 'label'):
            out.append(ins)
            continue
        if ins.op == 's_waitcnt':
            vm, lg = parse_wait(ins)
            if vm is not None:
                vq = vq[len(vq) - vm:] if vm < len(vq) else vq
                if vm == 0:
                    vq = []
            if lg is not None:
                if lg == 0:
                    lq = []
                elif not any(s for _, s in lq):
                    lq = lq[len(lq) - lg:] if lg < len(lq) else lq
            out.append(ins)
            continue
        touched = ins.src | ins.dst
        vm = lg = None
        for i, d in enumerate(vq):
            if d & touched:
                vm = len(vq) - 1 - i
        for i, (d, s) in enumerate(lq):
            if d & touched:
                lg = len(lq) - 1 - i
        if lg is not None and any(s for _, s in lq):
            lg = 0
        if auto and (vm is not None or lg is not None):
            w = 's_waitcnt'
            if vm is not None:
                vm = min(vm, 63)
                w += f' vmcnt({vm})'
                vq = vq[len(vq) - vm:] if vm else []
            if lg is not None:
                lg = min(lg, 15)
                if age:
                    lg = min(lg, sum(1 for x in lt[len(lt) - len(lq):] if clock - x < age))
                w += f' lgkmcnt({lg})'
                lq = lq[len(lq) - lg:] if lg else []
            out.append(Ins(w))
        out.append(ins)
        if ins.cls == 'vmem':
            vq.append(set(ins.dst))
        elif ins.cls == 'ds':
            lq.append((set(ins.dst), False)); lt.append(clock)
        elif ins.cls == 'smem':
            lq.append((set(ins.dst), True)); lt.append(clock)
        elif ins.cls == 'mfma':
            clock += 1
    return out


def fix_hazards(ins_list):
    out = []
    for ins in ins_list:
        if ins.states and ins.op != 's_nop':
            d = deficit(out[-40:], ins)
            if d:
                out.append(Ins(f's_nop {d - 1}'))
        out.append(ins)
    labels = {ins.op[:-1]: i for i, ins in enumerate(out) if ins.cls == 'label'}
    i = 0
    while i < len(out):
        ins = out[i]
        if ins.op.startswith(('s_cbranch', 's_branch')):
            tgt = labels[ins.ops[0]]
            hist = out[max(0, i - 40):i + 1]
            need = 0
            for c in out[tgt:tgt + 24]:
                if c.states:
                    need = max(need, deficit(hist, c))
                hist = hist + [c]
                if c.op in ('s_branch', 's_endpgm'):
                    break
            if need:
                out.insert(i, Ins(f's_nop {need - 1}'))
                labels = {x.op[:-1]: k for k, x in enumerate(out) if x.cls == 'label'}
                i += 1
        i += 1
    return out


class Asm:
    def __init__(self):
        self.lines = []

    def __call__(self, text):
        if isinstance(text, (list, tuple)):
            for t in text:
                self(t)
            return
        for l in text.split('\n'):
            l = l.strip()
            if l:
                self.lines.append(l)

    def finish(self):
        ins = [Ins(l) for l in self.lines]
        ins = auto_wait(ins)
        ins = fix_hazards(ins)
        return [i.text for i in ins]


def interleave(main, fill, ratio=None, start=0):
    out = []
    n, m = len(main), len(fill)
    if ratio is None:
        ratio = m / max(1, n - start)
    acc, j = 0.0, 0
    for i, x in enumerate(main):
        out.append(x)
        if i >= start:
            acc += ratio
            while acc >= 1 - 1e-9 and j < m:
                out.append(fill[j]); j += 1; acc -= 1
    out += fill[j:]
    return out


def vr(a, n=1):
    return f'v{a}' if n == 1 else f'v[{a}:{a + n - 1}]'


def sr(a, n=1):
    return f's{a}' if n == 1 else f's[{a}:{a + n - 1}]'


import subprocess, os, tempfile


def sizes_of(lines):
    src = '.amdgcn_target "amdgcn-amd-amdhsa--gfx950"\n.text\n' + '\n'.join(lines) + '\ns_endpgm\n'
    d = tempfile.mkdtemp()
    open(d + '/a.s', 'w').write(src)
    subprocess.run(['clang', '-x', 'assembler', '-target', 'amdgcn-amd-amdhsa', '-mcpu=gfx950', '-c', d + '/a.s', '-o', d + '/a.o'], check=True)
    out = subprocess.run(['llvm-objdump', '-d', '--mcpu=gfx950', d + '/a.o'], capture_output=True, text=True).stdout
    sz = [4 * len(l.split('//')[1].split(':')[1].split('<')[0].split()) for l in out.split('\n') if '//' in l]
    return sz[:-1]


def align8(lines, min_run=5):
    real = [i for i, l in enumerate(lines) if Ins(l).states]
    sz = sizes_of(lines)
    assert len(sz) == len(real), (len(sz), len(real))
    ins = [Ins(lines[i]) for i in real]
    wid = [s == 4 and x.cls == 'valu' and not x.op.startswith(('v_readfirstlane', 'v_permlane', 'v_nop', 'v_swap')) for s, x in zip(sz, ins)]
    pad_after = set()
    par, k, n = 0, 0, len(real)
    while k < n:
        if sz[k] != 4:
            k += 1
            continue
        e = k
        while e < n and sz[e] == 4:
            e += 1
        if (par + e - k) & 1:
            c = [j for j in range(k, e) if wid[j]]
            good = [j for j in c if (par + j - k) % 2 == 0]
            if c:
                j = (good or c)[0]
                p = lines[real[j]].split(None, 1)
                lines[real[j]] = p[0] + '_e64 ' + p[1]
                par = 0
            else:
                f = e
                while f < n and sz[f] != 4:
                    f += 1
                nv = sum(ins[j].cls != 'mfma' for j in range(e, f)) - 3 * sum(ins[j].cls == 'mfma' for j in range(e, f))
                if nv >= min_run or ins[e - 1].op in ('s_branch', 's_endpgm'):
                    pad_after.add(real[e - 1]); par = 0
                else:
                    par = 1
        else:
            par = 0
        k = e
    out = []
    for i, l in enumerate(lines):
        out.append(l)
        if i in pad_after:
            out.append('s_nop 0')
    return out
```

```python
from asmlib import *
from gen_b import f32, LOG2E, zipl

SLOT = 49152
WOFF = 24576
WOB = 77824
WPB = 147456
KVI = 159744
FLAG = 163840 - 64
OBYTES = 2048 * 1280
KVS = 4096
KVBYTES = 11 * 16 * KVS
NCLEAR = 80
BIG = 0x7f000000

S_WAVE, S_XCD, S_IDX = 3, 4, 5
S_X, S_W, S_WPHI, S_WO, S_OUT, S_DBG, S_WS = 8, 10, 12, 14, 30, 32, 34
sRT, sP, sPQ, sT0, sT1, sT2, sT3 = 36, 37, 38, 39, 40, 41, 42
SRX, SRW, SRO, SRK = 44, 48, 52, 56
LANE = 1
MF32 = 'v_mfma_f32_32x32x16_bf16'
MF16 = 'v_mfma_f32_16x16x32_bf16'
CAP = 1 << 20


def srd(a, d, base, size, add=0):
    if add:
        a(f's_add_u32 s{d}, s{base}, {add}\ns_addc_u32 s{d+1}, s{base+1}, 0')
    else:
        a(f's_mov_b32 s{d}, s{base}\ns_mov_b32 s{d+1}, s{base+1}')
    a(f's_mov_b32 s{d+2}, {size}\ns_mov_b32 s{d+3}, 0x20000')


def pf_addr(a, vi, vx, vw, t, n, sa, sb):
    a(f'''
    s_and_b32 s{sa}, s{S_XCD}, 1
    s_mul_i32 s{sa}, s{sa}, 960
    s_lshr_b32 s{sb}, s{S_XCD}, 1
    s_mul_i32 s{sb}, s{sb}, 320
    s_and_b32 s{sb}, s{sb}, 0xff80
    v_add_u32 v{vx}, s{sa}, v{vi}
    v_mul_u32_u24 v{vx}, 1280, v{vx}
    v_subrev_u32 v{t}, 1152, v{vi}
    v_cmp_gt_u32 vcc, {n - 1152}, v{t}
    v_mul_u32_u24 v{t+1}, 21846, v{t}
    v_lshrrev_b32 v{t+1}, 16, v{t+1}
    v_mul_u32_u24 v{t+1}, 896, v{t+1}
    v_lshl_add_u32 v{t}, v{t}, 7, s{sb}
    v_add_u32 v{t}, v{t}, v{t+1}
    v_mov_b32 v{t+1}, {BIG}
    v_cndmask_b32 v{vw}, v{t+1}, v{t}, vcc
    v_cmp_gt_u32 vcc, 1152, v{vi}
    v_cndmask_b32 v{vx}, v{t+1}, v{vx}, vcc
    ''')


def pf_init(a, nall, sw, vx, vw, t, sa, sb):
    a(f'''
    s_lshl_b32 s{sa}, s{S_IDX}, 2
    s_add_u32 s{sa}, s{sa}, s{sw}
    v_mul_u32_u24 v{t+2}, 3277, v{LANE}
    v_lshrrev_b32 v{t+2}, 16, v{t+2}
    v_mul_u32_u24 v{t+3}, 20, v{t+2}
    v_sub_u32 v{t+3}, v{LANE}, v{t+3}
    v_mul_u32_u24 v{t+3}, 88, v{t+3}
    v_add_u32 v{t+3}, s{sa}, v{t+3}
    ''')
    pf_addr(a, t + 3, vx, vw, t, 1728, sa, sb)
    a(f'''
    v_lshl_add_u32 v{vx}, v{t+2}, 7, v{vx}
    v_mul_u32_u24 v{t+2}, {64*3840}, v{t+2}
    v_add_u32 v{vw}, v{vw}, v{t+2}
    ''')


def clear_check(a, late, lbl, vc, vz):
    a(f'''
    v_readfirstlane_b32 s{sT0}, v{vc}
    s_mov_b32 s{sT1}, 0
    s_cmp_lt_u32 s{sT0}, {NCLEAR}
    s_cbranch_scc1 {lbl}
    {lbl}_ok:
    ''')
    late.append(f'''
    ;@reset
    {lbl}:
    s_sleep 32
    global_load_dword v{vc}, v{vz}, {sr(S_DBG,2)} sc1
    s_add_u32 s{sT1}, s{sT1}, 1
    s_waitcnt vmcnt(0)
    v_readfirstlane_b32 s{sT0}, v{vc}
    s_cmp_ge_u32 s{sT1}, {CAP}
    s_cselect_b32 s{sT0}, {NCLEAR}, s{sT0}
    s_cmp_lt_u32 s{sT0}, {NCLEAR}
    s_cbranch_scc1 {lbl}
    s_branch {lbl}_ok
    ''')


def gen_a(a, opts, stamp):
    a(f'''
    s_and_b32 s{sT0}, s{S_XCD}, 1
    s_mul_i32 s{sT0}, s{sT0}, 22
    s_add_u32 s{sT0}, s{sT0}, s{S_IDX}
    s_lshr_b32 s{sRT}, s{sT0}, 2
    {f"s_add_u32 s{sT0}, s{sT0}, s{sRT}" if opts.get('mix', 1) else ""}
    s_and_b32 s{sT0}, s{sT0}, 3
    s_lshr_b32 s{sT1}, s{S_XCD}, 1
    s_lshl_b32 s{sT1}, s{sT1}, 2
    s_add_u32 s{sP}, s{sT0}, s{sT1}
    s_xor_b32 s{sPQ}, s{sP}, {opts.get('qswap', 1)}
    s_cmp_lt_u32 s{S_WAVE}, 4
    s_cbranch_scc1 L_a_C
    ''')
    late = []
    gen_l(a, opts, stamp, late)
    a(';@reset\nL_a_C:')
    gen_c(a, opts, stamp, late)
    a('s_endpgm')
    a(late)


def gen_l(a, opts, stamp, late):
    sLW, sSX, sSW, sCNT, sKC, sPT, sWB = 60, 61, 62, 63, 64, 65, 69
    VX, VW = 2, 8
    sa, sb = opts.get('stag', (0, 0))
    a(f's_sub_u32 s{sLW}, s{S_WAVE}, 4')
    PF = opts.get('pf', 1)
    if PF:
        pf_init(a, opts.get('nall', 1), sLW, 20, 21, 22, sT1, sT2)
    a('s_waitcnt lgkmcnt(0)')
    srd(a, SRX, S_X, 2048 * 1280)
    srd(a, SRW, S_W, 640 * 3840)
    if PF:
        nl = 20 * opts.get('nall', 1)
        a(f's_mov_b32 exec_hi, {(1 << (nl - 32)) - 1}' if nl > 32 else f's_mov_b64 exec, {(1 << nl) - 1}')
        a(f'buffer_load_dword v31, v20, {sr(SRX,4)}, 0 offen ;touch')
        a(f'buffer_load_dword v31, v21, {sr(SRW,4)}, 0 offen ;touch')
        a('s_mov_b64 exec, -1')
    a(f'''
    v_lshrrev_b32 v14, 3, v{LANE}
    v_lshrrev_b32 v15, 4, v{LANE}
    v_and_b32 v16, 7, v{LANE}
    s_and_b32 s{sT1}, s{sLW}, 1
    s_lshl_b32 s{sT1}, s{sT1}, 2
    v_xor_b32 v17, v15, v16
    v_xor_b32 v17, s{sT1}, v17
    v_mul_u32_u24 v18, 1280, v14
    v_lshl_add_u32 v{VX}, v17, 4, v18
    v_and_b32 v15, 1, v15
    v_lshlrev_b32 v15, 2, v15
    v_xor_b32 v17, v15, v16
    v_mul_u32_u24 v18, 3840, v14
    v_lshl_add_u32 v18, v17, 4, v18
    s_mul_i32 s{sT1}, s{sP}, 80
    s_and_b32 s{sT1}, s{sT1}, 0xffc0
    s_add_u32 s{sT1}, s{sT1}, 1280
    s_mul_i32 s{sT2}, s{sPQ}, 80
    s_and_b32 s{sT2}, s{sT2}, 0xffc0
    v_add_u32 v{VW}, s{sT1}, v18
    v_add_u32 v{VW+4}, s{sT2}, v18
    v_xor_b32 v18, 32, v18
    s_add_u32 s{sT1}, s{sT1}, 1280
    v_add_u32 v{VW+2}, s{sT1}, v18
    ''')
    for i in range(1, 6):
        a(f'v_add_u32 v{VX+i}, {i*32*1280}, v{VX}')
    for p in range(3):
        a(f'v_add_u32 v{VW+2*p+1}, {32*3840}, v{VW+2*p}')
    if sa or sb:
        a(f'''
        s_mul_i32 s{sKC}, s{sT0}, {sa}
        s_mul_i32 s{sT1}, s{sRT}, {sb}
        s_add_u32 s{sKC}, s{sKC}, s{sT1}
        s_lshr_b32 s{sKC}, s{sKC}, 2
        s_mul_i32 s{sT1}, s{sKC}, 6554
        s_lshr_b32 s{sT1}, s{sT1}, 16
        s_mul_i32 s{sT1}, s{sT1}, 10
        s_sub_u32 s{sKC}, s{sKC}, s{sT1}
        ''')
    else:
        a(f's_mov_b32 s{sKC}, 0')
    a(f'''
    s_mul_i32 s{sT2}, s{sRT}, 24
    s_add_u32 s{sT2}, s{sT2}, s{sLW}
    s_mul_i32 s{sT2}, s{sT2}, {8*1280}
    s_mul_i32 s{sT3}, s{sLW}, {8*3840}
    s_lshl_b32 s{sT1}, s{sLW}, 10
    s_add_u32 m0, s{sT1}, {SLOT}
    s_mov_b32 s{sCNT}, 0
    L_l_loop:
    s_lshl_b32 s{sSX}, s{sKC}, 7
    s_add_u32 s{sSX}, s{sSX}, s{sT2}
    s_mul_i32 s{sSW}, s{sKC}, {64*3840}
    s_add_u32 s{sSW}, s{sSW}, s{sT3}
    ''')
    SPL = opts.get('split', 8)
    for i in range(12):
        if opts.get('nodma'):
            pass
        elif i < 6:
            a(f'buffer_load_dwordx4 v{VX+i}, {sr(SRX,4)}, s{sSX} offen lds')
        elif opts.get('noq') and i >= 10:
            pass
        else:
            a(f'buffer_load_dwordx4 v{VW+i-6}, {sr(SRW,4)}, s{sSW} offen lds')
        a('s_add_u32 m0, m0, 4096')
        if i + 1 == SPL:
            a(f'''
            s_cmp_eq_u32 s{sCNT}, 0
            s_cbranch_scc1 L_l_first
            s_waitcnt vmcnt({SPL})
            s_barrier
            L_l_first:''')
    a(f'''
    s_cmp_ge_u32 m0, {3*SLOT}
    s_cselect_b32 m0, s{sT1}, m0
    s_add_u32 s{sKC}, s{sKC}, 1
    s_cmp_eq_u32 s{sKC}, 10
    s_cselect_b32 s{sKC}, 0, s{sKC}
    s_add_u32 s{sCNT}, s{sCNT}, 1
    s_cmp_lt_u32 s{sCNT}, 10
    s_cbranch_scc1 L_l_loop
    ''')
    a(f'''
    v_mov_b32 v20, 0
    s_cmp_ge_u32 s{S_IDX}, 10
    s_cselect_b32 s{sT0}, 10, 0
    s_cselect_b32 s{sT1}, 4, 0
    s_sub_u32 s{sT0}, s{S_IDX}, s{sT0}
    s_lshl_b32 s{sT0}, s{sT0}, 7
    s_lshl_b32 s{sPT}, s{S_XCD}, 3
    s_add_u32 s{sPT}, s{sPT}, s{sT1}
    s_add_u32 s{sPT}, s{sPT}, s{sLW}
    v_lshrrev_b32 v14, 3, v{LANE}
    v_mul_u32_u24 v14, 1280, v14
    v_bfe_u32 v15, v{LANE}, 4, 1
    v_lshlrev_b32 v15, 2, v15
    v_and_b32 v16, 7, v{LANE}
    v_xor_b32 v15, v15, v16
    v_lshl_add_u32 v4, v15, 4, v14
    s_mul_i32 s{sSW}, s{sLW}, {8*1280}
    s_add_u32 s{sSW}, s{sSW}, s{sT0}
    s_lshl_b32 s{sT1}, s{sLW}, 10
    s_add_u32 s{sWB}, s{sT1}, {WOB}
    ''')
    srd(a, SRW, S_WO, 640 * 1280)
    a(f's_cmp_ge_u32 s{S_IDX}, 20\ns_cselect_b32 s{SRW+2}, 0, s{SRW+2}')

    def wo(i0, i1):
        for i in range(i0, i1):
            a(f's_add_u32 m0, s{sWB}, {4096*i}\ns_add_u32 s{sT0}, s{sSW}, {32*1280*i}')
            a(f'buffer_load_dwordx4 v4, {sr(SRW,4)}, s{sT0} offen lds')
    W0 = opts.get('wo0', 6)
    wo(5, 5 + W0)
    a(f's_waitcnt vmcnt({W0})\ns_barrier')
    wo(5 + W0, 20)
    srd(a, SRO, S_WS, OBYTES)
    srd(a, SRK, S_WS, KVBYTES, OBYTES)
    a(f'''
    s_mul_i32 s{sT2}, s{sRT}, 6
    s_add_u32 s{sT2}, s{sT2}, s{sLW}
    s_lshl_b32 s{sT2}, s{sT2}, 4
    s_add_u32 s{sT2}, s{sT2}, s{sPQ}
    s_mul_i32 s{sT2}, s{sT2}, 2560
    s_add_u32 s{sT3}, s{sT2}, {4*40960}
    s_cmp_ge_u32 s{sLW}, 2
    s_cselect_b32 s{sT3}, {BIG}, s{sT3}
    v_lshlrev_b32 v22, 4, v{LANE}
    v_mov_b32 v24, -1
    v_mov_b32 v25, -1
    v_mov_b32 v26, -1
    v_mov_b32 v27, -1
    s_barrier
    ''')
    wo(0, 5)
    for so in (sT2, sT3):
        a(f'''buffer_store_dwordx4 v[24:27], v22, {sr(SRO,4)}, s{so} offen sc1
        buffer_store_dwordx4 v[24:27], v22, {sr(SRO,4)}, s{so} offen offset:1024 sc1
        s_mov_b32 exec_hi, 0
        buffer_store_dwordx4 v[24:27], v22, {sr(SRO,4)}, s{so} offen offset:2048 sc1
        s_mov_b32 exec_hi, -1''')
    a(f'''
    v_mov_b32 v21, {NCLEAR}
    s_cmp_lg_u32 s{sLW}, 3
    s_cbranch_scc1 L_l_nochk
    global_load_dword v21, v20, {sr(S_DBG,2)} sc1
    L_l_nochk:
    ''')
    LD, RD, SEL = 32, 80, 88
    sK1, sK2, sM, sH, sB1 = 66, 67, 70, 76, 68
    a(f'''
    v_and_b32 v14, 15, v{LANE}
    v_lshrrev_b32 v15, 4, v{LANE}
    s_lshl_b32 s{sT0}, s{sLW}, 6
    v_add_u32 v16, s{sT0}, v14
    s_mul_i32 s{sT1}, s{sPQ}, {KVS}
    v_mov_b32 v17, {16*KVS}
    v_mad_u32_u24 v17, v15, v17, s{sT1}
    ''')
    for c in range(4):
        a(f'''v_add_u32 v18, {16*c}, v16
        v_min_u32 v18, 239, v18
        v_lshl_add_u32 v{6+c}, v18, 4, v17''')
    a(f'''
    v_lshrrev_b32 v17, 1, v15
    v_lshl_add_u32 v16, v17, 4, v16
    v_and_b32 v17, 1, v15
    v_lshlrev_b32 v17, 3, v17
    v_lshl_add_u32 v10, v16, 4, v17
    v_add_u32 v10, {KVI}, v10
    v_and_b32 v16, 1, v14
    v_lshlrev_b32 v16, 4, v16
    v_mov_b32 v17, 0x3f80
    v_lshlrev_b32 v16, v16, v17
    v_lshrrev_b32 v17, 1, v14
    ''')
    for m in range(8):
        a(f'v_cmp_eq_u32 vcc, {m}, v17\nv_cndmask_b32 v{SEL+m}, 0, v16, vcc')
    a(f'''
    s_mul_i32 s{sT0}, s{sPT}, 10923
    s_lshr_b32 s{sT0}, s{sT0}, 16
    s_mul_i32 s{sT0}, s{sT0}, {16*KVS}
    v_lshl_add_u32 v5, v14, 12, s{sT0}
    v_lshl_add_u32 v17, v14, 16, s{sT1}
    v_cmp_gt_u32 vcc, 16, v{LANE}
    v_cndmask_b32 v5, v5, v17, vcc
    v_mov_b32 v12, 0
    s_mov_b32 s{sK1}, {4*16*KVS}
    s_mov_b32 s{sK2}, {8*16*KVS}
    s_mov_b32 s{sCNT}, 0
    s_movk_i32 s{sH}, 0xfff
    s_mov_b32 s{sH+1}, 0
    ''')
    a([f's_mov_b64 {sr(sM+2*m,2)}, -1' for m in range(3)])
    a('s_waitcnt vmcnt(0)')
    stamp(a, 2)
    clear_check(a, late, 'L_l_clr', 21, 20)
    a(f'''
    s_setprio 3
    s_barrier
    L_l_poll:
    s_mov_b64 exec, {sr(sH,2)}
    buffer_load_dword v12, v5, {sr(SRK,4)}, 0 offen offset:3840 sc1
    s_mov_b64 exec, -1
    s_cmp_lg_u32 s{sCNT}, 0
    s_cbranch_scc1 L_l_nob
    s_barrier
    L_l_nob:
    s_add_u32 s{sCNT}, s{sCNT}, 1
    s_cmp_ge_u32 s{sCNT}, {CAP}
    s_cbranch_scc1 L_l_got1
    v_cmp_eq_u32 {sr(sH,2)}, -1, v12
    s_bcnt1_i32_b32 s{sT0}, s{sH}
    s_cmp_gt_u32 s{sT0}, {opts.get('h1_k', 4)}
    s_cbranch_scc1 L_l_poll
    s_mov_b32 s{sH}, 0xffff0000
    v_mov_b32 v12, 0
    ''')
    stamp(a, 4)
    a('L_l_poll2:')
    for m in range(3):
        a(f's_mov_b64 exec, {sr(sM+2*m,2)}\ns_cbranch_execz L_l_sk{m}')
        for c in range(4):
            a(f'buffer_load_dwordx4 {vr(LD+16*m+4*c,4)}, v{6+c}, {sr(SRK,4)}, {("0", f"s{sK1}", f"s{sK2}")[m]} offen sc1')
        a(f'L_l_sk{m}:')
    a(f'''
    s_mov_b64 exec, {sr(sH,2)}
    s_cbranch_execz L_l_sk3
    buffer_load_dword v12, v5, {sr(SRK,4)}, 0 offen offset:3840 sc1
    L_l_sk3:
    s_mov_b64 exec, -1
    {f"s_sleep {opts['h1_sleep']}" if opts.get('h1_sleep') else ""}
    s_add_u32 s{sCNT}, s{sCNT}, 1
    s_cmp_ge_u32 s{sCNT}, {CAP}
    s_cbranch_scc1 L_l_got1
    ''')
    a(f's_waitcnt vmcnt(0)\nv_cmp_eq_u32 {sr(sH,2)}, -1, v12')
    for m in range(3):
        for c in range(4):
            r, d = LD + 16 * m + 4 * c, RD + 4 * (c >> 1)
            a(f'{MF16} {vr(d,4)}, {vr(SEL+4*(c&1),4)}, {vr(r,4)}, {"0" if m == 0 and not c & 1 else vr(d,4)}')
            a(f'v_max3_u32 v11, v{r}, v{r+1}, {"v11" if c else "0"}\nv_max3_u32 v11, v11, v{r+2}, v{r+3}')
        a(f'v_cmp_eq_u32 {sr(sM+2*m,2)}, -1, v11')
    a(f'''
    s_or_b64 vcc, {sr(sM,2)}, {sr(sM+2,2)}
    s_or_b64 vcc, vcc, {sr(sH,2)}
    s_or_b64 vcc, vcc, {sr(sM+4,2)}
    s_cbranch_scc1 L_l_poll2
    L_l_got1:
    ''')
    stamp(a, 5)
    for i in range(4):
        a(f'v_cvt_pk_bf16_f32 v{12+i}, v{RD+2*i}, v{RD+2*i+1}')
    a(f'''
    ds_write_b64 v10, v[12:13]
    ds_write_b64 v10, v[14:15] offset:512
    s_waitcnt lgkmcnt(0)
    s_barrier
    ''')
    stamp(a, 3)
    stamp(a, 6, final=True)
    a('s_endpgm')


def gen_c(a, opts, stamp, late):
    sHH, sPG, sDEL, sCNT, sC = 60, 61, 62, 63, 64
    sHM = 66
    sO1, sO2, sOB, sEPS, sQ0, sHN = 68, 69, 70, 71, 72, 47+1
    AX, AW, AE, AKV, AO = 2, 6, 8, 16, 24
    ACC, FR, WP, PK = 32, 128, 168, 200
    ONE = 248
    AS = 251
    T = lambda i: PK + i
    a(f's_and_b32 s{sHH}, s{S_WAVE}, 1\ns_lshr_b32 s{sPG}, s{S_WAVE}, 1\ns_setprio 2')
    c32, hf, r4, cq, fh, q4, c16 = (T(i) for i in range(7))
    t0, t1, t2, t3 = (T(i) for i in range(8, 12))
    a(f'''
    v_and_b32 v{c32}, 31, v{LANE}
    v_lshrrev_b32 v{hf}, 5, v{LANE}
    v_bfe_u32 v{r4}, v{LANE}, 2, 2
    v_and_b32 v{cq}, 3, v{LANE}
    v_bfe_u32 v{fh}, v{LANE}, 4, 1
    v_lshrrev_b32 v{q4}, 4, v{LANE}
    v_and_b32 v{c16}, 15, v{LANE}
    s_mov_b32 s{sHM}, 0
    s_mov_b32 s{sHM+1}, -1
    v_bfe_u32 v{t0}, v{LANE}, 1, 3
    v_xor_b32 v{t0}, v{t0}, v{hf}
    v_lshlrev_b32 v{t0}, 4, v{t0}
    v_lshl_add_u32 v{t0}, v{c32}, 7, v{t0}
    s_mul_i32 s{sT0}, s{sPG}, {96*128}
    s_add_u32 s{sT0}, s{sT0}, {SLOT}
    v_add_u32 v{AX}, s{sT0}, v{t0}
    v_xor_b32 v{AX+1}, 32, v{AX}
    v_xor_b32 v{AX+2}, 64, v{AX}
    v_xor_b32 v{AX+3}, 0x60, v{AX}
    s_mul_i32 s{sT0}, s{sP}, 80
    s_and_b32 s{sT0}, s{sT0}, 63
    s_mul_i32 s{sT1}, s{sPQ}, 80
    s_and_b32 s{sT1}, s{sT1}, 63
    s_mul_i32 s{sT3}, s{sHH}, 40
    s_add_u32 s{sT0}, s{sT0}, s{sT3}
    s_add_u32 s{sT1}, s{sT1}, s{sT3}
    v_lshl_add_u32 v{t0}, v{hf}, 3, v{r4}
    v_lshlrev_b32 v{t0}, 7, v{t0}
    v_add_u32 v{t0}, {SLOT + WOFF}, v{t0}
    v_lshrrev_b32 v{t1}, 1, v{r4}
    v_lshlrev_b32 v{t1}, 6, v{t1}
    v_lshl_add_u32 v{t2}, v{cq}, 3, s{sT0}
    v_mul_u32_u24 v{t3}, {8192 + 32}, v{fh}
    v_xor_b32 v{t2}, v{t2}, v{t3}
    v_xor_b32 v{t2}, v{t2}, v{t1}
    v_add_u32 v{AW}, v{t0}, v{t2}
    s_add_u32 s{sT0}, s{sT0}, 32                  ; k4
    s_xor_b32 s{sT3}, s{sT0}, {8192 + 32}         ; v4
    v_mov_b32 v{t2}, s{sT3}
    v_mov_b32 v{t3}, s{sT0}
    v_cmp_eq_u32 vcc, 0, v{cq}
    v_cndmask_b32 v{t2}, v{t2}, v{t3}, vcc
    s_add_u32 s{sT1}, s{sT1}, 16384
    s_add_u32 s{sT3}, s{sT1}, 32                  ; q4
    v_mov_b32 v{t3}, s{sT3}
    v_cmp_eq_u32 vcc, 1, v{cq}
    v_cndmask_b32 v{t2}, v{t2}, v{t3}, vcc
    v_lshl_add_u32 v{t3}, v{cq}, 3, s{sT1}
    v_cmp_eq_u32 vcc, 1, v{fh}
    v_cndmask_b32 v{t2}, v{t2}, v{t3}, vcc
    v_xor_b32 v{t2}, v{t2}, v{t1}
    v_add_u32 v{AW+1}, v{t0}, v{t2}
    ''')
    a(f'''
    s_lshl_b32 s{sT0}, s{sP}, 1
    s_add_u32 s{sT0}, s{sT0}, s{sHH}
    s_mul_i32 s{sT0}, s{sT0}, 800
    s_lshl_b32 s{sT1}, s{sPQ}, 1
    s_add_u32 s{sT1}, s{sT1}, s{sHH}
    s_mul_i32 s{sT1}, s{sT1}, 800
    v_lshlrev_b32 v29, 4, v{LANE}
    s_lshl_b32 s{sT2}, s{S_WAVE}, 11
    s_add_u32 s{sT2}, s{sT2}, {WPB}
    s_mov_b32 m0, s{sT2}
    s_waitcnt lgkmcnt(0)
    ''')
    srd(a, SRX, S_WPHI, 32 * 800)
    a(f'''
    buffer_load_dwordx4 v29, {sr(SRX,4)}, s{sT0} offen lds
    s_add_u32 m0, m0, 1024
    buffer_load_dwordx4 v29, {sr(SRX,4)}, s{sT1} offen lds
    ''')
    srd(a, SRO, S_WS, OBYTES)
    srd(a, SRK, S_WS, KVBYTES, OBYTES)
    main_a, a = a, Asm()
    a(f'''
    v_and_b32 v{t0}, 9, v{LANE}
    v_bfe_u32 v{t1}, v{LANE}, 2, 1
    v_lshl_or_b32 v{t0}, v{t1}, 1, v{t0}
    v_bfe_u32 v{t1}, v{LANE}, 1, 1
    v_lshl_or_b32 v{t0}, v{t1}, 2, v{t0}         ; sigma
    s_lshl_b32 s{sT0}, s{sHH}, 1
    s_add_u32 s{sT0}, s{sT0}, s{sPG}
    s_mul_i32 s{sT0}, s{sT0}, {96*128}
    v_lshl_add_u32 v{t1}, v{c32}, 7, s{sT0}
    v_mul_u32_u24 v{t2}, 5, v{hf}
    ''')
    for i in range(8):
        if i < 5:
            a(f'v_add_u32 v{t3}, {i}, v{t2}')
        else:
            a(f'v_add_u32 v{t3}, {(12, 14, 10)[i-5]}, v{hf}')
        a(f'v_xor_b32 v{t3}, v{t3}, v{t0}\nv_lshl_add_u32 v{AE+i}, v{t3}, 3, v{t1}')
    a(f'''
    v_and_b32 v{t0}, 1, v{r4}
    v_lshrrev_b32 v{t1}, 1, v{r4}
    v_lshl_or_b32 v{t0}, v{t1}, 2, v{t0}
    v_lshl_or_b32 v{t0}, v{fh}, 3, v{t0}
    v_xor_b32 v{t0}, v{t0}, v{cq}
    v_lshl_add_u32 v{t1}, v{q4}, 3, v{r4}
    s_mul_i32 s{sT0}, s{sHH}, {192*128}
    v_lshl_add_u32 v{t1}, v{t1}, 7, s{sT0}
    v_lshl_add_u32 v{AKV}, v{t0}, 3, v{t1}
    v_xor_b32 v{AKV+2}, 32, v{AKV}
    v_xor_b32 v{AKV+4}, 64, v{AKV}
    s_lshl_b32 s{sT0}, s{sPG}, 5
    s_xor_b32 s{sT0}, s{sT0}, 0x60
    v_xor_b32 v{AKV+6}, s{sT0}, v{AKV}
    ''')
    for i in range(4):
        a(f'v_xor_b32 v{AKV+2*i+1}, 16, v{AKV+2*i}')
    a(f'''
    v_bfe_u32 v{t0}, v{LANE}, 2, 1
    v_bfe_u32 v{t1}, v{LANE}, 3, 1
    v_lshl_add_u32 v{t1}, v{t0}, 1, v{t1}
    v_lshl_add_u32 v{t1}, v{t1}, 2, v{cq}
    v_add_u32 v{t2}, 80, v{cq}
    v_cmp_le_u32 vcc, 16, v{c32}
    v_cndmask_b32 v{t1}, v{t1}, v{t2}, vcc
    v_cndmask_b32 v{t0}, 8, 7, vcc
    v_mov_b32 v{t2}, 84
    v_cmp_le_u32 vcc, 24, v{c32}
    v_cndmask_b32 v{t1}, v{t1}, v{t2}, vcc
    s_mul_i32 s{sT0}, s{sHH}, 1920
    s_add_u32 s{sT0}, s{sT0}, {KVI}
    v_lshl_add_u32 v{t1}, v{t1}, 4, s{sT0}
    ''')
    oq = lambda ph: ph & 3 if ph < 8 else 4
    op = lambda ph: 8 * (ph >> 2) if ph < 8 else 8 * (ph - 8)
    for t in range(5):
        a(f'''v_cndmask_b32 v{t2}, {oq(t)}, {oq(5+t)}, {sr(sHM,2)}
        v_cndmask_b32 v{t3}, {op(t)}, {op(5+t)}, {sr(sHM,2)}
        v_lshl_add_u32 v{t2}, v{t2}, v{t0}, v{t3}
        v_add_u32 v{AO+t}, v{t1}, v{t2}''')
    a(f'''
    s_lshl_b32 s{sT0}, s{sRT}, 4
    s_add_u32 s{sT0}, s{sT0}, s{sP}
    s_lshl_b32 s{sT0}, s{sT0}, 12
    s_cmp_eq_u32 s{S_WAVE}, 3
    s_cselect_b32 s{sHN}, s{sT0}, {BIG}
    s_mul_i32 s{sT1}, s{sHH}, 1920
    s_add_u32 s{sT0}, s{sT0}, s{sT1}
    s_mul_i32 s{sT1}, s{sPG}, {1280 - 128}
    s_add_u32 s{sT0}, s{sT0}, s{sT1}
    v_lshl_add_u32 v{t1}, v{c16}, 4, s{sT0}
    s_lshl_b32 s{sT1}, s{sPG}, 3
    v_mov_b32 v{t3}, {BIG}
    v_cmp_gt_u32 vcc, s{sT1}, v{c16}
    v_cndmask_b32 v{t1}, v{t1}, v{t3}, vcc
    s_sub_u32 s{sT1}, 8, s{sPG}
    v_lshl_add_u32 v{AS}, v{q4}, s{sT1}, v{t1}
    s_lshl_b32 s{sT1}, 4, s{sT1}
    v_add_u32 v{t2}, s{sT1}, v{t1}
    v_cmp_gt_u32 {sr(sQ0,2)}, 16, v{LANE}
    v_cndmask_b32 v{AS+1}, v{t3}, v{t2}, {sr(sQ0,2)}
    s_mul_i32 s{sT0}, s{sRT}, 6
    s_mul_i32 s{sT1}, s{sPG}, 3
    s_add_u32 s{sT0}, s{sT0}, s{sT1}
    ''')
    for t in range(3):
        a(f'''s_cmp_lt_u32 s{sT0}, {64 - t}
        s_cselect_b32 s{sT1}, 0x3f80, 0
        v_mov_b32 v{ONE+t}, s{sT1}''')
    a(f'''
    s_lshl_b32 s{sT0}, s{sT0}, 5
    s_lshl_b32 s{sT1}, s{sPQ}, 1
    s_add_u32 s{sT0}, s{sT0}, s{sT1}
    s_add_u32 s{sT0}, s{sT0}, s{sHH}
    s_mul_i32 s{sT0}, s{sT0}, 1280
    v_lshl_add_u32 v{AS+2}, v{LANE}, 4, s{sT0}
    v_cndmask_b32 v{AS+3}, v{t3}, v{AS+2}, {sr(sQ0,2)}
    ''')
    a(f'''
    v_lshrrev_b32 v{t0}, 1, v{cq}
    v_lshl_add_u32 v{t0}, v{fh}, 1, v{t0}        ; a
    v_mul_u32_u24 v{t1}, 40, v{r4}
    v_add_u32 v{t1}, s{sT2}, v{t1}
    v_lshl_add_u32 v{t0}, v{t0}, 3, v{t1}
    v_mul_u32_u24 v{t3}, 160, v{hf}
    v_add_u32 v{t2}, v{t0}, v{t3}
    v_add_u32 v{t3}, v{t1}, v{t3}
    s_waitcnt vmcnt(0)
    ''')
    for w in range(2):
        for o in range(2):
            b = WP + 16 * w + 8 * o
            for t in range(2):
                a(f'ds_read_b64_tr_b16 {vr(b+2*t,2)}, v{t3 if o else t2} offset:{1024*w + 320*t + 32*o}')
            a(f'ds_read_b64_tr_b16 {vr(b+4,2)}, v{t1 if o else t0} offset:{1024*w + 640 + 32*o}')
    a(f'''
    v_bfe_u32 v29, v{LANE}, 2, 1
    v_mov_b32 v30, 0x80008000
    v_mul_lo_u32 v29, v29, v30
    ''')
    for w in range(2):
        for o in range(2):
            b = WP + 16 * w + 8 * o
            for i in range(6):
                a(f'v_xor_b32 v{b+i}, v29, v{b+i}')
            for i in (4, 5):
                a(f'v_cndmask_b32 v{b+i}, 0, v{b+i}, {sr(sHM,2)}' if w else f'v_cndmask_b32 v{b+i}, v{b+i}, 0, {sr(sHM,2)}')
            a(f'v_mov_b32 v{b+6}, 0\nv_mov_b32 v{b+7}, 0')
    a(f's_mov_b32 s{sC}, {f32(LOG2E)}\ns_mov_b32 s{sO1}, 40960\ns_mov_b32 s{sO2}, 81920')
    a(f'''
    v_mov_b32 v31, 0
    ''')
    fill = [l for l in a.lines if not l.startswith(';')]
    a = main_a
    if opts.get('m16hack'):
        a([f'v_mov_b32 v{ACC+i}, 0' for i in range(96)])

    def reads(ks):
        b = FR + 20 * (ks & 1)
        w = [f'ds_read_b64_tr_b16 {vr(b+12+4*j+2*t,2)}, v{AW+j} offset:{(16*ks+4*t)*128}' for j in range(2) for t in range(2)]
        x = [f'ds_read_b128 {vr(b+4*t,4)}, v{AX+ks} offset:{4096*t}' for t in range(3)]
        if opts.get('noread'):
            return ['s_nop 0'] * 7
        return [w[0], w[1], x[0], w[2], w[3], x[1], x[2]]

    def mfmas(ks, first=False):
        b = FR + 20 * (ks & 1)
        if opts.get('nomfma'):
            return ['s_nop 0'] * 6
        if opts.get('m16hack'):
            o = 8 * (ks & 1)
            return [f'{MF16} {vr(ACC+32*t+16*j+o,4)}, {vr(b+12+4*j,4)}, {vr(b+4*t,4)}, {vr(ACC+32*t+16*j+o,4)}\n'
                    f'{MF16} {vr(ACC+32*t+16*j+o+4,4)}, {vr(b+12+4*(1-j),4)}, {vr(b+4*((t+1)%3),4)}, {vr(ACC+32*t+16*j+o+4,4)}' for t in range(3) for j in range(2)]
        return [f'{MF32} {vr(ACC+32*t+16*j,16)}, {vr(b+12+4*j,4)}, {vr(b+4*t,4)}, {"0" if first else vr(ACC+32*t+16*j,16)}' for t in range(3) for j in range(2)]
    for ch in range(10):
        a('s_barrier')
        if ch in (0, 9):
            stamp(a, 7 if ch else 0)
        if opts.get('chunks'):
            a(f'{"s_memtime" if opts.get("cyc") else "s_memrealtime"} s[98:99]\ns_waitcnt lgkmcnt(0)\nv_writelane_b32 v255, s98, {16+ch}')
        for ks in range(4):
            rd, mm = reads(ks), mfmas(ks - 1, ch == 0 and ks == 1)
            if ch == 0 and ks == 0:
                a(rd)
                continue
            if opts.get('nofill'):
                a(fill); fill.clear()
            take = lambda n: [fill.pop(0) for _ in range(min(n, len(fill)))]
            if ks < 3:
                a([mm[0], rd[0], rd[1], mm[1], rd[2], rd[3], mm[2], rd[4], rd[5], mm[3], rd[6]] + take(2) + [mm[4]] + take(4) + [mm[5]] + take(3))
            else:
                dl = SLOT if (ch + 1) % 3 != 2 else -2 * SLOT
                ex = [f'v_add_u32 v{AX+i}, {dl}, v{AX+i}' for i in range(6)] if ch < 9 else []
                a([mm[0], rd[0], rd[1], rd[2], mm[1], rd[3], rd[4], rd[5], mm[2], rd[6], mm[3]] + ex[:3] + [mm[4]] + ex[3:] + [mm[5]])
        a('s_waitcnt lgkmcnt(0)')
        assert ch < 8 or not fill, len(fill)
    a('s_barrier')
    a(mfmas(3))
    stamp(a, 1)
    KM, VM, LF, QM = (lambda t, o=o: PK + 16 * t + o for o in (0, 4, 8, 12))

    def pack(t):
        b = ACC + 32 * t
        o = [f'v_cvt_pk_bf16_f32 v{PK+16*t+i}, v{b+2*i}, v{b+2*i+1}' for i in range(16)]
        o += [f'v_cndmask_b32 v{LF(t)+2}, v{LF(t)+2}, v{ONE+t}, {sr(sHM,2)}', f'v_cndmask_b32 v{LF(t)+3}, v{LF(t)+3}, 0, {sr(sHM,2)}']
        return o

    def vwr(t):
        return [f'ds_write_b64 v{AE+5}, {vr(VM(t),2)} offset:{4096*t}', f'ds_write_b64 v{AE+6}, {vr(VM(t)+2,2)} offset:{4096*t}',
                f'ds_write_b64 v{AE+7}, {vr(LF(t)+2,2)} offset:{4096*t}']

    def wphi(t, w):
        b = ACC + 32 * t
        m = QM(t) if w else KM(t)
        o = []
        for s in range(2):
            for j in range(2):
                d = vr(b + 16 * j, 16)
                o.append(f'{MF32} {d}, {vr(WP+16*w+8*j+4*s,4)}, {vr(LF(t) if s else m,4)}, {d if s else "0"}')
        return o

    def softmax(t, ph):
        b = ACC + 32 * t
        m, m2, s, s2 = b + 20, b + 21, b + 22, b + 24
        o = [f'v_max3_f32 v{m}, v{b}, v{b+1}, v{b+2}', f'v_max3_f32 v{m2}, v{b+3}, v{b+4}, v{b+5}']
        for i in range(6, 20, 2):
            x = m if i % 4 == 2 else m2
            o.append(f'v_max3_f32 v{x}, v{x}, v{b+i}, v{b+i+1}')
        o += [f'v_max_f32 v{m}, v{m}, v{m2}', f'v_mul_f32 v{m}, s{sC}, v{m}']
        fm = [f'v_pk_fma_f32 {vr(b+2*i,2)}, {vr(b+2*i,2)}, {sr(sC,2)}, {vr(m,2)} op_sel_hi:[1,0,0] neg_lo:[0,0,1] neg_hi:[0,0,1]' for i in range(10)]
        ex = [f'v_exp_f32 v{b+i}, v{b+i}' for i in range(20)]
        ad = {1: f'v_pk_add_f32 {vr(s,2)}, {vr(b,2)}, {vr(b+2,2)}'}
        for i in range(2, 10):
            ad[i] = f'v_pk_add_f32 {vr(s,2)}, {vr(s,2)}, {vr(b+2*i,2)}'
        o += fm[:2]
        for i in range(10):
            o += ex[2 * i:2 * i + 2]
            if i + 2 < 10:
                o.append(fm[i + 2])
            if i - 1 in ad:
                o.append(ad[i - 1])
        o += [ad[9], f'v_add_f32 v{s}, v{s}, v{s+1}', f'v_rcp_f32 v{s}, v{s}']
        tail = []
        for i in range(10):
            tail.append(f'v_pk_mul_f32 {vr(b+2*i,2)}, {vr(b+2*i,2)}, {vr(s,2)} op_sel_hi:[1,0]')
        cv = [f'v_cvt_pk_bf16_f32 v{ph+i}, v{b+2*i}, v{b+2*i+1}' for i in range(10)]
        return o, tail, cv
    a(pack(0))
    a(interleave(wphi(0, 0), pack(1)))
    a(interleave(wphi(1, 0), pack(2)))
    for t in range(3):
        ph = FR + 12 * t
        o, tail, cv = softmax(t, ph)
        if t == 0:
            a(interleave(wphi(2, 0), o, ratio=5))
        else:
            a(o)
        a(vwr(t))
        a(tail[:2])
        for i in range(10):
            if i + 2 < 10:
                a(tail[i + 2])
            a(cv[i])
            if i & 1:
                a(f'ds_write_b64 v{AE+i//2}, {vr(ph+i-1,2)} offset:{4096*t}')
    a('s_waitcnt lgkmcnt(0)\ns_barrier')
    stamp(a, 2)
    KB = ACC

    def kvrd(ks):
        return [f'ds_read_b64_tr_b16 {vr(KB+16*ks+4*j+2*t,2)}, v{AKV+2*j+t} offset:{(32*ks+4*t)*128}' for j in (3, 0, 1, 2) for t in range(2)]
    a(kvrd(0) + kvrd(1)[:6])
    pend = kvrd(1)[6:] + kvrd(2) + kvrd(3) + kvrd(4) + kvrd(5)
    for ks in range(6):
        for j in range(3):
            d = vr(KM(j), 4)
            a(f'{MF16} {d}, {vr(KB+16*ks+4*j,4)}, {vr(KB+16*ks+12,4)}, {d if ks else "0"}')
            a(pend[:3]); pend = pend[3:]
    qm = [wphi(t, 1) for t in range(3)]
    a(qm[0][:1])
    for j in range(3):
        for i in range(2):
            r = FR + 2 * j + i
            a(f'v_cvt_pk_bf16_f32 v{r}, v{KM(j)+2*i}, v{KM(j)+2*i+1}\nv_min_u32 v{r}, -2, v{r}')
        if j == 1:
            a(f'buffer_store_dwordx4 {vr(FR,4)}, v{AS}, {sr(SRK,4)}, 0 offen sc1')
    a(f'v_permlane16_swap_b32 v{FR+4}, v{FR+6}\nv_permlane16_swap_b32 v{FR+5}, v{FR+7}')
    a(f'buffer_store_dwordx4 {vr(FR+4,4)}, v{AS+1}, {sr(SRK,4)}, 0 offen sc1')
    a(f's_mov_b64 exec, 1\nbuffer_store_dword v31, v31, {sr(SRK,4)}, s{sHN} offen offset:3840 sc1\ns_mov_b64 exec, -1')
    stamp(a, 3)
    if opts.get('ack'):
        a('s_waitcnt vmcnt(0)')
        stamp(a, 0)
    a('s_setprio 0\ns_barrier')
    a(qm[0][1:] + qm[1])
    for t in range(3):
        ph = FR + 12 * t
        o, tail, cv = softmax(t, ph)
        if t == 0:
            a(interleave(qm[2], o, ratio=5))
        else:
            a(o)
        a(tail[:2])
        for i in range(10):
            if i + 2 < 10:
                a(tail[i + 2])
            a(cv[i])
        a(f'v_mov_b32 v{ph+10}, 0\nv_mov_b32 v{ph+11}, 0')
    KA = WP
    a(f'''
    v_mov_b32 v{KA+10}, 0
    v_mov_b32 v{KA+11}, 0
    s_mov_b32 s{sEPS}, {f32(1e-6)}
    s_cmp_ge_u32 s{S_IDX}, 10
    s_cselect_b32 s{sT0}, 10, 0
    s_cselect_b32 s{sT1}, 4, 0
    s_sub_u32 s{sT0}, s{S_IDX}, s{sT0}
    s_lshl_b32 s{sT2}, s{S_XCD}, 3
    s_add_u32 s{sT2}, s{sT2}, s{sT1}
    s_add_u32 s{sT2}, s{sT2}, s{S_WAVE}
    s_mul_i32 s{sOB}, s{sT2}, 40960
    s_mul_i32 s{sT2}, s{sT2}, {32*2560}
    s_lshl_b32 s{sT0}, s{sT0}, 7
    s_add_u32 s{sT2}, s{sT2}, s{sT0}
    v_lshlrev_b32 v2, 4, v{LANE}
    v_and_b32 v14, 31, v{LANE}
    v_lshrrev_b32 v15, 5, v{LANE}
    v_mul_u32_u24 v16, 2560, v15
    v_and_b32 v17, 15, v{LANE}
    v_lshl_add_u32 v16, v17, 4, v16
    v_bfe_u32 v17, v{LANE}, 4, 1
    v_lshl_add_u32 v3, v17, 3, v16
    s_mul_i32 s{sT0}, s{S_WAVE}, {32*144}
    v_mul_u32_u24 v16, 144, v14
    v_lshl_add_u32 v16, v15, 5, v16
    v_add_u32 v8, s{sT0}, v16
    v_lshrrev_b32 v16, 3, v{LANE}
    v_and_b32 v17, 7, v{LANE}
    v_lshlrev_b32 v17, 4, v17
    v_mul_u32_u24 v18, 144, v16
    v_add3_u32 v9, v17, v18, s{sT0}
    v_mul_u32_u24 v18, 2560, v16
    v_add3_u32 v10, v17, v18, s{sT2}
    v_add_u32 v11, {8*2560}, v10
    v_add_u32 v12, {16*2560}, v10
    v_add_u32 v13, {24*2560}, v10
    v_bfe_u32 v14, v{LANE}, 2, 2                 ; r
    v_and_b32 v16, 1, v{LANE}
    v_bfe_u32 v17, v{LANE}, 4, 1
    v_lshl_add_u32 v16, v16, 1, v17
    v_bfe_u32 v17, v{LANE}, 1, 1
    v_lshl_add_u32 v16, v16, 1, v17
    v_bfe_u32 v17, v{LANE}, 3, 1
    v_lshl_add_u32 v16, v17, 3, v16
    v_lshlrev_b32 v16, 3, v16
    v_lshl_add_u32 v16, v14, 7, v16
    s_and_b32 s{sT0}, s{S_IDX}, {opts.get('rot', 0)}
    s_mul_i32 s{sT1}, s{sT0}, 20480
    s_add_u32 s{sT1}, s{sT1}, {WOB}
    v_add_u32 v16, s{sT1}, v16
    v_lshl_add_u32 v4, v15, 10, v16
    v_xor_b32 v5, 64, v4
    v_mul_u32_u24 v15, {40*128}, v15
    v_add_u32 v6, v15, v16
    v_xor_b32 v7, 64, v6
    ''')
    sG, sD = [72 + g for g in range(8)], [44, 45, 46]
    for p in range(4):
        a(f's_mul_i32 s{sG[2*p]}, s{sT0}, 10240\ns_add_u32 s{sG[2*p]}, s{sG[2*p]}, s{sOB}\ns_add_u32 s{sG[2*p+1]}, s{sG[2*p]}, 5120')
        if p < 3:
            a(f's_mov_b32 s{sD[p]}, 20480\ns_add_u32 s{sT0}, s{sT0}, 1\ns_and_b32 s{sT0}, s{sT0}, 3\ns_cselect_b32 s{sD[p]}, s{sD[p]}, {-3*20480}')
    a(f'''
    s_setprio 2
    s_waitcnt lgkmcnt(0)
    s_barrier
    ''')
    stamp(a, 4)
    for t in range(5):
        a(f'ds_read_b64 {vr(KA+2*t,2)}, v{AO+t}')
    for t in range(3):
        for s in range(3):
            d = vr(ACC + 16 * t, 16)
            a(f'{MF32} {d}, {vr(KA+4*s,4)}, {vr(FR+12*t+4*s,4)}, {d if s else "0"}')
    for t in range(3):
        b = ACC + 16 * t
        o = PK + 8 * t
        a(f'v_add_f32 v{b+12}, s{sEPS}, v{b+12}\nv_rcp_f32 v{b+12}, v{b+12}')
        so = ('0', f's{sO1}', f's{sO2}')[t]
        for i in range(6):
            a(f'v_pk_mul_f32 {vr(b+2*i,2)}, {vr(b+2*i,2)}, {vr(b+12,2)} op_sel_hi:[1,0]')
        for i in range(6):
            a(f'v_cvt_pk_bf16_f32 v{o+i}, v{b+2*i}, v{b+2*i+1}\nv_min_u32 v{o+i}, -2, v{o+i}')
            if i == 3:
                a(f'buffer_store_dwordx4 {vr(o,4)}, v{AS+2}, {sr(SRO,4)}, {so} offen sc1')
        a(f'v_permlane16_swap_b32 v{o+4}, v{o+6}\nv_permlane16_swap_b32 v{o+5}, v{o+7}')
        a(f'buffer_store_dwordx4 {vr(o+4,4)}, v{AS+3}, {sr(SRO,4)}, {so} offen offset:1024 sc1')
    stamp(a, 5)
    a(f'''
    s_cmp_ge_u32 s{S_IDX}, 20
    s_cbranch_scc1 L_c_done
    s_mov_b32 s{sCNT}, 0
    ''')
    AC, WF, OF, NR = 32, 64, 112, 4

    def old(g):
        so = f's{sG[g]}'
        b = OF + 20 * (g % NR)
        return [f'buffer_load_dwordx4 {vr(b+4*h,4)}, v2, {sr(SRO,4)}, {so} offen offset:{1280*h} sc1' for h in range(4)] + \
               [f'buffer_load_dwordx2 {vr(b+16+2*t,2)}, v3, {sr(SRO,4)}, {so} offen offset:{1024+1280*t} sc1' for t in range(2)]

    def ochk(g):
        b = OF + 20 * (g % NR)
        return [f'v_max_u32 v14, v{b}, v{b+1}'] + [f'v_max3_u32 v14, v14, v{b+2*i}, v{b+2*i+1}' for i in range(1, 10)] + ['v_cmp_eq_u32 vcc, -1, v14']

    def wrd(k):
        g, h = divmod(k, 5)
        b = WF + 8 * (k % 6)
        o = (g % 2) * 80 * 128
        r = []
        if k in (10, 20, 30):
            r += [f'v_add_u32 v{4+i}, s{sD[k//10-1]}, v{4+i}' for i in range(4)]
        for j in range(2):
            for t in range(2):
                if h < 4:
                    r.append(f'ds_read_b64_tr_b16 {vr(b+4*j+2*t,2)}, v{4+j} offset:{o + (20*h+4*t)*128}')
                else:
                    r.append(f'ds_read_b64_tr_b16 {vr(b+4*j+2*t,2)}, v{6+j} offset:{o + (20*t+16)*128}')
        return r
    AH = opts.get('o_ahead', 2)
    LK = 3
    for k in range(LK):
        a(wrd(k))
    a(f's_waitcnt vmcnt({opts.get("o_wait", 0)})')
    if opts.get('ack'):
        stamp(a, 7)
    for g in range(AH):
        a(old(g))
    a(ochk(0))
    for g in range(8):
        a(f's_cbranch_vccnz L_c_fail{g}\nL_c_ok{g}:')
        if g == 0:
            stamp(a, 7 if opts.get('st0') else 99)
        late.append(f';@reset\nL_c_fail{g}:')
        for gg in range(g, min(8, g + AH)):
            late.extend(old(gg))
        late.extend(ochk(g))
        late.append(f'''s_add_u32 s{sCNT}, s{sCNT}, 1
        s_cmp_ge_u32 s{sCNT}, {CAP}
        s_cbranch_scc1 L_c_ok{g}
        s_cbranch_vccnz L_c_fail{g}
        s_branch L_c_ok{g}''')
        ld = old(g + AH) if g + AH < 8 else []
        ck = ochk(g + 1) if g < 7 else []
        for h in range(5):
            k = 5 * g + h
            w = wrd(k + LK) if k + LK < 40 else []
            for j in range(2):
                d = vr(AC + 16 * j, 16)
                a(f'{MF32} {d}, {vr(WF+8*(k%6)+4*j,4)}, {vr(OF+20*(g%NR)+4*h,4)}, {d if k else "0"}')
                a(w[:len(w) - 2] if j == 0 else w[len(w) - 2:])
                n = 2 * h + j
                if n < 6:
                    a(ld[n:n + 1])
                else:
                    a(ck[3 * (n - 6):3 * (n - 5)])
    stamp(a, 0 if opts.get('st0') else 99)
    for j in range(2):
        for i in range(8):
            a(f'v_cvt_pk_bf16_f32 v{WF+8*j+i}, v{AC+16*j+2*i}, v{AC+16*j+2*i+1}')
            if i % 4 == 3:
                a(f'ds_write_b128 v8, {vr(WF+8*j+i-3,4)} offset:{64*j + (i//4)*16}')
    for i in range(4):
        a(f'ds_read_b128 {vr(WF+16+4*i,4)}, v9 offset:{i*8*144}')
    for i in range(4):
        a(f'global_store_dwordx4 v{10+i}, {vr(WF+16+4*i,4)}, {sr(S_OUT,2)}')
    a('L_c_done:')
    stamp(a, 6, final=True)
```

```python
from asmlib import *
import struct


def f32(x):
    return '0x%08x' % struct.unpack('<I', struct.pack('<f', x))[0]


LOG2E = 1.4426950408889634
ROWS = 2064
XBASE = 32 * ROWS
XM = 57344
UBASE = 57 * ROWS
USTR = 4640
BAND = UBASE + 8 * USTR
TSTR = 8192
TQ, TG, TY = 1216, 2432, 3456
G4O = TG - 32 * 4
G8O = TG + 132 * 4 - 50 * 4
assert BAND + 7 * 1024 <= 163840

S_WAVE = 3
S_U, S_LOGA, S_AIM, S_CRE, S_CIM, S_LOGDT, S_DSK, S_OUT, S_DBG, S_WS = 16, 18, 20, 22, 24, 26, 28, 30, 32, 34


def cmul(d, x, y, t=None):
    if t is None:
        t = d
        assert d != x and d != y
    return [f'v_pk_mul_f32 {vr(t,2)}, {vr(x,2)}, {vr(y,2)} op_sel:[0,0] op_sel_hi:[0,1]',
            f'v_pk_fma_f32 {vr(d,2)}, {vr(x,2)}, {vr(y,2)}, {vr(t,2)} op_sel:[1,1,0] op_sel_hi:[1,0,1] neg_lo:[0,1,0]']


def zipl(*ls):
    out = []
    for i in range(max(map(len, ls))):
        for l in ls:
            if i < len(l):
                out.append(l[i])
    return out


def gen_b(a, S_BIDX, hooks):
    LANE = 1
    PAR = 2
    UD = 16
    sD, sT0, sT1, sT2, sLD, sDS, sUL = 40, 41, 42, 43, 44, 45, 46
    SRDU = 48
    a(f'''
    s_lshl_b32 s{sD}, s{S_BIDX}, 3
    s_add_u32 s{sD}, s{sD}, s{S_WAVE}            ; channel
    s_mul_i32 s{sT0}, s{sD}, 384
    v_mul_u32_u24 v14, 6, v{LANE}
    v_and_b32 v14, -4, v14
    v_add_u32 v14, s{sT0}, v14
    s_lshr_b32 s{sT1}, s{sD}, 1
    s_lshl_b32 s{sT1}, s{sT1}, 2
    s_add_u32 s{sT2}, s{sT1}, {2047*1280}
    v_mul_u32_u24 v15, {4*1280}, v0
    ''')
    hooks['before_params'](a)
    a('s_waitcnt lgkmcnt(0)')
    for k, sp in enumerate((S_LOGA, S_AIM, S_CRE, S_CIM)):
        a(f'global_load_dwordx2 {vr(UD+2*k,2)}, v14, {sr(sp,2)}')
    a(f'''
    s_load_dword s{sLD}, {sr(S_LOGDT,2)}, s{sT1}
    s_load_dword s{sDS}, {sr(S_DSK,2)}, s{sT1}
    s_load_dword s{sUL}, {sr(S_U,2)}, s{sT2}
    s_mov_b32 s{SRDU}, s{S_U}
    s_mov_b32 s{SRDU+1}, s{S_U+1}
    s_mov_b32 s{SRDU+2}, {2048*1280}
    s_mov_b32 s{SRDU+3}, 0x20000
    s_lshl_b32 s{sT0}, s{S_BIDX}, 4
    v_subrev_u32 v14, 1280, v15
    ''')
    hooks['after_params'](a)
    sUO = 47
    a(f's_mov_b32 s{sUO}, s{sT0}')
    uld = [
        f'buffer_load_dwordx4 {vr(UD,4)}, v14, {sr(SRDU,4)}, s{sUO} offen',
        f'buffer_load_dwordx4 {vr(UD+4,4)}, v15, {sr(SRDU,4)}, s{sUO} offen',
        f'buffer_load_dwordx4 {vr(UD+8,4)}, v15, {sr(SRDU,4)}, s{sUO} offen offset:1280',
        f'buffer_load_dwordx4 {vr(UD+12,4)}, v15, {sr(SRDU,4)}, s{sUO} offen offset:2560']
    hooks['after_u'](a)
    bt = [(off + 21 - h, 2 * h + 1) for off, h in ((-20, 1), (-16, 2), (-12, 1), (-8, 2), (-16, 4), (-8, 3))] + [(1, 7), (0, 1)]
    lo_pack = sum(l << (4 * i) for i, (l, w) in enumerate(bt))
    wd_pack = sum(w << (4 * i) for i, (l, w) in enumerate(bt))
    I16, QD = 32, 33
    a(f'''
    v_and_b32 v{I16}, 15, v{LANE}
    v_lshrrev_b32 v{QD}, 4, v{LANE}
    s_lshl_b32 s{sT1}, s{S_WAVE}, 2
    s_lshr_b32 s{sT2}, {hex(wd_pack)}, s{sT1}
    s_and_b32 s{sT2}, s{sT2}, 15
    s_bfm_b32 s{sT2}, s{sT2}, 0                   ; (1<<wid)-1
    s_lshr_b32 s{sT1}, {hex(lo_pack)}, s{sT1}
    s_and_b32 s{sT1}, s{sT1}, 15
    s_lshl_b32 s{sT2}, s{sT2}, s{sT1}
    v_lshlrev_b32 v34, v{I16}, s{sT2}
    v_lshlrev_b32 v35, 3, v{QD}
    v_lshrrev_b32 v34, v35, v34
    s_movk_i32 s{sT1}, 0x3f80
    s_cmp_eq_u32 s{S_WAVE}, 6
    s_cselect_b32 s{sT1}, 0xffff, s{sT1}
    s_mov_b32 s{sT2}, 0x10001
    ''')
    for r in range(4):
        a(f'''v_bfe_u32 v{36+r}, v34, {2*r}, 2
        v_lshl_or_b32 v{36+r}, v{36+r}, 15, v{36+r}
        v_and_b32 v{36+r}, s{sT2}, v{36+r}
        v_mul_u32_u24 v{36+r}, s{sT1}, v{36+r}''')
    a(f'''
    v_lshlrev_b32 v35, 4, v0
    v_add_u32 v35, {BAND}, v35
    s_cmp_eq_u32 s{S_WAVE}, 7
    s_cbranch_scc1 L_b_noband
    ds_write_b128 v35, v[36:39]
    L_b_noband:
    ''')
    AX, AY = 34, 35
    sM0Y, sM0X = 52, 53
    a(f'''
    v_and_b32 v36, 31, v{LANE}
    v_lshrrev_b32 v37, 5, v{LANE}
    s_lshl_b32 s{sM0Y}, s{S_WAVE}, 8
    s_add_u32 s{sM0X}, s{sM0Y}, {XM}
    v_lshl_add_u32 v37, v37, 4, s{sM0Y}
    v_mov_b32 v39, {ROWS}
    v_mad_u32_u24 v{AY}, v36, v39, v37
    v_cmp_eq_u32 vcc, 5, v36
    v_cndmask_b32 v38, v36, 4, vcc
    v_or_b32 v36, 1, v36
    v_cmp_eq_u32 vcc, 13, v36
    v_cndmask_b32 v38, v38, 7, vcc
    v_mad_u32_u24 v{AX}, v38, v39, v37
    v_add_u32 v{AX}, {XBASE}, v{AX}
    s_mov_b32 m0, s{sM0X}
    v_mov_b32 v36, 0x3f80
    ds_write_addtid_b32 v36 offset:{XBASE-XM}
    ''')
    a(f'''
    s_mul_i32 s{sT1}, s{S_WAVE}, {USTR}
    s_add_u32 s{sT1}, s{sT1}, {UBASE}
    v_mov_b32 v36, 0
    v_mov_b32 v37, 0
    v_lshl_add_u32 v38, v{LANE}, 3, s{sT1}
    ds_write_b64 v38, v[36:37]
    v_cmp_ne_u32 vcc, 0, v{LANE}
    v_mov_b32 v39, {512*8}
    v_cndmask_b32 v39, 0, v39, vcc
    v_add_u32 v38, v38, v39
    s_waitcnt lgkmcnt(0)
    s_bitcmp1_b32 s{sD}, 0
    s_cselect_b32 s{sT1}, 16, 0
    s_lshr_b32 s{sUL}, s{sUL}, s{sT1}
    s_and_b32 s{sUL}, s{sUL}, 0xffff
    s_lshr_b32 s{sLD}, s{sLD}, s{sT1}
    s_lshl_b32 s{sLD}, s{sLD}, 16
    s_lshr_b32 s{sDS}, s{sDS}, s{sT1}
    s_lshl_b32 s{sDS}, s{sDS}, 16
    v_writelane_b32 v36, s{sUL}, 1
    s_mov_b64 exec, 15
    ds_write_b64 v38, v[36:37] offset:512
    s_mov_b64 exec, -1
    ''')
    sDT, sC2, sL2E, sI2P = 54, 56, 58, 59
    l2e_hi = struct.unpack('<f', struct.pack('<f', LOG2E))[0]
    a(f'''
    s_mov_b32 s{sL2E}, {f32(LOG2E)}
    s_mov_b32 s{sI2P}, {f32(0.15915494309189535)}
    v_mov_b32 v36, s{sLD}
    v_mul_f32 v37, s{sL2E}, v36
    v_fma_f32 v38, v36, s{sL2E}, -v37
    v_fmac_f32 v38, {f32(LOG2E - l2e_hi)}, v36
    v_exp_f32 v37, v37
    v_mul_f32 v38, {f32(0.6931471805599453)}, v38
    v_fma_f32 v37, v37, v38, v37
    v_cvt_pk_bf16_f32 v37, v37, v37
    v_lshlrev_b32 v37, 16, v37
    v_add_f32 v38, v37, v37
    v_readfirstlane_b32 s{sDT}, v37
    v_readfirstlane_b32 s{sC2}, v38
    ''')
    ACC = 40
    W = {k: 56 + 2 * i for i, k in enumerate((1, 2, 3, 4, 5, 6, 7, 8, 64, 256, 512, 768, 1032))}
    Y0 = 82
    T0 = 98
    CV = 114
    FR = 124
    sCNT = 60
    for i in range(16):
        a(f'v_mov_b32 v{ACC+i}, 0')
    a(f's_mov_b32 s{sCNT}, 3')
    hooks['pre_loop'](a)
    a(f'v_and_b32 v36, 1, v{LANE}\nv_lshlrev_b32 v36, 4, v36')
    hooks['wait_params'](a)
    for k in range(4):
        r = UD + 2 * k
        a(f'''v_alignbit_b32 v{r}, v{r+1}, v{r}, v36
        v_lshrrev_b32 v{r+1}, v36, v{r+1}
        v_lshlrev_b32 v{PAR+k}, 16, v{r}
        v_and_b32 v{PAR+4+k}, 0xffff0000, v{r}
        v_lshlrev_b32 v{PAR+8+k}, 16, v{r+1}''')
    hooks['st'](a, 0)
    hooks['out_of_line'](a)
    a('L_b_kgen:')
    hooks['slot'](a, 0)
    cvn = [0]

    def put(val, slot, isx):
        r = CV + cvn[0] % 8
        cvn[0] += 1
        off = (XBASE - XM + slot * ROWS) if isx else slot * ROWS
        return [f'v_cvt_pk_bf16_f32 v{r}, v{val}, {"" if isx else "-"}v{val+1}', f'ds_write_addtid_b32 v{r} offset:{off}']
    al, be = T0, T0 + 1
    a(f'''
    v_mul_f32 v{PAR}, s{sL2E}, v{PAR}
    v_mul_f32 v{be}, s{sDT}, v{PAR+1}
    v_exp_f32 v{PAR}, v{PAR}
    v_mul_f32 v{be}, s{sI2P}, v{be}
    v_cvt_pk_bf16_f32 v{PAR}, v{PAR}, v{PAR}
    v_lshlrev_b32 v{PAR}, 16, v{PAR}
    v_fract_f32 v{T0+2}, v{be}
    v_mul_f32 v{al}, s{sDT}, v{PAR}
    v_mul_f32 v{T0+3}, 0x42800000, v{be}
    v_mul_f32 v{al}, s{sL2E}, v{al}
    v_fract_f32 v{T0+3}, v{T0+3}
    v_mul_f32 v{T0+5}, 0x42800000, v{al}
    v_cos_f32 v{W[1]}, v{T0+2}
    v_sin_f32 v{W[1]+1}, v{T0+2}
    v_exp_f32 v{T0+4}, -v{al}
    v_cos_f32 v{W[64]}, v{T0+3}
    v_sin_f32 v{W[64]+1}, v{T0+3}
    v_exp_f32 v{T0+6}, -v{T0+5}
    v_pk_mul_f32 {vr(W[1],2)}, {vr(W[1],2)}, {vr(T0+4,2)} op_sel_hi:[1,0]
    v_pk_mul_f32 {vr(Y0,2)}, {vr(PAR+2,2)}, {sr(sC2,2)} op_sel_hi:[1,0]
    v_pk_mul_f32 {vr(W[64],2)}, {vr(W[64],2)}, {vr(T0+6,2)} op_sel_hi:[1,0]
    s_mov_b32 m0, s{sM0X}
    ''')
    xs = {1: 1, 2: 2, 3: 3, 256: 4, 258: 6, 260: 7, 4: 8, 5: 9, 6: 10, 7: 11, 262: 14, 264: 15,
          512: 16, 516: 17, 1032: 18, 1288: 19, 768: 20, 772: 21, 1544: 22, 1800: 23, 1024: 24}
    t = lambda i: T0 + 2 * i
    c1 = cmul(W[2], W[1], W[1]) + put(W[1], xs[1], 1) + cmul(W[4], W[2], W[2]) + put(W[2], xs[2], 1) + \
        cmul(W[8], W[4], W[4]) + put(W[4], xs[4], 1) + cmul(W[3], W[2], W[1]) + cmul(W[6], W[4], W[2]) + put(W[3], xs[3], 1) + \
        cmul(W[5], W[4], W[1]) + put(W[6], xs[6], 1) + cmul(W[7], W[4], W[3]) + put(W[5], xs[5], 1) + put(W[7], xs[7], 1)
    c2 = cmul(t(0), W[64], W[64]) + cmul(W[256], t(0), t(0)) + cmul(W[512], W[256], W[256]) + put(W[256], xs[256], 1) + \
        cmul(t(1), W[512], W[512]) + put(W[512], xs[512], 1) + cmul(W[768], W[512], W[256]) + put(t(1), xs[1024], 1) + \
        cmul(W[1032], t(1), W[8]) + put(W[768], xs[768], 1) + put(W[1032], xs[1032], 1)
    a(zipl(c1, c2))
    hooks['slot'](a, 1)
    prods = [(258, 256, 2), (260, 256, 4), (262, 256, 6), (264, 256, 8), (516, 512, 4), (772, 768, 4), (1288, 1032, 256), (1544, 1032, 512), (1800, 1032, 768)]
    c3 = []
    for i, (p, x, y) in enumerate(prods):
        c3 += cmul(t(i % 4), W[x], W[y]) + put(t(i % 4), xs[p], 1)
    c4 = []
    for j in range(1, 8):
        c4 += cmul(Y0 + 2 * j, Y0 + 2 * j - 2, W[8])
    a(interleave(c3, c4))
    a(f's_mov_b32 m0, s{sM0Y}')
    for rnd in range(4):
        if rnd == 1:
            hooks['slot'](a, 2)
        for j in range(0, 8, 2):
            p0, p1 = put(Y0 + 2 * j, 8 * rnd + j, 0), put(Y0 + 2 * j + 2, 8 * rnd + j + 1, 0)
            if rnd < 3:
                m0_, m1_ = cmul(Y0 + 2 * j, Y0 + 2 * j, W[64], t(4)), cmul(Y0 + 2 * j + 2, Y0 + 2 * j + 2, W[64], t(5))
                a([p0[0], m0_[0], p1[0], m1_[0], p0[1], m0_[1], p1[1], m1_[1]])
            else:
                a([p0[0], p1[0], p0[1], p1[1]])
    rd = lambda ks: [f'ds_read_b128 {vr(FR+8*(ks%4),4)}, v{AX} offset:{32*ks}', f'ds_read_b128 {vr(FR+8*(ks%4)+4,4)}, v{AY} offset:{32*ks}']
    for ks in range(4):
        a(rd(ks))
    for ks in range(8):
        a(f'v_mov_b32 v{PAR+ks}, v{PAR+4+ks}')
        a(f'v_mfma_f32_32x32x16_bf16 {vr(ACC,16)}, {vr(FR+8*(ks%4),4)}, {vr(FR+8*(ks%4)+4,4)}, {vr(ACC,16)}')
        if ks + 4 < 8:
            a(rd(ks + 4))
    a(f'''
    s_sub_u32 s{sCNT}, s{sCNT}, 1
    ''')
    hooks['loop_end'](a, sCNT)
    a(f'''
    s_cmp_lg_u32 s{sCNT}, 0
    s_cbranch_scc1 L_b_kgen
    ''')
    hooks['after_loop'](a)

    sP0, sP1 = 62, 63
    sTB = 64
    P, Q = 56, 60
    a(f'''
    s_lshl_b32 s{sTB}, s{S_WAVE}, 13
    v_mov_b32 v36, 0
    v_writelane_b32 v36, s{sDS}, 0
    v_add_f32 v{ACC}, v{ACC}, v36
    v_mov_b32_dpp v37, v{ACC+7} wave_shr:1 row_mask:0xf bank_mask:0xf bound_ctrl:1
    ''')
    for tt in range(4):
        a(f'v_cvt_pk_bf16_f32 v{P+tt}, v{ACC+2*tt+1}, v{ACC+2*tt}')
        a(f'v_cvt_pk_bf16_f32 v{Q+tt}, v{ACC+2*tt}, v{ACC+2*tt-1 if tt else 37}')
    sS, sF = 65, 66
    LO, HI, ZZ = 0x0100, 0x0302, 0x0c0c
    sel = {16: (HI, HI), 17: (LO, HI), 18: (LO, LO), 48: (HI, HI), 49: (HI, HI), 50: (LO, LO), 51: (ZZ, LO)}
    a(f'''
    v_cvt_pk_bf16_f32 v64, v{ACC+9}, v{ACC+8}
    v_cvt_pk_bf16_f32 v65, v{ACC+10}, v{ACC+11}
    v_cvt_pk_bf16_f32 v66, v{ACC+12}, v{ACC+12}
    v_mov_b32 v67, 0x0c0c0c0c
    v_readfirstlane_b32 s{sS}, v64
    v_readfirstlane_b32 s{sF}, v66
    ''')
    for ln, (lo, hi) in sel.items():
        a(f's_mov_b32 s{sT1}, {hex(lo | hi << 16)}\nv_writelane_b32 v67, s{sT1}, {ln}')
    a(f'''
    v_writelane_b32 v64, 0, 0
    v_perm_b32 v67, s{sS}, s{sS}, v67
    v_lshl_add_u32 v68, v{LANE}, 4, s{sTB}
    v_mov_b32 v72, 0
    v_mov_b32 v73, 0
    v_mov_b32 v74, 0
    v_mov_b32 v75, 0
    v_lshl_add_u32 v69, v{LANE}, 2, s{sTB}
    v_bfe_u32 v70, v{LANE}, 4, 1
    v_lshl_add_u32 v70, v70, 10, v69
    v_lshrrev_b32 v71, 5, v{LANE}
    v_mov_b32 v76, {TQ - 128}
    v_mad_u32_u24 v70, v71, v76, v70
    v_lshl_add_u32 v76, v71, 5, v{LANE}             ; 64*half + j
    v_and_b32 v77, 1, v{LANE}
    v_lshlrev_b32 v76, 1, v76
    v_lshlrev_b32 v77, 2, v77
    v_sub_u32 v76, v76, v77
    s_add_u32 s{sT1}, s{sTB}, {G8O + 65*4 + 2}
    v_add_u32 v76, s{sT1}, v76
    s_barrier
    ''')
    if not hooks['nou']:
        a(uld)
    a(f'''
    ds_write_b128 v68, v[72:75] offset:{TG}
    ds_write_b128 v68, {vr(P,4)} offset:64
    ds_write_b128 v68, {vr(Q,4)} offset:{TQ+64}
    ds_write_b32 v70, v67
    ds_write_b32 v69, v64 offset:{G4O + 64*4}
    ds_write_b16 v76, v65
    ds_write_b16_d16_hi v76, v65 offset:64
    ''')
    AK, AK2, AU, AG4, AG8, AB = 2, 3, 4, 5, 6, 7
    a(f'''
    v_add_u32 v8, 5, v{I16}
    v_lshrrev_b32 v8, 1, v8                          ; (i+5)>>1
    v_lshlrev_b32 v9, 2, v{QD}
    v_sub_u32 v8, v8, v9
    v_add_u32 v8, 13, v8                             ; z0-3+16
    v_and_b32 v10, 1, v{I16}
    v_mul_u32_u24 v10, {TQ}, v10
    v_lshl_add_u32 v{AK}, v8, 2, v10
    v_add_u32 v{AK}, s{sTB}, v{AK}
    v_add_u32 v{AK2}, 1024, v{AK}
    s_mul_i32 s{sT1}, s{S_WAVE}, {USTR}
    s_add_u32 s{sT1}, s{sT1}, {UBASE}
    v_lshl_add_u32 v8, v{I16}, 1, v{QD}
    v_lshl_add_u32 v{AU}, v8, 4, s{sT1}
    v_sub_u32 v8, v{I16}, v9
    s_add_u32 s{sT1}, s{sTB}, {G4O + 4*(64 - 4 + 2 - 3)}
    v_lshl_add_u32 v{AG4}, v8, 3, s{sT1}
    s_add_u32 s{sT1}, s{sTB}, {G8O + 4*(64 + 1 - 3)}
    v_lshl_add_u32 v{AG8}, v8, 2, s{sT1}
    v_lshlrev_b32 v{AB}, 4, v{LANE}
    v_add_u32 v{AB}, {BAND}, v{AB}
    ''')
    a(f'''
    v_lshl_add_u32 v68, v{LANE}, 3, s{sTB}
    v_lshlrev_b32 v69, 3, v0
    v_lshl_add_u32 v70, v{I16}, 2, v{QD}
    s_lshl_b32 s{sT1}, s{S_WAVE}, 6
    v_add_u32 v70, s{sT1}, v70
    v_mul_u32_u24 v70, {4*2560}, v70
    s_lshl_b32 s{sT1}, s{S_BIDX}, 4
    s_add_u32 s{sT1}, s{sT1}, {1280 + 2560}
    v_add_u32 v70, s{sT1}, v70
    v_add_u32 v71, {2*2560}, v70
    ''')
    YA = 8
    VV = 40
    AP = 56
    F32 = YA
    pool = list(range(72, 256, 4))

    def r2(r, ad, o):
        return [f'ds_read2_b32 {vr(r,2)}, v{ad} offset0:{o+3} offset1:{o+2}', f'ds_read2_b32 {vr(r+2,2)}, v{ad} offset0:{o+1} offset1:{o}']

    def load(key, r):
        k = key[0]
        if k == 'K':
            return r2(r, AK, 16 * key[1]) if key[1] < 16 else r2(r, AK2, 0)
        if k in ('U', 'U2'):
            return [f'ds_read_b128 {vr(r,4)}, v{AU} offset:{64*(key[1]+8)}']
        if k == 'UB':
            return [f'ds_read_b128 {vr(r,4)}, v{AU} offset:{64*(8*key[1]+8)-32}']
        if k == 'G4':
            return r2(r, AG4, 32 * (key[1] - 2) + 4 * (1 - key[2]))
        if k == 'G8':
            return r2(r, AG8, 16 * (key[1] - 4))
        if k == 'B':
            return [f'ds_read_b128 {vr(r,4)}, v{AB} offset:{1024*key[1]}']
    seq = []
    started = set()

    def mm(R, ka, kb):
        c = vr(YA + 4 * R, 4) if R in started else '0'
        started.add(R)
        A = '{0}' if isinstance(ka, tuple) else vr(ka, 4)
        keys = ([ka] if isinstance(ka, tuple) else []) + [kb]
        B = '{%d}' % (len(keys) - 1)
        return (f'v_mfma_f32_16x16x32_bf16 {vr(YA+4*R,4)}, {A}, {B}, {c}', keys)
    stages = hooks['stages']
    late = []

    def yout(R):
        return [(f'v_cvt_pk_bf16_f32 v{YA+4*R}, v{YA+4*R}, v{YA+4*R+1}', []), (f'v_cvt_pk_bf16_f32 v{YA+4*R+1}, v{YA+4*R+2}, v{YA+4*R+3}', []),
                (f'ds_write_b64 v68, {vr(YA+4*R,2)} offset:{TY+512*R}', [])]
    for R in range(8):
        dense = []
        for c in (7, 6, 5, 4, 3, 2, 1, 0):
            for ka in ((32, 16, 8, 0) if c == 0 else (c + 8, c)):
                m = 8 * R - ka
                if m >= -8:
                    dense.append(mm(R, ('K', ka) if ka < 32 else F32, ('U' if ka < 32 or R >= hooks['u2'] else 'U2', m)))
        b2, b3, cv2, cv3, sg = [], [], [], [], []
        n = R
        if n < 6:
            b2 = [(f'v_mfma_f32_16x16x32_bf16 {vr(VV+4*e,4)}, {{0}}, {{1}}, 0', [('UB', n), ('B', e, n // hooks['bres'])]) for e in range(4)]
            for hh in range(2):
                for m in range(4):
                    r = 2 * hh + (m >> 1); e = 2 * (m & 1)
                    cv2.append((f'v_cvt_pk_bf16_f32 v{AP+4*hh+m}, v{VV+4*e+r}, v{VV+4*(e+1)+r}', []))
            for dl in (2, 3, 4):
                for hh in range(2):
                    if n + dl < 8:
                        sg.append(mm(n + dl, AP + 4 * hh, ('G4', dl, hh)))
        if n < 4:
            b3 = [(f'v_mfma_f32_16x16x32_bf16 {vr(VV+4*e,4)}, {{0}}, {{1}}, 0', [('UB', n), ('B', 4 + e, n // hooks['bres'])]) for e in range(2)]
            cv3 = [(f'v_cvt_pk_bf16_f32 v{AP+8+m}, v{VV+m}, v{VV+4+m}', []) for m in range(4)]
        s3 = [mm(n + dl, AP + 8, ('G8', dl)) for dl in range(4, 8) if n < 4 and n + dl < 8]
        if R == 2:
            cv3 = cv3 + [(f'v_and_b32 v{F32+m}, s{sF}, {{0:{m}}}', [('B', 6, 0)]) for m in range(4)]
        k0 = 4 if len(dense) > 12 else 3
        seq += b2 + interleave(dense, cv2, ratio=1 if len(dense) > 12 else 2, start=k0) + b3
        seq += interleave(sg + s3[:0], cv3, ratio=2, start=3 if cv3 else 0) if sg else cv3
        seq += interleave(s3, yout(R), ratio=1) if s3 else yout(R)
        if R in stages:
            lo = ([-1] + [x for x in stages if x < R])[-1] + 1
            seq.append((f's_waitcnt lgkmcnt(0)\ns_barrier\ns_sub_u32 s{sT1}, s{S_WAVE}, {lo}\ns_cmp_le_u32 s{sT1}, {R-lo}\ns_cbranch_scc1 L_b_out{R}\nL_b_back{R}:', []))
            late.append(f';@reset\nL_b_out{R}:')
            for c in range(8):
                late.append(f'ds_read_b64 {vr(VV+2*c,2)}, v69 offset:{TY + c*TSTR}')
            for r in range(4):
                o = AP + 4 * (r % 3)
                for d in range(4):
                    late.append(f'v_perm_b32 v{o+d}, v{VV+4*d+2+(r>>1)}, v{VV+4*d+(r>>1)}, s{sP1 if r & 1 else sP0}')
                late.append(f'global_store_dwordx4 v{70+(r>>1)}, {vr(o,4)}, {sr(S_OUT,2)} offset:{-2560 if not r & 1 else 0}')
            late.append(f's_branch L_b_back{R}')
    first, last = {}, {}
    mi, cnt = [], 0
    for txt, keys in seq:
        mi.append(cnt)
        cnt += txt.startswith('v_mfma')
    for i, (_, keys) in enumerate(seq):
        for k in keys:
            first.setdefault(k, i); last[k] = i
    order = sorted(first, key=lambda k: first[k])
    reg, nxt, pend = {}, 0, []
    for k in [k for k in order if k[0] in ('K', 'G4', 'G8') or (k[0] == 'B' and k[1] < 6 and k[2] == 0)]:
        order.remove(k)
        reg[k] = pool.pop(0)
        a(load(k, reg[k]))
    a(f'''
    s_mov_b32 s{sP0}, 0x05040100
    s_mov_b32 s{sP1}, 0x07060302
    v_lshlrev_b32 v36, 3, v0
    v_add_u32 v36, {UBASE + 65*8}, v36
    ''')
    for c in range(8):
        d, sp = c >> 1, (sP1 if c & 1 else sP0)
        r = 40 + 2 * c
        a(f'''v_perm_b32 v{r}, v{UD+4+d}, v{UD+d}, s{sp}
        v_perm_b32 v{r+1}, v{UD+12+d}, v{UD+8+d}, s{sp}
        ds_write_b64 v36, {vr(r,2)} offset:{c*USTR}''')
    a('s_waitcnt lgkmcnt(0)\ns_barrier')
    hooks['after_barrier'](a)
    LOOK = hooks['look']

    class FragFmt:
        def __init__(self, r): self.r = r
        def __format__(self, spec): return vr(self.r + int(spec)) if spec else vr(self.r, 4)
    ends = [mi[i] for i, (t, _) in enumerate(seq) if 's_barrier' in t]
    prio = {}
    for lo, hi in zip([0] + ends, ends):
        for q, fr in enumerate((0, 0.45, 0.75, 0.92)):
            prio[lo + int(fr * (hi - lo))] = 3 - q
    for i, (txt, keys) in enumerate(seq):
        look = lambda k: LOOK * (2 if k[0] in 'KG4G8' else 1)
        while nxt < len(order) and mi[first[order[nxt]]] <= mi[i] + LOOK and pool:
            k = order[nxt]; nxt += 1
            reg[k] = pool.pop(0)
            pend += [(mi[first[k]], x) for x in load(k, reg[k])]
        if txt.startswith('v_mfma'):
            if mi[i] in prio and hooks['prio']:
                a(f's_setprio {prio[mi[i]]}')
            cntr = 0 if i and seq[i - 1][0].startswith('v_mfma') else 1
            while pend and (pend[0][0] <= mi[i] + 3 or cntr < 2):
                x = pend.pop(0)[1]; cntr += 1
                if hooks['cx'] != 'nord':
                    a(x)
        assert all(k in reg for k in keys) and all(p[0] > mi[i] or not keys for p in pend), (i, txt)
        if 'L_b_out7' in txt:
            hooks['st'](a, 4)
        if hooks['cx'] == 'nord' and 0:
            pass
        a(txt.format(*[FragFmt(reg[k]) for k in keys]))
        for k in set(keys):
            if last[k] == i:
                pool.append(reg[k])
        if txt.startswith('ds_write_b64 v68') and f'offset:{TY}' not in txt:
            pool.append(int(txt.split('v[')[1].split(':')[0]))
    a(';@age 0')
    hooks['st'](a, 5)
    hooks['end'](a)
    a('s_endpgm')
    a(late)
```

```python
import sys, json
from asmlib import *
import gen_b, gen_a
NAME = 'concat_heads__linear_kernel_hedgehog__ssm_conv_s4d__prompt'
HEAD = open('cdna_kernels/%s.s.ref' % NAME).read().split('; @launch')[0]
STAMP_OFF = 64 << 20

def build(opts=None):
    opts = opts or {}
    a = Asm()
    diag = opts.get('diag')
    amp = opts.get('amp')
    role = ['L']
    def stamp(a, i, final=False):
        if i == 99: return
        if amp:
            r = role[0]
            if final: role[0] = {'L': 'C', 'C': 'B', 'B': ''}[r]
            if r != amp[0]: return
            if i == amp[1]: a('s_memrealtime s[80:81]')
            if final:
                a(f'''s_waitcnt vmcnt(0) lgkmcnt(0)
                s_sub_u32 s80, s80, s96
                s_mul_i32 s80, s80, {amp[2]}
                s_add_u32 s80, s80, 10000''')
                if opts.get('wbl2'):
                    a('''L_amp0:
                    s_sleep 2
                    s_memrealtime s[82:83]
                    s_waitcnt lgkmcnt(0)
                    s_sub_u32 s82, s82, s96
                    s_cmp_lt_u32 s82, 5000
                    s_cbranch_scc1 L_amp0
                    buffer_wbl2 sc1
                    s_waitcnt vmcnt(0)''')
                a('''L_amp:
                s_sleep 2
                s_memrealtime s[82:83]
                s_waitcnt lgkmcnt(0)
                s_sub_u32 s82, s82, s96
                s_cmp_lt_u32 s82, s80
                s_cbranch_scc1 L_amp''')
            return
        if not diag: return
        a(f'{"s_memtime" if opts.get("cyc") else "s_memrealtime"} s[{80+2*i}:{81+2*i}]')
        if final:
            a('s_waitcnt lgkmcnt(0)\nv_mov_b32 v2, 0')
            if opts.get('chunks') and role[0] == 'C': a('v_mov_b32 v2, v255')
            role[0] = {'L': 'C', 'C': 'B'}.get(role[0], 'x')
            for k in range(9):
                a(f'v_writelane_b32 v2, s{80+2*k}, {k}')
            a('s_getreg_b32 s80, hwreg(HW_REG_HW_ID)\ns_getreg_b32 s81, hwreg(HW_REG_XCC_ID)\nv_writelane_b32 v2, s80, 30\nv_writelane_b32 v2, s81, 31')
            a(f's_lshl_b32 s80, s2, 3\ns_add_u32 s80, s80, s3\ns_lshl_b32 s80, s80, 8\ns_add_u32 s80, s80, {STAMP_OFF}\nv_lshl_add_u32 v3, v1, 2, s80\nglobal_store_dword v3, v2, s[34:35]')
    if diag or amp: a('s_memtime s[96:97]' if opts.get('cyc') else 's_memrealtime s[96:97]')
    a('''
    s_load_dwordx8 s[8:15], s[0:1], 0
    s_load_dwordx16 s[16:31], s[0:1], 32
    s_load_dwordx4 s[32:35], s[0:1], 96
    s_cmp_ge_u32 s2, 256
    s_cbranch_scc1 L_end
    v_lshrrev_b32 v2, 6, v0
    v_and_b32 v1, 63, v0
    s_and_b32 s4, s2, 7
    v_readfirstlane_b32 s3, v2
    s_lshr_b32 s5, s2, 3
    ''')
    if opts.get('bal', 1):
        a('s_sub_u32 s36, s5, 21\ns_xor_b32 s37, s5, 3\ns_cmp_lt_u32 s36, 2\ns_cselect_b32 s5, s37, s5')
    if opts.get('cpf', 1):
        a(f'''
        s_getpc_b64 s[6:7]
        L_pc:
        s_lshl_b32 s36, s5, 10
        v_lshl_add_u32 v2, v2, 7, s36
        v_min_u32 v2, L_end-L_pc, v2
        s_mov_b64 exec, 1
        global_load_dword v31, v2, s[6:7] ;touch
        s_mov_b64 exec, -1
        ''')
    if opts.get('probe'):
        ptr, n = opts['probe']
        a(f'''s_waitcnt lgkmcnt(0)
        s_cmp_lg_u32 s3, 0
        s_cbranch_scc1 L_probe_done
        s_mul_i32 s36, s2, {n*128}
        v_mov_b32 v2, s36
        s_mov_b32 s37, {n}
        L_probe:
        global_load_dword v3, v2, s[{ptr}:{ptr+1}]
        s_waitcnt vmcnt(0)
        v_add_u32 v2, 128, v2
        s_sub_u32 s37, s37, 1
        s_cmp_lg_u32 s37, 0
        s_cbranch_scc1 L_probe
        L_probe_done:
        s_barrier''')
    a('''
    s_cmp_ge_u32 s5, 22
    s_cbranch_scc1 L_B
    ''')
    if opts.get('noA'):
        a('s_waitcnt lgkmcnt(0)')
        for k in range(8): stamp(a, k)
        stamp(a, 6, final=True)
        role[0] = 'L'
        a('s_endpgm')
    gen_a.gen_a(a, opts, stamp)
    a('''
    ;@reset
    L_B:
    ''')
    if opts.get('noB'):
        role[0] = 'x'
        for k in (0, 1, 2, 3): stamp(a, k)
        a('s_waitcnt lgkmcnt(0)')
        stamp(a, 6, final=True)
        a('s_endpgm')
    a('''
    s_mul_i32 s6, s4, 10
    s_add_u32 s6, s6, s5
    s_sub_u32 s6, s6, 22
    ''')
    nop = lambda a: None
    PF = opts.get('pf', 1)
    NALL = opts.get('nall', 1)
    noclear = opts.get('noclear')
    SX, SW, sOW, sA, sB, sUT = 72, 76, 39, 36, 37, 61
    SEQ = opts.get('seq', 'X1 X2 X3 X4 X5|X6 X7 X8 X9')
    SEQ = [x.split() for x in SEQ.split('|')]
    cnt_i = lambda l: sum({'S': 2, 'X': 3, 'x': 4, 'w': 1}[t[0]] for t in l)
    NI1 = cnt_i(SEQ[0])
    def pf(a, items):
        a(f's_mov_b32 exec_hi, {(1 << 26) - 1}')
        for t in items:
            c = int(t[1:])
            if t[0] == 'X':
                a(f'''s_mov_b32 s{sOW}, {c*64*3840}
                buffer_load_dword v31, v160, s[{SX}:{SX+3}], 0 offen offset:{128*c} ;touch
                buffer_load_dword v31, v161, s[{SX}:{SX+3}], 0 offen offset:{128*c} ;touch
                buffer_load_dword v31, v162, s[{SW}:{SW+3}], s{sOW} offen ;touch''')
            elif t[0] == 'x':
                a('s_mov_b32 exec_hi, -1')
                for i in range(4):
                    a(f's_add_u32 s{sOW}, s38, {8192*i}\nbuffer_load_dword v31, v171, s[{SX}:{SX+3}], s{sOW} offen ;touch')
                a(f's_mov_b32 exec_hi, {(1 << 26) - 1}')
            elif t[0] == 'w':
                a(f's_mov_b32 exec_hi, {(1 << 28) - 1}\ns_add_u32 s{sOW}, s70, {c*160*3840}\nbuffer_load_dword v31, v171, s[{SW}:{SW+3}], s{sOW} offen {opts.get("wnt", "")} ;touch\ns_mov_b32 exec_hi, {(1 << 26) - 1}')
            else:
                a(f'''s_mov_b32 s{sOW}, {c*128*3840}
                buffer_load_dword v31, v168, s[{SX}:{SX+3}], 0 offen offset:{256*c} ;touch
                buffer_load_dword v31, v169, s[{SW}:{SW+3}], s{sOW} offen ;touch''')
        a('s_mov_b32 exec_hi, -1')
    def after_params(a):
        a(f'''s_cmp_lg_u32 s3, 1
        s_cbranch_scc1 L_b_noclr
        s_mul_i32 s{sA}, s6, 9216
        s_add_u32 s{sA}, s{sA}, {gen_a.OBYTES}
        v_lshl_add_u32 v163, v1, 4, s{sA}
        v_mov_b32 v164, -1
        v_mov_b32 v165, -1
        v_mov_b32 v166, -1
        v_mov_b32 v167, -1''')
        for i in range(9):
            if i in (4, 8): a('v_add_u32 v163, 4096, v163')
            a(f'global_store_dwordx4 v163, v[164:167], s[34:35] offset:{1024*(i%4)} sc1')
        a('L_b_noclr:')
        gen_a.srd(a, SX, 8, 2048 * 1280)
        gen_a.srd(a, SW, 10, 640 * 3840)
        a(f'''s_sub_u32 s{sA}, s5, 22
        s_mul_i32 s{sA}, s{sA}, 58
        v_add_u32 v160, s{sA}, v1
        v_mul_u32_u24 v161, 21846, v160
        v_lshrrev_b32 v161, 16, v161
        v_mul_u32_u24 v161, 896, v161
        s_lshr_b32 s{sB}, s4, 1
        s_mul_i32 s{sB}, s{sB}, 320
        s_and_b32 s{sB}, s{sB}, 0xff80
        v_lshl_add_u32 v162, v160, 7, s{sB}
        v_add_u32 v162, v161, v162
        s_and_b32 s{sB}, s4, 1
        s_mul_i32 s{sB}, s{sB}, 960
        s_add_u32 s{sA}, s{sA}, s{sB}
        v_add_u32 v160, s{sA}, v160
        v_mul_u32_u24 v160, 1280, v160
        v_add_u32 v161, {58*1280}, v160''')
        a(f'''s_and_b32 s{sB}, s4, 1
        s_mul_i32 s{sOW}, s{sB}, {64*3840}
        v_add_u32 v169, s{sOW}, v162
        s_lshl_b32 s{sB}, s{sB}, 2
        s_lshr_b32 s{sOW}, s4, 1
        s_add_u32 s{sB}, s{sB}, s{sOW}
        s_lshl_b32 s{sB}, s{sB}, 8
        s_sub_u32 s{sA}, s5, 22
        s_mul_i32 s38, s{sB}, 1280
        s_lshl_b32 s70, s{sA}, 15
        s_add_u32 s38, s38, s70
        s_mul_i32 s70, s6, 7680
        v_lshlrev_b32 v171, 7, v1
        s_mul_i32 s{sA}, s{sA}, 26
        s_add_u32 s{sA}, s{sA}, s{sB}
        v_lshrrev_b32 v168, 1, v1
        v_min_u32 v168, 25, v168
        v_add_u32 v168, s{sA}, v168
        v_mul_u32_u24 v168, 1280, v168
        v_and_b32 v170, 1, v1
        v_lshl_add_u32 v168, v170, 7, v168''')
        a(f'''
        s_sub_u32 s{sUT}, 2, s3
        s_max_u32 s{sUT}, s{sUT}, {opts.get('ut', 1)}
        s_cmp_ge_u32 s3, 2
        s_cselect_b32 s{sUT}, 100, s{sUT}
        s_barrier
        s_cmp_lg_u32 s3, 0
        s_cbranch_scc1 L_b_nopf''')
        if PF:
            pf(a, SEQ[0])
        a('L_b_nopf:')
    def wait_params(a):
        a(f'''s_waitcnt vmcnt({NI1 if PF else 0}) lgkmcnt(0)
        s_cmp_eq_u32 s3, 0
        s_cbranch_scc1 L_b_w0
        s_waitcnt vmcnt(0)
        s_cmp_lg_u32 s3, 1
        s_cbranch_scc1 L_b_w0
        v_mov_b32 v162, 0
        v_mov_b32 v163, 1
        s_mov_b64 exec, 1
        global_atomic_add v162, v163, s[32:33]
        s_mov_b64 exec, -1
        L_b_w0:
        ;@reset''')
    def out_of_line(a):
        a(f'''s_branch L_b_kgen
        L_b_side:
        s_cmp_eq_u32 s3, 1
        s_cbranch_scc1 L_b_ut''')
        if PF:
            pf(a, SEQ[1])
        if opts.get('wopf', 1):
            a(f'''s_mul_i32 s{sA}, s6, {80*128}
            v_lshl_add_u32 v163, v1, 7, s{sA}
            global_load_dword v31, v163, s[14:15] ;touch
            v_add_u32 v163, 8192, v163
            s_mov_b64 exec, 0xffff
            global_load_dword v31, v163, s[14:15] ;touch
            s_mov_b64 exec, -1''')
        a(f'''s_branch L_b_kgen
        L_b_ut:
        s_sub_u32 s{sA}, s5, 22
        s_mul_i32 s{sA}, s{sA}, {205*1280}
        s_mul_i32 s{sB}, s4, 160
        s_and_b32 s{sB}, s{sB}, 0xff80
        s_add_u32 s{sA}, s{sA}, s{sB}
        v_lshrrev_b32 v161, 1, v1
        v_mul_u32_u24 v161, 1280, v161
        v_and_b32 v160, 1, v1
        v_lshl_add_u32 v160, v160, 7, v161
        s_mov_b32 exec_hi, {(1 << 28) - 1}''')
        for i in range(7):
            a(f'buffer_load_dword v31, v160, s[48:51], s{sA} offen ;touch\ns_add_u32 s{sA}, s{sA}, {30*1280}')
        a('s_mov_b64 exec, -1\n;@reset')
    def loop_end(a, cnt):
        assert cnt == 60
        a(f'''s_cmp_eq_u32 s{cnt}, s{sUT}
        s_cbranch_scc1 L_b_side''')
    def after_loop(a):
        stamp(a, 1)
    before_params = nop
    slot = lambda a, k: None
    def end(a):
        stamp(a, 3)
        if diag: a('s_waitcnt vmcnt(0)')
        stamp(a, 6, final=True)
    def pre_loop(a):
        if opts.get('pfonly'):
            a(f's_waitcnt vmcnt({NI1})')
            stamp(a, 0)
            a('s_cmp_lg_u32 s3, 1\ns_cbranch_scc1 L_x\ns_waitcnt vmcnt(0)\nv_mov_b32 v162, 0\nv_mov_b32 v163, 1\ns_mov_b64 exec, 1')
            if opts['pfonly'] == 1: a('global_atomic_add v162, v163, s[32:33]')
            a('s_mov_b64 exec, -1\nL_x:\ns_cmp_lg_u32 s3, 0\ns_cbranch_scc1 L_y')
            a(f's_waitcnt vmcnt({NI1//2})')
            stamp(a, 1)
            pf(a, SEQ[1])
            n2 = cnt_i(SEQ[1])
            a(f's_waitcnt vmcnt({n2})')
            stamp(a, 2)
            a(f's_waitcnt vmcnt({n2//2})')
            stamp(a, 4)
            a(f's_waitcnt vmcnt(0)')
            stamp(a, 5)
            a('s_branch L_z\nL_y:')
            for k in (1, 2, 4, 5): stamp(a, k)
            a('L_z:')
            stamp(a, 3)
            stamp(a, 6, final=True)
            a('s_endpgm')
    hooks = dict(pre_loop=pre_loop, before_params=before_params, after_params=after_params, after_u=nop, st=stamp, wait_params=wait_params, slot=slot, loop_end=loop_end,
                 after_loop=after_loop, out_of_line=out_of_line, before_barrier=nop, after_barrier=lambda a: stamp(a, 2), end=end)
    hooks['nou'] = opts.get('nou')
    hooks.update(stages=opts.get('stages', [2, 4, 6, 7]), look=opts.get('look', 6), age=opts.get('age', 5), ubar=opts.get('ubar', 1), prio=opts.get('cprio', 1), cx=opts.get('cx'), bres=opts.get('bres', 8), u2=opts.get('u2', 6))
    gen_b.gen_b(a, 6, hooks)
    a('L_end:')
    body = a.finish()
    if opts.get('align', 1):
        body = align8(body)
    txt = HEAD + '; @launch grid=(256,1,1) block=(512,1,1) lds=163840\n'
    txt += f'''.amdgcn_target "amdgcn-amd-amdhsa--gfx950"
.text
.globl {NAME}_kernel
.p2align 8
.type {NAME}_kernel,@function
{NAME}_kernel:
'''
    txt += '\n'.join(l if l.endswith(':') else '    ' + l for l in body if not l.startswith(';@'))
    txt += f'''
    s_endpgm
.section .rodata,"a"
.p2align 6
.amdhsa_kernel {NAME}_kernel
  .amdhsa_next_free_vgpr 256
  .amdhsa_next_free_sgpr 102
  .amdhsa_accum_offset 256
  .amdhsa_group_segment_fixed_size 0
  .amdhsa_kernarg_size 112
  .amdhsa_user_sgpr_count 2
  .amdhsa_user_sgpr_kernarg_segment_ptr 1
  .amdhsa_system_sgpr_workgroup_id_x 1
.end_amdhsa_kernel
'''
    return txt
if __name__ == '__main__':
    out = sys.argv[1] if len(sys.argv) > 1 else 'k.s'
    opts = json.loads(sys.argv[2]) if len(sys.argv) > 2 else {}
    open(out, 'w').write(build(opts))
```

```python
import sys, json
from asmlib import *
import gen_b, gen_a
NAME = 'concat_heads__linear_kernel_hedgehog__ssm_conv_s4d__prompt'
HEAD = open('cdna_kernels/%s.s.ref' % NAME).read().split('; @launch')[0]
STAMP_OFF = 64 << 20

def build(opts=None):
    opts = opts or {}
    a = Asm()
    diag = opts.get('diag')
    amp = opts.get('amp')
    role = ['L']
    def stamp(a, i, final=False):
        if i == 99: return
        if amp:
            r = role[0]
            if final: role[0] = {'L': 'C', 'C': 'B', 'B': ''}[r]
            if r != amp[0]: return
            if i == amp[1]: a('s_memrealtime s[80:81]')
            if final:
                if opts.get('rel'):
                    if amp[1] == 8: a('s_mov_b32 s80, s96')
                    a('''s_waitcnt vmcnt(0) lgkmcnt(0)
                    L_amp1:
                    s_sleep 2
                    s_memrealtime s[82:83]
                    s_waitcnt lgkmcnt(0)
                    s_sub_u32 s82, s82, s96
                    s_cmp_lt_u32 s82, 5000
                    s_cbranch_scc1 L_amp1
                    v_mov_b32 v2, 0
                    global_load_dword v3, v2, s[32:33] offset:192 sc1
                    s_waitcnt vmcnt(0)
                    v_readfirstlane_b32 s96, v3
                    s_sub_u32 s96, 0, s96''')
                a(f'''s_waitcnt vmcnt(0) lgkmcnt(0)
                s_sub_u32 s80, s80, s96
                s_mul_i32 s80, s80, {amp[2]}
                s_add_u32 s80, s80, 10000''')
                if opts.get('wbl2'):
                    a('''L_amp0:
                    s_sleep 2
                    s_memrealtime s[82:83]
                    s_waitcnt lgkmcnt(0)
                    s_sub_u32 s82, s82, s96
                    s_cmp_lt_u32 s82, 5000
                    s_cbranch_scc1 L_amp0
                    buffer_wbl2 sc1
                    s_waitcnt vmcnt(0)''')
                a('''L_amp:
                s_sleep 2
                s_memrealtime s[82:83]
                s_waitcnt lgkmcnt(0)
                s_sub_u32 s82, s82, s96
                s_cmp_lt_u32 s82, s80
                s_cbranch_scc1 L_amp''')
            return
        if not diag: return
        a(f'{"s_memtime" if opts.get("cyc") else "s_memrealtime"} s[{80+2*i}:{81+2*i}]')
        if final:
            a('s_waitcnt lgkmcnt(0)\nv_mov_b32 v2, 0')
            if opts.get('chunks') and role[0] == 'C': a('v_mov_b32 v2, v255')
            role[0] = {'L': 'C', 'C': 'B'}.get(role[0], 'x')
            for k in range(9):
                a(f'v_writelane_b32 v2, s{80+2*k}, {k}')
            a('s_getreg_b32 s80, hwreg(HW_REG_HW_ID)\ns_getreg_b32 s81, hwreg(HW_REG_XCC_ID)\nv_writelane_b32 v2, s80, 30\nv_writelane_b32 v2, s81, 31')
            a(f's_lshl_b32 s80, s2, 3\ns_add_u32 s80, s80, s3\ns_lshl_b32 s80, s80, 8\ns_add_u32 s80, s80, {STAMP_OFF}\nv_lshl_add_u32 v3, v1, 2, s80\nglobal_store_dword v3, v2, s[34:35]')
    if diag or amp: a('s_memtime s[96:97]' if opts.get('cyc') else 's_memrealtime s[96:97]')
    a('''
    s_load_dwordx8 s[8:15], s[0:1], 0
    s_load_dwordx16 s[16:31], s[0:1], 32
    s_load_dwordx4 s[32:35], s[0:1], 96
    s_cmp_ge_u32 s2, 256
    s_cbranch_scc1 L_end
    v_lshrrev_b32 v2, 6, v0
    v_and_b32 v1, 63, v0
    s_and_b32 s4, s2, 7
    v_readfirstlane_b32 s3, v2
    s_lshr_b32 s5, s2, 3
    ''')
    if opts.get('bal', 1):
        a('s_sub_u32 s36, s5, 21\ns_xor_b32 s37, s5, 3\ns_cmp_lt_u32 s36, 2\ns_cselect_b32 s5, s37, s5')
    if opts.get('cpf', 1):
        a(f'''
        s_getpc_b64 s[6:7]
        L_pc:
        s_lshl_b32 s36, s5, 10
        v_lshl_add_u32 v2, v2, 7, s36
        v_min_u32 v2, L_end-L_pc, v2
        s_mov_b64 exec, 1
        global_load_dword v31, v2, s[6:7] ;touch
        s_mov_b64 exec, -1
        ''')
    if opts.get('probe'):
        ptr, n = opts['probe']
        a(f'''s_waitcnt lgkmcnt(0)
        s_cmp_lg_u32 s3, 0
        s_cbranch_scc1 L_probe_done
        s_mul_i32 s36, s2, {n*128}
        v_mov_b32 v2, s36
        s_mov_b32 s37, {n}
        L_probe:
        global_load_dword v3, v2, s[{ptr}:{ptr+1}]
        s_waitcnt vmcnt(0)
        v_add_u32 v2, 128, v2
        s_sub_u32 s37, s37, 1
        s_cmp_lg_u32 s37, 0
        s_cbranch_scc1 L_probe
        L_probe_done:
        s_barrier''')
    if opts.get('rel'):
        a('''s_lshr_b32 s36, s2, 3
        s_or_b32 s36, s36, s3
        s_cbranch_scc1 L_norel
        s_waitcnt lgkmcnt(0)
        s_sub_u32 s36, 0, s96
        v_mov_b32 v2, 0
        v_mov_b32 v3, s36
        s_mov_b64 exec, 1
        global_atomic_umax v2, v3, s[32:33] offset:192
        s_mov_b64 exec, -1
        L_norel:''')
    a('''
    s_cmp_ge_u32 s5, 22
    s_cbranch_scc1 L_B
    ''')
    if opts.get('noA'):
        a('s_waitcnt lgkmcnt(0)')
        for k in range(8): stamp(a, k)
        stamp(a, 6, final=True)
        role[0] = 'L'
        a('s_endpgm')
    gen_a.gen_a(a, opts, stamp)
    a('''
    ;@reset
    L_B:
    ''')
    if opts.get('noB'):
        role[0] = 'x'
        for k in (0, 1, 2, 3): stamp(a, k)
        a('s_waitcnt lgkmcnt(0)')
        stamp(a, 6, final=True)
        a('s_endpgm')
    a('''
    s_mul_i32 s6, s4, 10
    s_add_u32 s6, s6, s5
    s_sub_u32 s6, s6, 22
    ''')
    nop = lambda a: None
    PF = opts.get('pf', 1)
    NALL = opts.get('nall', 1)
    noclear = opts.get('noclear')
    SX, SW, sOW, sA, sB, sUT = 72, 76, 39, 36, 37, 61
    SEQ = opts.get('seq', 'X1 X2 X3 X4 X5|X6 X7 X8 X9')
    SEQ = [x.split() for x in SEQ.split('|')]
    cnt_i = lambda l: sum({'S': 2, 'X': 3, 'x': 4, 'w': 1}[t[0]] for t in l)
    NI1 = cnt_i(SEQ[0])
    def pf(a, items):
        a(f's_mov_b32 exec_hi, {(1 << 26) - 1}')
        for t in items:
            c = int(t[1:])
            if t[0] == 'X':
                a(f'''s_mov_b32 s{sOW}, {c*64*3840}
                buffer_load_dword v31, v160, s[{SX}:{SX+3}], 0 offen offset:{128*c} ;touch
                buffer_load_dword v31, v161, s[{SX}:{SX+3}], 0 offen offset:{128*c} ;touch
                buffer_load_dword v31, v162, s[{SW}:{SW+3}], s{sOW} offen ;touch''')
            elif t[0] == 'x':
                a('s_mov_b32 exec_hi, -1')
                for i in range(4):
                    a(f's_add_u32 s{sOW}, s38, {8192*i}\nbuffer_load_dword v31, v171, s[{SX}:{SX+3}], s{sOW} offen ;touch')
                a(f's_mov_b32 exec_hi, {(1 << 26) - 1}')
            elif t[0] == 'w':
                a(f's_mov_b32 exec_hi, {(1 << 28) - 1}\ns_add_u32 s{sOW}, s70, {c*160*3840}\nbuffer_load_dword v31, v171, s[{SW}:{SW+3}], s{sOW} offen {opts.get("wnt", "")} ;touch\ns_mov_b32 exec_hi, {(1 << 26) - 1}')
            else:
                a(f'''s_mov_b32 s{sOW}, {c*128*3840}
                buffer_load_dword v31, v168, s[{SX}:{SX+3}], 0 offen offset:{256*c} ;touch
                buffer_load_dword v31, v169, s[{SW}:{SW+3}], s{sOW} offen ;touch''')
        a('s_mov_b32 exec_hi, -1')
    def after_params(a):
        a(f'''s_cmp_lg_u32 s3, 1
        s_cbranch_scc1 L_b_noclr
        s_mul_i32 s{sA}, s6, 9216
        s_add_u32 s{sA}, s{sA}, {gen_a.OBYTES}
        v_lshl_add_u32 v163, v1, 4, s{sA}
        v_mov_b32 v164, -1
        v_mov_b32 v165, -1
        v_mov_b32 v166, -1
        v_mov_b32 v167, -1''')
        for i in range(9):
            if i in (4, 8): a('v_add_u32 v163, 4096, v163')
            a(f'global_store_dwordx4 v163, v[164:167], s[34:35] offset:{1024*(i%4)} sc1')
        a('L_b_noclr:')
        gen_a.srd(a, SX, 8, 2048 * 1280)
        gen_a.srd(a, SW, 10, 640 * 3840)
        a(f'''s_sub_u32 s{sA}, s5, 22
        s_mul_i32 s{sA}, s{sA}, 58
        v_add_u32 v160, s{sA}, v1
        v_mul_u32_u24 v161, 21846, v160
        v_lshrrev_b32 v161, 16, v161
        v_mul_u32_u24 v161, 896, v161
        s_lshr_b32 s{sB}, s4, 1
        s_mul_i32 s{sB}, s{sB}, 320
        s_and_b32 s{sB}, s{sB}, 0xff80
        v_lshl_add_u32 v162, v160, 7, s{sB}
        v_add_u32 v162, v161, v162
        s_and_b32 s{sB}, s4, 1
        s_mul_i32 s{sB}, s{sB}, 960
        s_add_u32 s{sA}, s{sA}, s{sB}
        v_add_u32 v160, s{sA}, v160
        v_mul_u32_u24 v160, 1280, v160
        v_add_u32 v161, {58*1280}, v160''')
        a(f'''s_and_b32 s{sB}, s4, 1
        s_mul_i32 s{sOW}, s{sB}, {64*3840}
        v_add_u32 v169, s{sOW}, v162
        s_lshl_b32 s{sB}, s{sB}, 2
        s_lshr_b32 s{sOW}, s4, 1
        s_add_u32 s{sB}, s{sB}, s{sOW}
        s_lshl_b32 s{sB}, s{sB}, 8
        s_sub_u32 s{sA}, s5, 22
        s_mul_i32 s38, s{sB}, 1280
        s_lshl_b32 s70, s{sA}, 15
        s_add_u32 s38, s38, s70
        s_mul_i32 s70, s6, 7680
        v_lshlrev_b32 v171, 7, v1
        s_mul_i32 s{sA}, s{sA}, 26
        s_add_u32 s{sA}, s{sA}, s{sB}
        v_lshrrev_b32 v168, 1, v1
        v_min_u32 v168, 25, v168
        v_add_u32 v168, s{sA}, v168
        v_mul_u32_u24 v168, 1280, v168
        v_and_b32 v170, 1, v1
        v_lshl_add_u32 v168, v170, 7, v168''')
        a(f'''
        s_sub_u32 s{sUT}, 2, s3
        s_max_u32 s{sUT}, s{sUT}, {opts.get('ut', 1)}
        s_cmp_ge_u32 s3, 2
        s_cselect_b32 s{sUT}, 100, s{sUT}
        s_barrier
        s_cmp_lg_u32 s3, 0
        s_cbranch_scc1 L_b_nopf''')
        if PF:
            pf(a, SEQ[0])
        a('L_b_nopf:')
    def wait_params(a):
        a(f'''s_waitcnt vmcnt({NI1 if PF else 0}) lgkmcnt(0)
        s_cmp_eq_u32 s3, 0
        s_cbranch_scc1 L_b_w0
        s_waitcnt vmcnt(0)
        s_cmp_lg_u32 s3, 1
        s_cbranch_scc1 L_b_w0
        v_mov_b32 v162, 0
        v_mov_b32 v163, 1
        s_mov_b64 exec, 1
        global_atomic_add v162, v163, s[32:33]
        s_mov_b64 exec, -1
        L_b_w0:
        ;@reset''')
    def out_of_line(a):
        a(f'''s_branch L_b_kgen
        L_b_side:
        s_cmp_eq_u32 s3, 1
        s_cbranch_scc1 L_b_ut''')
        if PF:
            pf(a, SEQ[1])
        if opts.get('wopf', 1):
            a(f'''s_mul_i32 s{sA}, s6, {80*128}
            v_lshl_add_u32 v163, v1, 7, s{sA}
            global_load_dword v31, v163, s[14:15] ;touch
            v_add_u32 v163, 8192, v163
            s_mov_b64 exec, 0xffff
            global_load_dword v31, v163, s[14:15] ;touch
            s_mov_b64 exec, -1''')
        a(f'''s_branch L_b_kgen
        L_b_ut:
        s_sub_u32 s{sA}, s5, 22
        s_mul_i32 s{sA}, s{sA}, {205*1280}
        s_mul_i32 s{sB}, s4, 160
        s_and_b32 s{sB}, s{sB}, 0xff80
        s_add_u32 s{sA}, s{sA}, s{sB}
        v_lshrrev_b32 v161, 1, v1
        v_mul_u32_u24 v161, 1280, v161
        v_and_b32 v160, 1, v1
        v_lshl_add_u32 v160, v160, 7, v161
        s_mov_b32 exec_hi, {(1 << 28) - 1}''')
        for i in range(7):
            a(f'buffer_load_dword v31, v160, s[48:51], s{sA} offen ;touch\ns_add_u32 s{sA}, s{sA}, {30*1280}')
        a('s_mov_b64 exec, -1\n;@reset')
    def loop_end(a, cnt):
        assert cnt == 60
        a(f'''s_cmp_eq_u32 s{cnt}, s{sUT}
        s_cbranch_scc1 L_b_side''')
    def after_loop(a):
        stamp(a, 1)
    before_params = nop
    slot = lambda a, k: None
    def end(a):
        stamp(a, 3)
        if diag: a('s_waitcnt vmcnt(0)')
        stamp(a, 6, final=True)
    def pre_loop(a):
        if opts.get('pfonly'):
            a(f's_waitcnt vmcnt({NI1})')
            stamp(a, 0)
            a('s_cmp_lg_u32 s3, 1\ns_cbranch_scc1 L_x\ns_waitcnt vmcnt(0)\nv_mov_b32 v162, 0\nv_mov_b32 v163, 1\ns_mov_b64 exec, 1')
            if opts['pfonly'] == 1: a('global_atomic_add v162, v163, s[32:33]')
            a('s_mov_b64 exec, -1\nL_x:\ns_cmp_lg_u32 s3, 0\ns_cbranch_scc1 L_y')
            a(f's_waitcnt vmcnt({NI1//2})')
            stamp(a, 1)
            pf(a, SEQ[1])
            n2 = cnt_i(SEQ[1])
            a(f's_waitcnt vmcnt({n2})')
            stamp(a, 2)
            a(f's_waitcnt vmcnt({n2//2})')
            stamp(a, 4)
            a(f's_waitcnt vmcnt(0)')
            stamp(a, 5)
            a('s_branch L_z\nL_y:')
            for k in (1, 2, 4, 5): stamp(a, k)
            a('L_z:')
            stamp(a, 3)
            stamp(a, 6, final=True)
            a('s_endpgm')
    hooks = dict(pre_loop=pre_loop, before_params=before_params, after_params=after_params, after_u=nop, st=stamp, wait_params=wait_params, slot=slot, loop_end=loop_end,
                 after_loop=after_loop, out_of_line=out_of_line, before_barrier=nop, after_barrier=lambda a: stamp(a, 2), end=end)
    hooks['nou'] = opts.get('nou')
    hooks.update(stages=opts.get('stages', [2, 4, 6, 7]), look=opts.get('look', 6), age=opts.get('age', 5), ubar=opts.get('ubar', 1), prio=opts.get('cprio', 1), cx=opts.get('cx'), bres=opts.get('bres', 8), u2=opts.get('u2', 6))
    gen_b.gen_b(a, 6, hooks)
    a('L_end:')
    body = a.finish()
    if opts.get('align', 1):
        body = align8(body)
    txt = HEAD + '; @launch grid=(256,1,1) block=(512,1,1) lds=163840\n'
    txt += f'''.amdgcn_target "amdgcn-amd-amdhsa--gfx950"
.text
.globl {NAME}_kernel
.p2align 8
.type {NAME}_kernel,@function
{NAME}_kernel:
'''
    txt += '\n'.join(l if l.endswith(':') else '    ' + l for l in body if not l.startswith(';@'))
    txt += f'''
    s_endpgm
.section .rodata,"a"
.p2align 6
.amdhsa_kernel {NAME}_kernel
  .amdhsa_next_free_vgpr 256
  .amdhsa_next_free_sgpr 102
  .amdhsa_accum_offset 256
  .amdhsa_group_segment_fixed_size 0
  .amdhsa_kernarg_size 112
  .amdhsa_user_sgpr_count 2
  .amdhsa_user_sgpr_kernarg_segment_ptr 1
  .amdhsa_system_sgpr_workgroup_id_x 1
.end_amdhsa_kernel
'''
    return txt
if __name__ == '__main__':
    out = sys.argv[1] if len(sys.argv) > 1 else 'k.s'
    opts = json.loads(sys.argv[2]) if len(sys.argv) > 2 else {}
    open(out, 'w').write(build(opts))
```

```python
from asmlib import *
from gen_b import f32, LOG2E, zipl

SLOT = 49152
WOFF = 24576
WOB = 77824
WPB = 147456
KVI = 159744
FLAG = 163840 - 64
OBYTES = 2048 * 1280
KVS = 4096
KVBYTES = 11 * 16 * KVS
NCLEAR = 80
BIG = 0x7f000000

S_WAVE, S_XCD, S_IDX = 3, 4, 5
S_X, S_W, S_WPHI, S_WO, S_OUT, S_DBG, S_WS = 8, 10, 12, 14, 30, 32, 34
sRT, sP, sPQ, sT0, sT1, sT2, sT3 = 36, 37, 38, 39, 40, 41, 42
SRX, SRW, SRO, SRK = 44, 48, 52, 56
LANE = 1
MF32 = 'v_mfma_f32_32x32x16_bf16'
MF16 = 'v_mfma_f32_16x16x32_bf16'
CAP = 1 << 20


def srd(a, d, base, size, add=0):
    if add:
        a(f's_add_u32 s{d}, s{base}, {add}\ns_addc_u32 s{d+1}, s{base+1}, 0')
    else:
        a(f's_mov_b32 s{d}, s{base}\ns_mov_b32 s{d+1}, s{base+1}')
    a(f's_mov_b32 s{d+2}, {size}\ns_mov_b32 s{d+3}, 0x20000')


def pf_addr(a, vi, vx, vw, t, n, sa, sb):
    a(f'''
    s_and_b32 s{sa}, s{S_XCD}, 1
    s_mul_i32 s{sa}, s{sa}, 960
    s_lshr_b32 s{sb}, s{S_XCD}, 1
    s_mul_i32 s{sb}, s{sb}, 320
    s_and_b32 s{sb}, s{sb}, 0xff80
    v_add_u32 v{vx}, s{sa}, v{vi}
    v_mul_u32_u24 v{vx}, 1280, v{vx}
    v_subrev_u32 v{t}, 1152, v{vi}
    v_cmp_gt_u32 vcc, {n - 1152}, v{t}
    v_mul_u32_u24 v{t+1}, 21846, v{t}
    v_lshrrev_b32 v{t+1}, 16, v{t+1}
    v_mul_u32_u24 v{t+1}, 896, v{t+1}
    v_lshl_add_u32 v{t}, v{t}, 7, s{sb}
    v_add_u32 v{t}, v{t}, v{t+1}
    v_mov_b32 v{t+1}, {BIG}
    v_cndmask_b32 v{vw}, v{t+1}, v{t}, vcc
    v_cmp_gt_u32 vcc, 1152, v{vi}
    v_cndmask_b32 v{vx}, v{t+1}, v{vx}, vcc
    ''')


def pf_init(a, nall, sw, vx, vw, t, sa, sb):
    a(f'''
    s_lshl_b32 s{sa}, s{S_IDX}, 2
    s_add_u32 s{sa}, s{sa}, s{sw}
    v_mul_u32_u24 v{t+2}, 3277, v{LANE}
    v_lshrrev_b32 v{t+2}, 16, v{t+2}
    v_mul_u32_u24 v{t+3}, 20, v{t+2}
    v_sub_u32 v{t+3}, v{LANE}, v{t+3}
    v_mul_u32_u24 v{t+3}, 88, v{t+3}
    v_add_u32 v{t+3}, s{sa}, v{t+3}
    ''')
    pf_addr(a, t + 3, vx, vw, t, 1728, sa, sb)
    a(f'''
    v_lshl_add_u32 v{vx}, v{t+2}, 7, v{vx}
    v_mul_u32_u24 v{t+2}, {64*3840}, v{t+2}
    v_add_u32 v{vw}, v{vw}, v{t+2}
    ''')


def clear_check(a, late, lbl, vc, vz):
    a(f'''
    v_readfirstlane_b32 s{sT0}, v{vc}
    s_mov_b32 s{sT1}, 0
    s_cmp_lt_u32 s{sT0}, {NCLEAR}
    s_cbranch_scc1 {lbl}
    {lbl}_ok:
    ''')
    late.append(f'''
    ;@reset
    {lbl}:
    s_sleep 32
    global_load_dword v{vc}, v{vz}, {sr(S_DBG,2)} sc1
    s_add_u32 s{sT1}, s{sT1}, 1
    s_waitcnt vmcnt(0)
    v_readfirstlane_b32 s{sT0}, v{vc}
    s_cmp_ge_u32 s{sT1}, {CAP}
    s_cselect_b32 s{sT0}, {NCLEAR}, s{sT0}
    s_cmp_lt_u32 s{sT0}, {NCLEAR}
    s_cbranch_scc1 {lbl}
    s_branch {lbl}_ok
    ''')


def gen_a(a, opts, stamp):
    if opts.get('qtouch', 1):
        a(f'''
        s_cmp_gt_u32 s{S_WAVE}, 1
        s_cbranch_scc1 L_a_nt
        s_and_b32 s{sT0}, s{S_XCD}, 1
        s_mul_i32 s{sT0}, s{sT0}, 960
        s_mul_i32 s{sT1}, s{S_IDX}, 53
        s_add_u32 s{sT0}, s{sT0}, s{sT1}
        s_lshr_b32 s{sT1}, s{S_XCD}, 1
        s_mul_i32 s{sT1}, s{sT1}, 320
        s_and_b32 s{sT1}, s{sT1}, 0xff80
        s_mul_i32 s{sT2}, s{S_IDX}, 9
        s_lshl_b32 s{sT3}, s{S_WAVE}, 1
        s_cselect_b32 s{sT0}, s{sT2}, s{sT0}
        s_cselect_b32 s{sT1}, s{sT1}, 0
        v_lshrrev_b32 v2, s{sT3}, v{LANE}
        v_add_u32 v2, s{sT0}, v2
        v_min_u32 v2, 2047, v2
        v_mul_u32_u24 v2, 1280, v2
        v_bfe_u32 v3, v{LANE}, 0, s{sT3}
        v_lshl_add_u32 v3, v3, 7, s{sT1}
        v_add_u32 v2, v2, v3
        s_cselect_b32 exec_lo, 0x77777777, -1
        s_cselect_b32 exec_hi, 7, 0x1fffff
        s_waitcnt lgkmcnt(0)
        s_cselect_b64 s[6:7], {sr(S_W,2)}, {sr(S_X,2)}
        global_load_dword v31, v2, s[6:7] ;touch
        s_mov_b64 exec, -1
        L_a_nt:
        ''')
    if opts.get('ksplit'):
        a('s_load_dwordx2 s[30:31], s[0:1], 88\ns_load_dwordx4 s[32:35], s[0:1], 96')
    a(f'''
    s_and_b32 s{sT0}, s{S_XCD}, 1
    s_mul_i32 s{sT0}, s{sT0}, 22
    s_add_u32 s{sT0}, s{sT0}, s{S_IDX}
    s_lshr_b32 s{sRT}, s{sT0}, 2
    {f"s_add_u32 s{sT0}, s{sT0}, s{sRT}" if opts.get('mix', 1) else ""}
    s_and_b32 s{sT0}, s{sT0}, 3
    s_lshr_b32 s{sT1}, s{S_XCD}, 1
    s_lshl_b32 s{sT1}, s{sT1}, 2
    s_add_u32 s{sP}, s{sT0}, s{sT1}
    s_xor_b32 s{sPQ}, s{sP}, {opts.get('qswap', 1)}
    s_cmp_lt_u32 s{S_WAVE}, 4
    s_cbranch_scc1 L_a_C
    ''')
    late = []
    gen_l(a, opts, stamp, late)
    a(';@reset\nL_a_C:')
    gen_c(a, opts, stamp, late)
    a('s_endpgm')
    a(late)


def gen_l(a, opts, stamp, late):
    sLW, sSX, sSW, sCNT, sXB, sWB0, sPT, sWB, sWO, sC1, sC2 = 60, 61, 62, 63, 64, 65, 66, 67, 68, 69, 43
    sMK, sMQ, sM, sH, sK1, sK2, sHN, sFA = 70, 72, 74, 6, 16, 17, 18, 19
    SRWO = 20
    VX, VW = 2, 8
    LD, RD, SEL = 32, 80, 88
    VWO, VH, VK, VKW, VCL, VP, VZ, VC, VHV = 96, 97, 98, 102, 103, 104, 108, 109, 110
    a(f's_setprio {opts.get("lprio", 1)}\ns_sub_u32 s{sLW}, s{S_WAVE}, 4')
    NALL = 0 if opts.get('qtouch', 1) else 1
    if NALL:
        pf_init(a, NALL, sLW, 20, 21, 22, sT1, sT2)
    ST = opts.get('start')
    if ST:
        real_stamp, stamp = stamp, (lambda a, i, final=False: real_stamp(a, i, final) if final else None)
        real_stamp(a, 2)
    a('s_waitcnt lgkmcnt(0)')
    if ST:
        real_stamp(a, 4)
    srd(a, SRX, S_X, 2048 * 1280)
    srd(a, SRW, S_W, 640 * 3840)
    if NALL:
        nl = 20 * NALL
        a(f's_mov_b32 exec_hi, {(1 << (nl - 32)) - 1}' if nl > 32 else f's_mov_b64 exec, {(1 << nl) - 1}')
        a(f'buffer_load_dword v31, v20, {sr(SRX,4)}, 0 offen ;touch')
        a(f'buffer_load_dword v31, v21, {sr(SRW,4)}, 0 offen ;touch')
        a('s_mov_b64 exec, -1')
    a(f's_lshr_b32 s{sFA}, s{sP}, 2\ns_xor_b32 s{sFA}, s{sFA}, s{sP}\ns_and_b32 s{sFA}, s{sFA}, 1')
    NF = opts.get('nfast', 0)
    if NF:
        a(f"""
        s_cbranch_scc1 L_l_slow
        s_lshr_b32 s{sT1}, s{S_IDX}, 1
        s_lshl_b32 s{sT1}, s{sT1}, 2
        s_add_u32 s{sT1}, s{sT1}, s{sLW}
        v_mul_u32_u24 v25, 44, v{LANE}
        v_add_u32 v25, s{sT1}, v25
        """)
        pf_addr(a, 25, 20, 21, 22, 1728, sT1, sT2)
        a('s_mov_b32 exec_hi, 0xff')
        for c in range(NALL, NALL + NF):
            a(f's_mov_b32 s{sT1}, {c*64*3840}\nbuffer_load_dword v31, v20, {sr(SRX,4)}, 0 offen offset:{128*c} ;touch\nbuffer_load_dword v31, v21, {sr(SRW,4)}, s{sT1} offen ;touch')
        a('s_mov_b64 exec, -1\nL_l_slow:')
    a(f"""
    v_lshrrev_b32 v14, 3, v{LANE}
    v_lshrrev_b32 v15, 4, v{LANE}
    v_and_b32 v16, 7, v{LANE}
    s_and_b32 s{sT1}, s{sLW}, 1
    s_lshl_b32 s{sT1}, s{sT1}, 2
    v_xor_b32 v17, v15, v16
    v_xor_b32 v17, s{sT1}, v17
    v_mul_u32_u24 v19, 1280, v14
    v_lshl_add_u32 v{VX}, v17, 4, v19
    v_and_b32 v15, 1, v15
    v_lshlrev_b32 v15, 2, v15
    v_xor_b32 v17, v15, v16
    v_lshl_add_u32 v{VWO}, v17, 4, v19
    s_lshr_b32 s{sT1}, s{sT1}, 1
    v_xor_b32 v17, s{sT1}, v17
    v_mul_u32_u24 v18, 3840, v14
    v_lshl_add_u32 v18, v17, 4, v18
    s_mul_i32 s{sT1}, s{sP}, 80
    s_and_b32 s{sT1}, s{sT1}, 0xffc0
    s_add_u32 s{sT1}, s{sT1}, 1280
    s_mul_i32 s{sT2}, s{sPQ}, 80
    s_and_b32 s{sT2}, s{sT2}, 0xffc0
    v_add_u32 v{VW}, s{sT1}, v18
    v_add_u32 v{VW+4}, s{sT2}, v18
    v_add_u32 v{VW+2}, 1280, v{VW}
    s_and_b32 s{sT1}, s{sP}, 3
    v_subrev_u32 v15, s{sT1}, v17
    v_cmp_gt_u32 {sr(sMK,2)}, 5, v15
    s_and_b32 s{sT1}, s{sPQ}, 3
    v_subrev_u32 v15, s{sT1}, v17
    v_and_b32 v15, 7, v15
    v_cmp_gt_u32 {sr(sMQ,2)}, 6, v15
    v_cmp_eq_u32 vcc, 5, v15
    v_mov_b32 v16, {BIG}
    v_cndmask_b32 v{VW+4}, v{VW+4}, v16, vcc
    """)
    for i in range(1, 6):
        a(f'v_add_u32 v{VX+i}, {i*32*1280}, v{VX}')
    for p in range(3):
        a(f'v_add_u32 v{VW+2*p+1}, {32*3840}, v{VW+2*p}')
    a(f"""
    s_mul_i32 s{sSX}, s{sRT}, 24
    s_add_u32 s{sSX}, s{sSX}, s{sLW}
    s_mul_i32 s{sSX}, s{sSX}, {8*1280}
    s_mul_i32 s{sSW}, s{sLW}, {8*3840}
    s_lshl_b32 m0, s{sLW}, 10
    s_mov_b32 s{sCNT}, 0
    """)
    if ST:
        real_stamp(a, 5)
    a('L_l_loop:')
    SPL = opts.get('split', 8)
    for i in range(12):
        if i in (6, 10):
            a(f's_mov_b64 exec, {sr(sMK if i == 6 else sMQ,2)}')
        if opts.get('nodma'):
            pass
        elif i < 6:
            a(f'buffer_load_dwordx4 v{VX+i}, {sr(SRX,4)}, s{sSX} offen lds')
        else:
            a(f'buffer_load_dwordx4 v{VW+i-6}, {sr(SRW,4)}, s{sSW} offen lds')
        a('s_add_u32 m0, m0, 4096')
        if i == 3:
            a(f's_cmp_eq_u32 s{sCNT}, 0\ns_cbranch_scc1 L_l_setup\nL_l_back:')
        if i + 1 == SPL:
            a(f"""
            s_cmp_eq_u32 s{sCNT}, 0
            s_cbranch_scc1 L_l_first
            s_waitcnt vmcnt({SPL})
            s_barrier
            L_l_first:""")
    a(f"""
    s_mov_b64 exec, -1
    s_cmp_lt_u32 m0, {2*SLOT}
    s_cselect_b32 s{sT1}, {3*SLOT}, 0
    s_add_u32 m0, m0, s{sT1}
    s_sub_u32 m0, m0, {2*SLOT}
    s_add_u32 s{sSX}, s{sSX}, 128
    s_add_u32 s{sSW}, s{sSW}, {64*3840}
    s_add_u32 s{sCNT}, s{sCNT}, 1
    s_cmp_lt_u32 s{sCNT}, 10
    s_cbranch_scc1 L_l_loop
    """)
    b = Asm()
    b(f"""
    ;@reset
    L_l_setup:
    s_cmp_ge_u32 s{S_IDX}, 10
    s_cselect_b32 s{sT0}, 10, 0
    s_cselect_b32 s{sT1}, 4, 0
    s_sub_u32 s{sT0}, s{S_IDX}, s{sT0}
    s_lshl_b32 s{sT0}, s{sT0}, 7
    s_mul_i32 s{sWO}, s{sLW}, {8*1280}
    s_add_u32 s{sWO}, s{sWO}, s{sT0}
    s_lshl_b32 s{sWB}, s{sLW}, 10
    s_add_u32 s{sWB}, s{sWB}, {WOB}
    """)
    srd(b, SRWO, S_WO, 640 * 1280)
    b(f's_cmp_ge_u32 s{S_IDX}, 20\ns_cselect_b32 s{SRWO+2}, 0, s{SRWO+2}')
    srd(b, SRO, S_WS, OBYTES)
    srd(b, SRK, S_WS, KVBYTES, OBYTES)
    b(f"""
    s_mul_i32 s{sC1}, s{sRT}, 6
    s_add_u32 s{sC1}, s{sC1}, s{sLW}
    s_lshl_b32 s{sC1}, s{sC1}, 4
    s_add_u32 s{sC1}, s{sC1}, s{sPQ}
    s_mul_i32 s{sC1}, s{sC1}, 2560
    s_add_u32 s{sC2}, s{sC1}, {4*40960}
    s_cmp_ge_u32 s{sLW}, 2
    s_cselect_b32 s{sC2}, {BIG}, s{sC2}
    v_lshlrev_b32 v{VCL}, 4, v{LANE}
    v_mov_b32 v{VP}, -1
    v_mov_b32 v{VP+1}, -1
    v_mov_b32 v{VP+2}, -1
    v_mov_b32 v{VP+3}, -1
    v_mov_b32 v{VZ}, 0
    v_mov_b32 v{VHV}, 0
    v_and_b32 v14, 15, v{LANE}
    v_lshrrev_b32 v15, 4, v{LANE}
    s_lshl_b32 s{sT0}, s{sLW}, 6
    v_add_u32 v16, s{sT0}, v14
    s_lshl_b32 s{sT1}, s{sPQ}, 12
    v_lshl_add_u32 v17, v15, 16, s{sT1}
    """)
    for c in range(4):
        b(f"""v_add_u32 v18, {16*c}, v16
        v_min_u32 v18, 239, v18
        v_lshl_add_u32 v{VK+c}, v18, 4, v17""")
    b(f"""
    v_lshrrev_b32 v17, 1, v15
    v_lshl_add_u32 v16, v17, 4, v16
    v_and_b32 v17, 1, v15
    v_lshlrev_b32 v17, 3, v17
    v_lshl_add_u32 v{VKW}, v16, 4, v17
    v_add_u32 v{VKW}, {KVI}, v{VKW}
    v_and_b32 v16, 1, v14
    v_lshlrev_b32 v16, 4, v16
    v_mov_b32 v17, 0x3f80
    v_lshlrev_b32 v16, v16, v17
    v_lshrrev_b32 v17, 1, v14
    """)
    for m in range(0, 8, 2):
        b(f'v_cmp_eq_u32 vcc, {m}, v17\nv_cmp_eq_u32 {sr(sM,2)}, {m+1}, v17\nv_cndmask_b32 v{SEL+m}, 0, v16, vcc\nv_cndmask_b32 v{SEL+m+1}, 0, v16, {sr(sM,2)}')
    b(f"""
    v_lshl_add_u32 v{VH}, v14, 16, s{sT1}
    s_lshl_b32 s{sHN}, s{sRT}, 4
    s_add_u32 s{sHN}, s{sHN}, s{sP}
    s_lshl_b32 s{sHN}, s{sHN}, 12
    s_cmp_eq_u32 s{sLW}, 0
    s_cselect_b32 s{sHN}, s{sHN}, {BIG}
    s_mov_b32 s{sK1}, {4*16*KVS}
    s_mov_b32 s{sK2}, {8*16*KVS}
    s_mov_b64 {sr(sH,2)}, 0xfff
    """)
    b([f's_mov_b64 {sr(sM+2*m,2)}, -1' for m in range(3)])
    b('s_branch L_l_back')

    def wo(i0, i1):
        for i in (list(range(5, 20)) + list(range(5)))[i0:i0 if opts.get('nowo') else i1]:
            a(f's_add_u32 m0, s{sWB}, {4096*i}\ns_add_u32 s{sT0}, s{sWO}, {32*1280*i}')
            a(f'buffer_load_dwordx4 v{VWO}, {sr(SRWO,4)}, s{sT0} offen lds')
    W0 = opts.get('wo0', 6)
    W1 = opts.get('wo1', 15)
    a(f'global_load_dword v{VC}, v{VZ}, {sr(S_DBG,2)} sc1')
    LW = opts.get('latewo', 0)
    if LW:
        a(f's_cmp_eq_u32 s{sFA}, 0\ns_cbranch_scc1 L_l_f1')
        late.append(f';@reset\nL_l_f1:\ns_waitcnt vmcnt(1)\ns_barrier\ns_waitcnt vmcnt(0)\ns_branch L_l_f1b')
    wo(0, W0)
    a(f's_waitcnt vmcnt({1 if opts.get("nowo") else W0 + 1})\ns_barrier')
    wo(W0, W1)
    a(f's_waitcnt vmcnt({W1})\nL_l_f1b:')
    clear_check(a, late, 'L_l_clr', VC, VZ)
    a('s_barrier')
    if LW == 3:
        a(f's_cmp_lg_u32 s{sFA}, 0\ns_cbranch_scc1 L_l_f3')
        wo(0, W1)
        a('L_l_f3:')
    elif LW:
        a(f's_cmp_eq_u32 s{sFA}, 0\ns_cbranch_scc1 L_l_f2')
    wo(W1, 20)
    a('L_l_f2:')
    for so in (sC1, sC2):
        a(f"""buffer_store_dwordx4 {vr(VP,4)}, v{VCL}, {sr(SRO,4)}, s{so} offen sc1
        buffer_store_dwordx4 {vr(VP,4)}, v{VCL}, {sr(SRO,4)}, s{so} offen offset:1024 sc1
        s_mov_b32 exec_hi, 0
        buffer_store_dwordx4 {vr(VP,4)}, v{VCL}, {sr(SRO,4)}, s{so} offen offset:2048 sc1
        s_mov_b32 exec_hi, -1""")
    a(f"""
    s_mov_b32 s{sCNT}, 0
    s_waitcnt vmcnt(0)
    """)
    stamp(a, 2)
    a(f"""
    s_setprio 3
    s_barrier
    """)
    if opts.get('early1', 1) == 1:
        a(f's_mov_b64 exec, 1\nbuffer_store_dword v{VZ}, v{VZ}, {sr(SRK,4)}, s{sHN} offen offset:3840 sc1')
    if LW == 2:
        a(f's_mov_b64 exec, -1\ns_cmp_lg_u32 s{sFA}, 0\ns_cbranch_scc1 L_l_poll')
        wo(0, 20)
        a(';@reset')
    a(f"""
    L_l_poll:
    s_mov_b64 exec, {sr(sH,2)}
    buffer_load_dword v{VHV}, v{VH}, {sr(SRK,4)}, 0 offen offset:3840 sc1
    s_mov_b64 exec, -1
    s_cmp_lg_u32 s{sCNT}, 0
    s_cbranch_scc1 L_l_nob
    s_barrier
    """)
    if LW == 1:
        a(f's_cmp_lg_u32 s{sFA}, 0\ns_cbranch_scc1 L_l_nob')
        wo(0, 20)
        a(';@reset')
    a(f"""
    L_l_nob:
    s_waitcnt vmcnt(0)
    {"s_sleep %d" % opts['psleep'] if opts.get('psleep') else ""}
    s_add_u32 s{sCNT}, s{sCNT}, 1
    s_cmp_ge_u32 s{sCNT}, {CAP}
    s_cbranch_scc1 L_l_got1
    v_cmp_eq_u32 {sr(sH,2)}, -1, v{VHV}
    s_bcnt1_i32_b32 s{sT0}, s{sH}
    s_cmp_gt_u32 s{sT0}, {opts.get('h1_k', 0)}
    s_cbranch_scc1 L_l_poll
    """)
    stamp(a, 4)
    a('L_l_poll2:')
    for m in range(3):
        a(f's_mov_b64 exec, {sr(sM+2*m,2)}\ns_cbranch_execz L_l_sk{m}')
        for c in range(4):
            a(f'buffer_load_dwordx4 {vr(LD+16*m+4*c,4)}, v{VK+c}, {sr(SRK,4)}, {("0", f"s{sK1}", f"s{sK2}")[m]} offen sc1')
        a(f'L_l_sk{m}:')
    a(f"""
    s_mov_b64 exec, -1
    s_add_u32 s{sCNT}, s{sCNT}, 1
    s_cmp_ge_u32 s{sCNT}, {CAP}
    s_cbranch_scc1 L_l_got1
    """)
    h2 = f's_mov_b64 exec, 1\nbuffer_store_dword v{VZ}, v{VZ}, {sr(SRK,4)}, s{sHN} offen offset:3968 sc1\ns_mov_b64 exec, -1'
    E2 = opts.get('early2', 8)
    if E2 >= 3:
        a(f's_waitcnt vmcnt({E2})\n{h2}\ns_waitcnt vmcnt(1)')
    else:
        a('s_waitcnt vmcnt(0)')
    if E2 == 2:
        a(h2)
    for m in range(3):
        for c in range(4):
            r, d = LD + 16 * m + 4 * c, RD + 4 * (c >> 1)
            a(f'{MF16} {vr(d,4)}, {vr(SEL+4*(c&1),4)}, {vr(r,4)}, {"0" if m == 0 and not c & 1 else vr(d,4)}')
            a(f'v_max3_u32 v11, v{r}, v{r+1}, {"v11" if c else "0"}\nv_max3_u32 v11, v11, v{r+2}, v{r+3}')
        a(f'v_cmp_eq_u32 {sr(sM+2*m,2)}, -1, v11')
    a(f"""
    s_or_b64 vcc, {sr(sM,2)}, {sr(sM+2,2)}
    s_or_b64 vcc, vcc, {sr(sM+4,2)}
    s_cbranch_scc1 L_l_poll2
    L_l_got1:
    """)
    stamp(a, 5)
    for i in range(4):
        a(f'v_cvt_pk_bf16_f32 v{12+i}, v{RD+2*i}, v{RD+2*i+1}')
    a(f"""
    ds_write_b64 v{VKW}, v[12:13]
    ds_write_b64 v{VKW}, v[14:15] offset:512
    s_waitcnt lgkmcnt(0)
    s_barrier
    """)
    if E2 == 1:
        a(f's_mov_b64 exec, 1\nbuffer_store_dword v{VZ}, v{VZ}, {sr(SRK,4)}, s{sHN} offen offset:3968 sc1\ns_mov_b64 exec, -1')
    stamp(a, 3)
    stamp(a, 6, final=True)
    a('s_endpgm')
    a(b.lines)


def gen_c(a, opts, stamp, late):
    sHH, sPG, sDEL, sCNT, sC = 60, 61, 62, 63, 64
    sHM = 66
    sO1, sO2, sOB, sEPS, sQ0, sHN, sH2, sH = 68, 69, 70, 71, 72, 48, 49, 50
    AX, AW, AE, AKV, AO = 2, 4, 8, 16, 24
    ACC, FR, WP, PK = 32, 128, 184, 216
    PKT = (216, 232, 168)
    ONE = 248
    AS = 251
    T = lambda i: PK + i
    a(f's_and_b32 s{sHH}, s{S_WAVE}, 1\ns_lshr_b32 s{sPG}, s{S_WAVE}, 1')
    c32, hf, r4, cq, fh, q4, c16 = (T(i) for i in range(7))
    t0, t1, t2, t3 = (T(i) for i in range(8, 12))
    a(f'''
    v_and_b32 v{c32}, 31, v{LANE}
    v_lshrrev_b32 v{hf}, 5, v{LANE}
    v_bfe_u32 v{r4}, v{LANE}, 2, 2
    v_and_b32 v{cq}, 3, v{LANE}
    v_bfe_u32 v{fh}, v{LANE}, 4, 1
    v_lshrrev_b32 v{q4}, 4, v{LANE}
    v_and_b32 v{c16}, 15, v{LANE}
    s_mov_b32 s{sHM}, 0
    s_mov_b32 s{sHM+1}, -1
    v_bfe_u32 v{t0}, v{LANE}, 1, 3
    v_xor_b32 v{t0}, v{t0}, v{q4}
    v_lshlrev_b32 v{t0}, 4, v{t0}
    v_lshl_add_u32 v{t0}, v{c16}, 7, v{t0}
    s_mul_i32 s{sT0}, s{sPG}, {96*128}
    v_add_u32 v{AX}, s{sT0}, v{t0}
    v_xor_b32 v{AX+1}, 64, v{AX}
    s_and_b32 s{sT0}, s{sP}, 3
    s_lshl_b32 s{sT0}, s{sT0}, 4
    s_and_b32 s{sT1}, s{sPQ}, 3
    s_lshl_b32 s{sT1}, s{sT1}, 4
    s_add_u32 s{sT2}, s{sT1}, 88
    s_mul_i32 s{sT3}, s{sHH}, 40
    s_add_u32 s{sT0}, s{sT0}, s{sT3}
    s_add_u32 s{sT1}, s{sT1}, s{sT3}
    s_add_u32 s{sT1}, s{sT1}, 16384
    s_lshl_b32 s{sT3}, s{sHH}, 3
    s_sub_u32 s{sT2}, s{sT2}, s{sT3}
    s_and_b32 s{sT2}, s{sT2}, 127
    s_add_u32 s{sT2}, s{sT2}, 16384
    v_lshl_add_u32 v{t0}, v{q4}, 3, v{r4}
    v_lshlrev_b32 v{t0}, 7, v{t0}
    v_add_u32 v{t0}, {WOFF}, v{t0}
    v_lshrrev_b32 v{t1}, 1, v{r4}
    v_lshl_add_u32 v{t1}, v{t1}, 1, v{fh}
    v_lshlrev_b32 v{t1}, 5, v{t1}
    v_and_b32 v{t2}, 1, v{cq}
    v_lshrrev_b32 v{t3}, 1, v{cq}
    v_lshl_add_u32 v{t3}, v{t2}, 1, v{t3}
    v_lshl_add_u32 v{AW}, v{t3}, 3, s{sT0}
    v_lshl_add_u32 v{AW+2}, v{t3}, 3, s{sT1}
    s_add_u32 s{sT0}, s{sT0}, 32
    s_add_u32 s{sT1}, s{sT1}, 32
    v_lshl_add_u32 v{AW+1}, v{t2}, 13, s{sT0}     ; k4, v4
    v_mov_b32 v{t2}, s{sT1}
    v_mov_b32 v{t3}, s{sT2}
    v_cmp_eq_u32 vcc, 2, v{cq}
    v_cndmask_b32 v{AW+1}, v{AW+1}, v{t2}, vcc
    v_cmp_eq_u32 vcc, 3, v{cq}
    v_cndmask_b32 v{AW+1}, v{AW+1}, v{t3}, vcc
    v_xad_u32 v{AW}, v{AW}, v{t1}, v{t0}
    v_xad_u32 v{AW+1}, v{AW+1}, v{t1}, v{t0}
    v_xad_u32 v{AW+2}, v{AW+2}, v{t1}, v{t0}
    ''')
    a(f'''
    s_lshl_b32 s{sT0}, s{sP}, 1
    s_add_u32 s{sT0}, s{sT0}, s{sHH}
    s_mul_i32 s{sT0}, s{sT0}, 800
    s_lshl_b32 s{sT1}, s{sPQ}, 1
    s_add_u32 s{sT1}, s{sT1}, s{sHH}
    s_mul_i32 s{sT1}, s{sT1}, 800
    v_lshlrev_b32 v29, 4, v{LANE}
    s_lshl_b32 s{sT2}, s{S_WAVE}, 11
    s_add_u32 s{sT2}, s{sT2}, {WPB}
    s_mov_b32 m0, s{sT2}
    s_waitcnt lgkmcnt(0)
    ''')
    srd(a, SRX, S_WPHI, 32 * 800)
    a(f'''
    buffer_load_dwordx4 v29, {sr(SRX,4)}, s{sT0} offen lds
    s_add_u32 m0, m0, 1024
    buffer_load_dwordx4 v29, {sr(SRX,4)}, s{sT1} offen lds
    ''')
    srd(a, SRO, S_WS, OBYTES)
    srd(a, SRK, S_WS, KVBYTES, OBYTES)
    main_a, a = a, Asm()
    a(f'''
    v_and_b32 v{t0}, 9, v{LANE}
    v_bfe_u32 v{t1}, v{LANE}, 2, 1
    v_lshl_or_b32 v{t0}, v{t1}, 1, v{t0}
    v_bfe_u32 v{t1}, v{LANE}, 1, 1
    v_lshl_or_b32 v{t0}, v{t1}, 2, v{t0}         ; sigma
    s_lshl_b32 s{sT0}, s{sHH}, 1
    s_add_u32 s{sT0}, s{sT0}, s{sPG}
    s_mul_i32 s{sT0}, s{sT0}, {96*128}
    v_lshl_add_u32 v{t1}, v{c32}, 7, s{sT0}
    v_mul_u32_u24 v{t2}, 5, v{hf}
    ''')
    for i in (0, 1, 2, 3, 4, 7):
        a(f'v_add_u32 v{t3}, {i}, v{t2}' if i < 5 else f'v_add_u32 v{t3}, 10, v{hf}')
        a(f'v_xor_b32 v{t3}, v{t3}, v{t0}\nv_lshl_add_u32 v{AE+i}, v{t3}, 3, v{t1}')
    a(f'''
    v_lshl_add_u32 v{t1}, v{c16}, 7, s{sT0}
    v_lshl_add_u32 v{t3}, v{fh}, 1, v{hf}
    v_add_u32 v{t3}, 12, v{t3}
    v_xor_b32 v{t3}, v{t3}, v{t0}
    v_lshl_add_u32 v{AE+5}, v{t3}, 3, v{t1}
    ''')
    a(f'''
    v_and_b32 v{t0}, 1, v{r4}
    v_lshrrev_b32 v{t1}, 1, v{r4}
    v_lshl_or_b32 v{t0}, v{t1}, 2, v{t0}
    v_lshl_or_b32 v{t0}, v{fh}, 3, v{t0}
    v_xor_b32 v{t0}, v{t0}, v{cq}
    v_lshl_add_u32 v{t1}, v{q4}, 3, v{r4}
    s_mul_i32 s{sT0}, s{sHH}, {192*128}
    v_lshl_add_u32 v{t1}, v{t1}, 7, s{sT0}
    v_lshl_add_u32 v{AKV}, v{t0}, 3, v{t1}
    v_xor_b32 v{AKV+2}, 32, v{AKV}
    v_xor_b32 v{AKV+4}, 64, v{AKV}
    s_lshl_b32 s{sT0}, s{sPG}, 5
    s_xor_b32 s{sT0}, s{sT0}, 0x60
    v_xor_b32 v{AKV+6}, s{sT0}, v{AKV}
    ''')
    for i in range(4):
        a(f'v_xor_b32 v{AKV+2*i+1}, 16, v{AKV+2*i}')
    a(f'''
    v_bfe_u32 v{t0}, v{LANE}, 2, 1
    v_bfe_u32 v{t1}, v{LANE}, 3, 1
    v_lshl_add_u32 v{t1}, v{t0}, 1, v{t1}
    v_lshl_add_u32 v{t1}, v{t1}, 2, v{cq}
    v_add_u32 v{t2}, 80, v{cq}
    v_cmp_le_u32 vcc, 16, v{c32}
    v_cndmask_b32 v{t1}, v{t1}, v{t2}, vcc
    v_cndmask_b32 v{t0}, 8, 7, vcc
    v_mov_b32 v{t2}, 84
    v_cmp_le_u32 vcc, 24, v{c32}
    v_cndmask_b32 v{t1}, v{t1}, v{t2}, vcc
    s_mul_i32 s{sT0}, s{sHH}, 1920
    s_add_u32 s{sT0}, s{sT0}, {KVI}
    v_lshl_add_u32 v{t1}, v{t1}, 4, s{sT0}
    ''')
    oq = lambda ph: ph & 3 if ph < 8 else 4
    op = lambda ph: 8 * (ph >> 2) if ph < 8 else 8 * (ph - 8)
    for t in range(5):
        a(f'''v_cndmask_b32 v{t2}, {oq(t)}, {oq(5+t)}, {sr(sHM,2)}
        v_cndmask_b32 v{t3}, {op(t)}, {op(5+t)}, {sr(sHM,2)}
        v_lshl_add_u32 v{t2}, v{t2}, v{t0}, v{t3}
        v_add_u32 v{AO+t}, v{t1}, v{t2}''')
    a(f'''
    s_lshl_b32 s{sT0}, s{sRT}, 4
    s_add_u32 s{sT0}, s{sT0}, s{sP}
    s_lshl_b32 s{sT0}, s{sT0}, 12
    s_cmp_eq_u32 s{S_WAVE}, 3
    s_cselect_b32 s{sHN}, s{sT0}, {BIG}
    s_mul_i32 s{sT1}, s{sHH}, 1920
    s_add_u32 s{sT0}, s{sT0}, s{sT1}
    s_mul_i32 s{sT1}, s{sPG}, {1280 - 128}
    s_add_u32 s{sT0}, s{sT0}, s{sT1}
    v_lshl_add_u32 v{t1}, v{c16}, 4, s{sT0}
    s_lshl_b32 s{sT1}, s{sPG}, 3
    v_mov_b32 v{t3}, {BIG}
    v_cmp_gt_u32 vcc, s{sT1}, v{c16}
    v_cndmask_b32 v{t1}, v{t1}, v{t3}, vcc
    s_sub_u32 s{sT1}, 8, s{sPG}
    v_lshl_add_u32 v{AS}, v{q4}, s{sT1}, v{t1}
    s_lshl_b32 s{sT1}, 4, s{sT1}
    v_add_u32 v{t2}, s{sT1}, v{t1}
    v_cmp_gt_u32 {sr(sQ0,2)}, 16, v{LANE}
    v_cndmask_b32 v{AS+1}, v{t3}, v{t2}, {sr(sQ0,2)}
    s_mul_i32 s{sT0}, s{sRT}, 6
    s_mul_i32 s{sT1}, s{sPG}, 3
    s_add_u32 s{sT0}, s{sT0}, s{sT1}
    ''')
    for t in range(3):
        a(f'''s_cmp_lt_u32 s{sT0}, {64 - t}
        s_cselect_b32 s{sT1}, 0x3f80, 0
        v_mov_b32 v{ONE+t}, s{sT1}''')
    a(f'''
    s_lshl_b32 s{sT0}, s{sT0}, 5
    s_lshl_b32 s{sT1}, s{sPQ}, 1
    s_add_u32 s{sT0}, s{sT0}, s{sT1}
    s_add_u32 s{sT0}, s{sT0}, s{sHH}
    s_mul_i32 s{sT0}, s{sT0}, 1280
    v_lshl_add_u32 v{AS+2}, v{LANE}, 4, s{sT0}
    v_cndmask_b32 v{AS+3}, v{t3}, v{AS+2}, {sr(sQ0,2)}
    ''')
    a(f'''
    v_lshrrev_b32 v{t0}, 1, v{cq}
    v_lshl_add_u32 v{t0}, v{fh}, 1, v{t0}        ; a
    v_mul_u32_u24 v{t1}, 40, v{r4}
    v_add_u32 v{t1}, s{sT2}, v{t1}
    v_lshl_add_u32 v{t0}, v{t0}, 3, v{t1}
    v_mul_u32_u24 v{t3}, 160, v{hf}
    v_add_u32 v{t2}, v{t0}, v{t3}
    v_add_u32 v{t3}, v{t1}, v{t3}
    s_waitcnt vmcnt(0)
    ''')
    for w in range(2):
        for o in range(2):
            b = WP + 16 * w + 8 * o
            for t in range(2):
                a(f'ds_read_b64_tr_b16 {vr(b+2*t,2)}, v{t3 if o else t2} offset:{1024*w + 320*t + 32*o}')
            a(f'ds_read_b64_tr_b16 {vr(b+4,2)}, v{t1 if o else t0} offset:{1024*w + 640 + 32*o}')
    a(f'''
    v_bfe_u32 v29, v{LANE}, 2, 1
    v_mov_b32 v30, 0x80008000
    v_mul_lo_u32 v29, v29, v30
    ''')
    for w in range(2):
        for o in range(2):
            b = WP + 16 * w + 8 * o
            for i in range(6):
                a(f'v_xor_b32 v{b+i}, v29, v{b+i}')
            for i in (4, 5):
                a(f'v_cndmask_b32 v{b+i}, 0, v{b+i}, {sr(sHM,2)}' if w else f'v_cndmask_b32 v{b+i}, v{b+i}, 0, {sr(sHM,2)}')
            a(f'v_mov_b32 v{b+6}, 0\nv_mov_b32 v{b+7}, 0')
    a(f's_mov_b32 s{sC}, {f32(LOG2E)}\ns_mov_b32 s{sO1}, 40960\ns_mov_b32 s{sO2}, 81920')
    a(f'''
    v_mov_b32 v31, 0
    ''')
    fill = [l for l in a.lines if not l.startswith(';')]
    a = main_a
    if opts.get('m16hack'):
        a([f'v_mov_b32 v{ACC+i}, 0' for i in range(96)])

    KM, VM, LF, QM = (lambda t, o=o: PKT[t] + o for o in (0, 4, 8, 12))

    def pack(t):
        b = ACC + 32 * t
        cv = [f'v_cvt_pk_bf16_f32 v{PKT[t]+i}, v{b+2*i}, v{b+2*i+1}' for i in range(16)]
        sw = [f'v_permlane16_swap_b32 v{PKT[t]+4*f+i}, v{PKT[t]+4*f+i+2}' for f in range(4) for i in range(2)]
        return cv[:4] + cv[8:12] + sw[:2] + cv[4:8] + sw[4:6] + cv[12:] + [f'v_cndmask_b32 v{LF(t)+2}, v{LF(t)+2}, v{ONE+t}, {sr(sHM,2)}']

    def vwr(t):
        return [f'ds_write_b64 v{AE+5}, {vr(VM(t),2)} offset:{4096*t}', f'ds_write_b64 v{AE+5}, {vr(VM(t)+2,2)} offset:{4096*t+2048}',
                f'ds_write_b64 v{AE+7}, {vr(LF(t)+2,2)} offset:{4096*t}']

    def wphi(t, w):
        b = FR if (t, w) == (0, 1) else ACC + 32 * t
        m = QM(t) if w else KM(t)
        o = []
        for s in range(2):
            for j in range(2):
                d = vr(b + 16 * j, 16)
                o.append(f'{MF32} {d}, {vr(WP+16*w+8*j+4*s,4)}, {vr(LF(t) if s else m,4)}, {d if s else "0"}')
        return o

    def softmax(t, ph, b=None):
        b = b or ACC + 32 * t
        m, m2, s, s2 = b + 20, b + 21, b + 22, b + 24
        o = [f'v_max3_f32 v{m}, v{b}, v{b+1}, v{b+2}', f'v_max3_f32 v{m2}, v{b+3}, v{b+4}, v{b+5}']
        for i in range(6, 20, 2):
            x = m if i % 4 == 2 else m2
            o.append(f'v_max3_f32 v{x}, v{x}, v{b+i}, v{b+i+1}')
        o += [f'v_max_f32 v{m}, v{m}, v{m2}', f'v_mul_f32 v{m}, s{sC}, v{m}']
        fm = [f'v_pk_fma_f32 {vr(b+2*i,2)}, {vr(b+2*i,2)}, {sr(sC,2)}, {vr(m,2)} op_sel_hi:[1,0,0] neg_lo:[0,0,1] neg_hi:[0,0,1]' for i in range(10)]
        ex = [f'v_exp_f32 v{b+i}, v{b+i}' for i in range(20)]
        ad = {1: f'v_pk_add_f32 {vr(s,2)}, {vr(b,2)}, {vr(b+2,2)}'}
        for i in range(2, 10):
            ad[i] = f'v_pk_add_f32 {vr(s,2)}, {vr(s,2)}, {vr(b+2*i,2)}'
        o += fm[:2]
        for i in range(10):
            o += ex[2 * i:2 * i + 2]
            if i + 2 < 10:
                o.append(fm[i + 2])
            if i - 1 in ad:
                o.append(ad[i - 1])
        o += [ad[9], f'v_add_f32 v{s}, v{s}, v{s+1}', f'v_rcp_f32 v{s}, v{s}']
        tail = []
        for i in range(10):
            tail.append(f'v_pk_mul_f32 {vr(b+2*i,2)}, {vr(b+2*i,2)}, {vr(s,2)} op_sel_hi:[1,0]')
        cv = [f'v_cvt_pk_bf16_f32 v{ph+i}, v{b+2*i}, v{b+2*i+1}' for i in range(10)]
        return o, tail, cv
    XF, WFB = FR, FR + 24

    def wreads(ks):
        b = WFB + 16 * ks
        return [f'ds_read_b64_tr_b16 {vr(b+4*f+2*t,2)}, v{AW+(0,0,1,2)[f]} offset:{(32*ks+4*t)*128 + (8192 if f == 1 else 0)}' for f in range(4) for t in range(2)]

    def xread(ks, tt, sl=None):
        return f'ds_read_b128 {vr(XF+4*(tt if sl is None else sl),4)}, v{AX+ks} offset:{2048*tt}'

    def block(ks, tt, first, sl=None):
        d = lambda f: vr(ACC + 32 * (tt >> 1) + 8 * f + 4 * (tt & 1), 4)
        if opts.get('nomfma'):
            return ['s_nop 0'] * 4
        return [f'{MF16} {d(f)}, {vr(WFB+16*ks+4*f,4)}, {vr(XF+4*(tt if sl is None else sl),4)}, {"0" if first else d(f)}' for f in range(4)]

    def bar(ch):
        assert ch < 8 or not any(x.startswith('ds_') for x in fill)
        a('s_barrier')
        if ch in (0, 9):
            stamp(a, 7 if ch else 0)
    take = lambda n: [fill.pop(0) for _ in range(min(n, len(fill)))]
    NB = opts.get('barblk', 2)
    a('s_setprio 2')
    bar(0)
    w = wreads(0)
    a(w[:2] + [xread(0, 0)] + w[2:] + [xread(0, tt) for tt in range(1, 6)])
    last = [(ks, 2 * t + p) for t in range(3) for ks in range(2) for p in range(2)]
    for ch in range(9):
        w = wreads(1)
        for tt in range(6):
            for f, m in enumerate(block(0, tt, ch == 0)):
                a(m)
                a([xread(1, tt)] if f == 3 else [w.pop(0)] if w and tt < 4 and f < 2 else take(2))
        dl = 2 * SLOT if ch % 3 == 0 else -SLOT
        ex = [f'v_add_u32 v{AX+i}, {dl}, v{AX+i}' for i in range(5)]
        if ch == 8:
            NB = opts.get('barlast', 4)
        w = wreads(0)
        nx = (lambda n: xread(0, n)) if ch < 8 else (lambda n: xread(*last[n], n))
        rd = w[:2] + [nx(0)] + w[2:] + [nx(tt) for tt in range(1, NB)]
        for tt in range(6):
            if tt == NB:
                a('s_waitcnt lgkmcnt(0)')
                bar(ch + 1)
            for f, m in enumerate(block(1, tt, False)):
                a(m)
                if tt < NB:
                    a([ex.pop(0)] if ex else take(1))
                else:
                    left = 4 * (6 - tt) - f - 2
                    n = 3 if len(rd) > 2 * left else 2 if len(rd) > left else 1
                    a(rd[:n]); rd = rd[n:]
                    if f == 3:
                        rd.append(nx(tt))
        a(rd)
    assert not fill, len(fill)
    w = wreads(1)
    ep = []
    for n, (ks, tt) in enumerate(last):
        if n == 5:
            ep = pack(0)
        if n == 8:
            a(ep)
            ep = []
        if n == opts.get('a10', 8):
            a('s_waitcnt lgkmcnt(0)\ns_barrier')
        if n == 9:
            ep = pack(1)
        for f, m in enumerate(block(ks, tt, False, n % 6)):
            a(m)
            if n < 2:
                a(w[:2]); w = w[2:]
            if f == 3 and n < 6:
                a(xread(*last[n + 6], n))
            elif f == 3 and n >= 8:
                a([wphi(0, 0)[n - 8]] + ep[:4]); ep = ep[4:]
            else:
                k = 1 if ep and ep[0].startswith('v_perm') else 2
                a(ep[:k]); ep = ep[k:]
    a(ep)
    a(';@age 0')
    stamp(a, 1)
    a(interleave(wphi(1, 0), pack(2), start=1, ratio=7))
    pw = []
    for t in range(3):
        ph = FR + 12 * t
        o, tail, cv = softmax(t, ph)
        if t == 0:
            o = interleave(wphi(2, 0), o, ratio=5)
        pw += vwr(t)
        pw = ['\n'.join(pw[i:i + 2]) for i in range(0, len(pw), 2)]
        hint1 = f's_mov_b64 exec, 1\nbuffer_store_dword v31, v31, {sr(SRK,4)}, s{sHN} offen offset:3840 sc1\ns_mov_b64 exec, -1'
        if opts.get('early1', 1) == 7 - 2 * t:
            a(hint1)
        a(interleave(o, pw, start=opts.get('w0st', 50) if t == 0 else 0))
        if opts.get('early1', 1) == 6 - 2 * t:
            a(hint1)
        a(tail[:2])
        pw = []
        for i in range(10):
            if i + 2 < 10:
                a(tail[i + 2])
            a(cv[i])
            if i & 1:
                (a if t == 2 else pw.append)(f'ds_write_b64 v{AE+i//2}, {vr(ph+i-1,2)} offset:{4096*t}')
    a('s_waitcnt lgkmcnt(0)\ns_barrier')
    stamp(a, 2)
    KB = ACC

    def kvrd(ks):
        return [f'ds_read_b64_tr_b16 {vr(KB+16*ks+4*j+2*t,2)}, v{AKV+2*j+t} offset:{(32*ks+4*t)*128}' for j in (3, 0, 1, 2) for t in range(2)]
    qm = [wphi(t, 1) for t in range(3)]
    qsw = [[f'v_permlane16_swap_b32 v{QM(t)+i}, v{QM(t)+i+2}' for i in range(2)] for t in range(3)]
    pend = sum([kvrd(ks) for ks in range(6)], [])
    a(pend[:4] + qsw[0] + pend[4:6] + [qm[0][0]] + pend[6:10] + [qm[0][1]] + pend[10:14])
    pend = pend[14:]
    for ks in range(6):
        for j in range(3):
            d = vr(KM(j), 4)
            a(f'{MF16} {d}, {vr(KB+16*ks+4*j,4)}, {vr(KB+16*ks+12,4)}, {d if ks else "0"}')
            if j == 2 and ks < 2:
                a(qm[0][2 + ks])
            a(pend[:3]); pend = pend[3:]
    a(qsw[1] + qsw[2])
    S0, S1 = VM(0), VM(1)
    for j in (0, 1, 2):
        for i in range(2):
            a(f'v_cvt_pk_bf16_f32 v{(S0, S0+2, S1)[j]+i}, v{KM(j)+2*i}, v{KM(j)+2*i+1}')
    a(f'buffer_store_dwordx4 {vr(S0,4)}, v{AS}, {sr(SRK,4)}, 0 offen sc1')
    a(f'v_permlane16_swap_b32 v{S1}, v{S1+2}\nv_permlane16_swap_b32 v{S1+1}, v{S1+3}')
    a(f'buffer_store_dwordx4 {vr(S1,4)}, v{AS+1}, {sr(SRK,4)}, 0 offen sc1')
    if not opts.get('early1', 1):
        a(f's_mov_b64 exec, 1\nbuffer_store_dword v31, v31, {sr(SRK,4)}, s{sHN} offen offset:3840 sc1\ns_mov_b64 exec, -1')
    stamp(a, 3)
    if opts.get('ack'):
        a('s_waitcnt vmcnt(0)')
        stamp(a, 0)
    a('s_setprio 0\ns_barrier')
    for t in range(3):
        ph = FR + 12 * t
        o, tail, cv = softmax(t, ph, FR if t == 0 else None)
        if t == 0:
            a(interleave(qm[1] + qm[2], o, ratio=5))
        else:
            a(o)
        a(tail[:2])
        for i in range(10):
            if i + 2 < 10:
                a(tail[i + 2])
            a(cv[i])
        a(f'v_mov_b32 v{ph+10}, 0\nv_mov_b32 v{ph+11}, 0')
    KA = WP
    a(f'''
    v_mov_b32 v{KA+10}, 0
    v_mov_b32 v{KA+11}, 0
    s_mov_b32 s{sEPS}, {f32(1e-6)}
    ''')
    if opts.get('h2_k1', -1) >= 0:
        a(f'''
        s_cmp_ge_u32 s{S_IDX}, 10
        s_cselect_b32 s{sT1}, 4, 0
        s_lshl_b32 s{sT2}, s{S_XCD}, 3
        s_add_u32 s{sT2}, s{sT2}, s{sT1}
        s_add_u32 s{sT2}, s{sT2}, s{S_WAVE}
        s_mul_i32 s{sH2}, s{sT2}, 10923
        s_and_b32 s{sH2}, s{sH2}, 0xffff0000
        v_and_b32 v22, 15, v{LANE}
        v_lshlrev_b32 v22, 12, v22
        v_bfe_u32 v21, v{LANE}, 4, 1
        v_lshl_add_u32 v22, v21, 7, v22
        ''')
    a(f'''
    s_setprio 2
    s_waitcnt lgkmcnt(0)
    s_barrier
    ''')
    stamp(a, 4)
    for t in range(5):
        a(f'ds_read_b64 {vr(KA+2*t,2)}, v{AO+t}')
    if opts.get('h2_k1', -1) >= 0:
        a(f's_mov_b32 exec_hi, 0\nbuffer_load_dword v21, v22, {sr(SRK,4)}, s{sH2} offen offset:3840 sc1\ns_mov_b32 exec_hi, -1')
    om = [[f'{MF32} {vr(ACC+16*t,16)}, {vr(KA+4*s,4)}, {vr(FR+12*t+4*s,4)}, {vr(ACC+16*t,16) if s else "0"}' for s in range(3)] for t in range(3)]

    def ofin(t):
        b, o, so = ACC + 16 * t, PK + 8 * t, ('0', f's{sO1}', f's{sO2}')[t]
        mul = [f'v_pk_mul_f32 {vr(b+2*i,2)}, {vr(b+2*i,2)}, {vr(b+12,2)} op_sel_hi:[1,0]' for i in range(6)]
        cv = [f'v_cvt_pk_bf16_f32 v{o+i}, v{b+2*i}, v{b+2*i+1}' for i in range(6)]
        return [f'v_add_f32 v{b+12}, s{sEPS}, v{b+12}', f'v_rcp_f32 v{b+12}, v{b+12}'] + mul[4:] + mul[:4] + cv[4:] + cv[:4] + \
            [f'v_permlane16_swap_b32 v{o+4}, v{o+6}', f'v_permlane16_swap_b32 v{o+5}, v{o+7}',
             f'buffer_store_dwordx4 {vr(o,4)}, v{AS+2}, {sr(SRO,4)}, {so} offen sc1',
             f'buffer_store_dwordx4 {vr(o+4,4)}, v{AS+3}, {sr(SRO,4)}, {so} offen offset:1024 sc1']
    a(om[0] + om[1][:2] + ['s_nop 5', om[1][2], 's_nop 2'])
    a(interleave(om[2], ofin(0), ratio=5))
    a(ofin(1) + ofin(2))
    if not opts.get('early2', 8):
        a(f's_mov_b64 exec, 1\nbuffer_store_dword v31, v31, {sr(SRK,4)}, s{sHN} offen offset:3968 sc1\ns_mov_b64 exec, -1')
    stamp(a, 5)
    a(f'''
    s_cmp_ge_u32 s{S_IDX}, 20
    s_cbranch_scc1 L_c_done
    {"s_mov_b32 s99, 0" if opts.get('diag') else ""}
    s_mov_b32 s{sCNT}, 0
    s_cmp_ge_u32 s{S_IDX}, 10
    s_cselect_b32 s{sT0}, 10, 0
    s_cselect_b32 s{sT1}, 4, 0
    s_sub_u32 s{sT0}, s{S_IDX}, s{sT0}
    s_lshl_b32 s{sT2}, s{S_XCD}, 3
    s_add_u32 s{sT2}, s{sT2}, s{sT1}
    s_add_u32 s{sT2}, s{sT2}, s{S_WAVE}
    s_mul_i32 s{sOB}, s{sT2}, 40960
    s_mul_i32 s{sH2}, s{sT2}, 10923
    s_lshr_b32 s{sH2}, s{sH2}, 16
    s_lshl_b32 s{sH2}, s{sH2}, 16
    s_mul_i32 s{sT2}, s{sT2}, {32*2560}
    s_lshl_b32 s{sT0}, s{sT0}, 7
    s_add_u32 s{sT2}, s{sT2}, s{sT0}
    v_lshlrev_b32 v2, 4, v{LANE}
    v_and_b32 v14, 31, v{LANE}
    v_lshrrev_b32 v15, 5, v{LANE}
    v_lshrrev_b32 v16, 4, v{LANE}
    v_mul_u32_u24 v16, 1280, v16
    v_and_b32 v17, 15, v{LANE}
    v_lshl_add_u32 v3, v17, 4, v16
    v_lshlrev_b32 v19, 12, v17
    v_mov_b32 v20, 0
    s_mul_i32 s{sT0}, s{S_WAVE}, {32*144}
    v_mul_u32_u24 v16, 144, v14
    v_lshl_add_u32 v16, v15, 5, v16
    v_add_u32 v8, s{sT0}, v16
    v_lshrrev_b32 v16, 3, v{LANE}
    v_and_b32 v17, 7, v{LANE}
    v_lshlrev_b32 v17, 4, v17
    v_mul_u32_u24 v18, 144, v16
    v_add3_u32 v9, v17, v18, s{sT0}
    v_mul_u32_u24 v18, 2560, v16
    v_add3_u32 v10, v17, v18, s{sT2}
    v_add_u32 v11, {8*2560}, v10
    v_add_u32 v12, {16*2560}, v10
    v_add_u32 v13, {24*2560}, v10
    v_bfe_u32 v14, v{LANE}, 2, 2                 ; r
    v_and_b32 v16, 1, v{LANE}
    v_bfe_u32 v17, v{LANE}, 4, 1
    v_lshl_add_u32 v16, v16, 1, v17
    v_bfe_u32 v17, v{LANE}, 1, 1
    v_lshl_add_u32 v16, v16, 1, v17
    v_bfe_u32 v17, v{LANE}, 3, 1
    v_lshl_add_u32 v16, v17, 3, v16
    v_lshlrev_b32 v16, 3, v16
    v_lshl_add_u32 v16, v14, 7, v16
    s_and_b32 s{sT0}, s{S_IDX}, {opts.get('rot', 3)}
    s_mul_i32 s{sT1}, s{sT0}, 20480
    s_add_u32 s{sT1}, s{sT1}, {WOB}
    v_add_u32 v16, s{sT1}, v16
    v_lshl_add_u32 v4, v15, 10, v16
    v_xor_b32 v5, 64, v4
    v_mul_u32_u24 v15, {40*128}, v15
    v_add_u32 v6, v15, v16
    v_xor_b32 v7, 64, v6
    ''')
    sG, sD = [72 + g for g in range(8)], [44, 45, 46]
    for p in range(4):
        a(f's_mul_i32 s{sG[2*p]}, s{sT0}, 10240\ns_add_u32 s{sG[2*p]}, s{sG[2*p]}, s{sOB}\ns_add_u32 s{sG[2*p+1]}, s{sG[2*p]}, 5120')
        if p < 3:
            a(f's_mov_b32 s{sD[p]}, 20480\ns_add_u32 s{sT0}, s{sT0}, 1\ns_and_b32 s{sT0}, s{sT0}, 3\ns_cselect_b32 s{sD[p]}, s{sD[p]}, {-3*20480}')
    AC, WF, OF, NR, NW = 32, 64, 192, 3, 16

    def old(g):
        so = f's{sG[g]}'
        b = OF + 20 * (g % NR)
        return [f'buffer_load_dwordx4 {vr(b+4*h,4)}, v2, {sr(SRO,4)}, {so} offen offset:{1280*h} sc1' for h in range(4)] + \
               [f'buffer_load_dwordx4 {vr(b+16,4)}, v3, {sr(SRO,4)}, {so} offen offset:1024 sc1']

    def ochk(g):
        b = OF + 20 * (g % NR)
        if opts.get('chk1'):
            return [f'v_max3_u32 v14, v{b+16}, v{b}, v{b+4}', f'v_max3_u32 v14, v14, v{b+8}, v{b+12}', 'v_cmp_eq_u32 vcc, -1, v14']
        return [f'v_max3_u32 v14, v{b+18}, v{b+19}, 0'] + [f'v_max3_u32 v14, v14, v{b+2*i}, v{b+2*i+1}' for i in range(9)] + ['v_cmp_eq_u32 vcc, -1, v14']
        return [f'v_max_u32 v14, v{b}, v{b+1}'] + [f'v_max3_u32 v14, v14, v{b+2*i}, v{b+2*i+1}' for i in range(1, 10)] + ['v_cmp_eq_u32 vcc, -1, v14']

    def wrd(k):
        g, h = divmod(k, 5)
        b = WF + 8 * (k % NW)
        o = (g % 2) * 80 * 128
        r = []
        if k in (10, 20, 30):
            r += [f'v_add_u32 v{4+i}, s{sD[k//10-1]}, v{4+i}' for i in range(4)]
        for j in range(2):
            for t in range(2):
                if h < 4:
                    r.append(f'ds_read_b64_tr_b16 {vr(b+4*j+2*t,2)}, v{4+j} offset:{o + (20*h+4*t)*128}')
                else:
                    r.append(f'ds_read_b64_tr_b16 {vr(b+4*j+2*t,2)}, v{6+j} offset:{o + (20*t+16)*128}')
        return r
    AH = opts.get('o_ahead', 2)
    LK = opts.get('g2pre', 16)
    pre = [x for k in range(LK) for x in wrd(k)]
    wq = [(k, x) for k in range(LK, 40) for x in wrd(k)]
    wrate, wacc = len(wq) / 72, 0.0
    K1, K2, NP0 = opts.get('h2_k1', -1), opts.get('h2_k', 0), opts.get('np0', 24)
    assert K2 == 0 and (K1 < 0 or opts.get('early1', 1) == 1)
    a(pre[:NP0])
    if K1 >= 0:
        a(f'''
        v_cmp_eq_u32 vcc, -1, v21
        s_mov_b64 {sr(sH,2)}, 0xffff
        s_bcnt1_i32_b32 s{sT0}, vcc_lo
        s_and_b32 s{sT1}, vcc_lo, 0xffff
        s_cselect_b32 s{sT0}, 99, s{sT0}
        s_cmp_gt_u32 s{sT0}, {K1}
        s_cbranch_scc1 L_c_poll
        L_c_go:
        ''')
        b = late.append
        b(';@reset')
    else:
        b = a
        a(f's_mov_b64 {sr(sH,2)}, 0xffff')
    b('L_c_poll:')
    if K2 >= 16:
        b(f's_waitcnt vmcnt({opts.get("o_wait", 0)})')
    else:
        b(f'''
        s_mov_b64 exec, {sr(sH,2)}
        buffer_load_dword v20, v19, {sr(SRK,4)}, s{sH2} offen offset:3968 sc1
        s_mov_b64 exec, -1
        {"s_sleep %d" % opts['psleep'] if opts.get('psleep') else ""}
        s_add_u32 s{sCNT}, s{sCNT}, 1
        v_cmp_eq_u32 {sr(sH,2)}, -1, v20
        s_bcnt1_i32_b32 s{sT0}, s{sH}
        s_cmp_ge_u32 s{sCNT}, {CAP}
        s_cselect_b32 s{sT0}, 0, s{sT0}
        s_cmp_gt_u32 s{sT0}, {K2}
        s_cbranch_scc1 L_c_poll
        ''')
    if K1 >= 0:
        b('s_branch L_c_go')
    if opts.get('ack') or opts.get('st0'):
        stamp(a, 1)
    a(old(0))
    n1 = NP0 + opts.get('np1', 20)
    a(pre[NP0:n1])
    a(old(1))
    a(pre[n1:])
    a(ochk(0))
    for g in range(8):
        a(f's_cbranch_vccnz L_c_fail{g}\nL_c_ok{g}:')
        if g == 0:
            stamp(a, 7 if opts.get('st0') else 99)
        late.append(f';@reset\nL_c_fail{g}:')
        if opts.get('diag'):
            late.append(f's_add_u32 s99, s99, {1 << (4 * g)}')
        for gg in range(g, min(8, g + (1 if opts.get('lite', 1) else AH))):
            late.extend(old(gg))
        late.extend(ochk(g))
        late.append(f'''s_add_u32 s{sCNT}, s{sCNT}, 1
        s_cmp_ge_u32 s{sCNT}, {CAP}
        s_cbranch_scc1 L_c_ok{g}
        s_cbranch_vccnz L_c_fail{g}''')
        if opts.get('lite', 1) and g < 7:
            late.extend(old(g + 1))
        late.append(f's_branch L_c_ok{g}')
        ld = old(g + AH) if g + AH < 8 else []
        ck = ochk(g + 1) if g < 7 else []
        for h in range(5):
            k = 5 * g + h
            for j in range(2):
                d = vr(AC + 16 * j, 16)
                a(f'{MF32} {d}, {vr(WF+8*(k%NW)+4*j,4)}, {vr(OF+20*(g%NR)+4*h,4)}, {d if k else "0"}')
                wacc += wrate
                while wq and wacc >= 1 and wq[0][0] - NW <= k - 1 + j:
                    assert wq[0][0] > k + 1
                    a(wq.pop(0)[1]); wacc -= 1
                n = 2 * h + j
                b = OF + 20 * (g % NR) + 16
                if n < 5 and not opts.get('nold'):
                    a(ld[n:n + 1])
                if n in (1, 3):
                    a(f'v_permlane16_swap_b32 v{b+n//2}, v{b+2+n//2}')
                if len(ck) == 3:
                    a(ck[:2] if n == 8 else ck[2:] if n == 9 else [])
                elif n >= 5:
                    a(ck[(0, 2, 4, 7, 9)[n-5]:(2, 4, 7, 9, 11)[n-5]])
    a(';@age 0')
    stamp(a, 0 if opts.get('st0') else 99)
    for j in range(2):
        for i in range(8):
            a(f'v_cvt_pk_bf16_f32 v{WF+8*j+i}, v{AC+16*j+2*i}, v{AC+16*j+2*i+1}')
            if i % 4 == 3:
                a(f'ds_write_b128 v8, {vr(WF+8*j+i-3,4)} offset:{64*j + (i//4)*16}')
    for i in range(4):
        a(f'ds_read_b128 {vr(WF+16+4*i,4)}, v9 offset:{i*8*144}')
    for i in range(4):
        a(f'global_store_dwordx4 v{10+i}, {vr(WF+16+4*i,4)}, {sr(S_OUT,2)} {opts.get("outf", "")}')
    a('L_c_done:')
    stamp(a, 6, final=True)
```

```python
from asmlib import *
import struct


def f32(x):
    return '0x%08x' % struct.unpack('<I', struct.pack('<f', x))[0]


LOG2E = 1.4426950408889634
ROWS = 2064
XBASE = 32 * ROWS
XM = 57344
UBASE = 57 * ROWS
USTR = 4640
BAND = UBASE + 8 * USTR
TSTR = 8192
TQ, TG, TY = 1216, 2432, 3456
G4O = TG - 32 * 4
G8O = TG + 132 * 4 - 50 * 4
assert BAND + 7 * 1024 <= 163840

S_WAVE = 3
S_U, S_LOGA, S_AIM, S_CRE, S_CIM, S_LOGDT, S_DSK, S_OUT, S_DBG, S_WS = 16, 18, 20, 22, 24, 26, 28, 30, 32, 34


def cmul(d, x, y, t=None):
    if t is None:
        t = d
        assert d != x and d != y
    return [f'v_pk_mul_f32 {vr(t,2)}, {vr(x,2)}, {vr(y,2)} op_sel:[0,0] op_sel_hi:[0,1]',
            f'v_pk_fma_f32 {vr(d,2)}, {vr(x,2)}, {vr(y,2)}, {vr(t,2)} op_sel:[1,1,0] op_sel_hi:[1,0,1] neg_lo:[0,1,0]']


def zipl(*ls):
    out = []
    for i in range(max(map(len, ls))):
        for l in ls:
            if i < len(l):
                out.append(l[i])
    return out


def gen_b(a, S_BIDX, hooks):
    LANE = 1
    PAR = 2
    UD = 16
    sD, sT0, sT1, sT2, sLD, sDS, sUL = 40, 41, 42, 43, 44, 45, 46
    SRDU = 48
    a(f'''
    s_lshl_b32 s{sD}, s{S_BIDX}, 3
    s_add_u32 s{sD}, s{sD}, s{S_WAVE}            ; channel
    s_mul_i32 s{sT0}, s{sD}, 384
    v_mul_u32_u24 v14, 6, v{LANE}
    v_and_b32 v14, -4, v14
    v_add_u32 v14, s{sT0}, v14
    s_lshr_b32 s{sT1}, s{sD}, 1
    s_lshl_b32 s{sT1}, s{sT1}, 2
    s_add_u32 s{sT2}, s{sT1}, {2047*1280}
    ''')
    hooks['before_params'](a)
    a('s_waitcnt lgkmcnt(0)')
    for k, sp in enumerate((S_LOGA, S_AIM, S_CRE, S_CIM)):
        a(f'global_load_dwordx2 {vr(UD+2*k,2)}, v14, {sr(sp,2)}')
    a(f'''
    s_load_dword s{sLD}, {sr(S_LOGDT,2)}, s{sT1}
    s_load_dword s{sDS}, {sr(S_DSK,2)}, s{sT1}
    s_load_dword s{sUL}, {sr(S_U,2)}, s{sT2}
    ''')
    hooks['mid_params'](a)
    a(f'''
    v_mul_u32_u24 v15, {4*1280}, v0
    s_mov_b32 s{SRDU}, s{S_U}
    s_mov_b32 s{SRDU+1}, s{S_U+1}
    s_mov_b32 s{SRDU+2}, {2048*1280}
    s_mov_b32 s{SRDU+3}, 0x20000
    s_lshl_b32 s{sT0}, s{S_BIDX}, 4
    v_subrev_u32 v14, 1280, v15
    ''')
    hooks['after_params'](a)
    sUO = 47
    a(f's_mov_b32 s{sUO}, s{sT0}')
    uld = [
        f'buffer_load_dwordx4 {vr(UD,4)}, v14, {sr(SRDU,4)}, s{sUO} offen',
        f'buffer_load_dwordx4 {vr(UD+4,4)}, v15, {sr(SRDU,4)}, s{sUO} offen',
        f'buffer_load_dwordx4 {vr(UD+8,4)}, v15, {sr(SRDU,4)}, s{sUO} offen offset:1280',
        f'buffer_load_dwordx4 {vr(UD+12,4)}, v15, {sr(SRDU,4)}, s{sUO} offen offset:2560']
    hooks['after_u'](a)
    bt = [(off + 21 - h, 2 * h + 1) for off, h in ((-20, 1), (-16, 2), (-12, 1), (-8, 2), (-16, 4), (-8, 3))] + [(1, 7), (0, 1)]
    lo_pack = sum(l << (4 * i) for i, (l, w) in enumerate(bt))
    wd_pack = sum(w << (4 * i) for i, (l, w) in enumerate(bt))
    I16, QD = 32, 33
    a(f'''
    v_and_b32 v{I16}, 15, v{LANE}
    v_lshrrev_b32 v{QD}, 4, v{LANE}
    s_lshl_b32 s{sT1}, s{S_WAVE}, 2
    s_lshr_b32 s{sT2}, {hex(wd_pack)}, s{sT1}
    s_and_b32 s{sT2}, s{sT2}, 15
    s_bfm_b32 s{sT2}, s{sT2}, 0                   ; (1<<wid)-1
    s_lshr_b32 s{sT1}, {hex(lo_pack)}, s{sT1}
    s_and_b32 s{sT1}, s{sT1}, 15
    s_lshl_b32 s{sT2}, s{sT2}, s{sT1}
    v_lshlrev_b32 v34, v{I16}, s{sT2}
    v_lshlrev_b32 v35, 3, v{QD}
    v_lshrrev_b32 v34, v35, v34
    s_movk_i32 s{sT1}, 0x3f80
    s_cmp_eq_u32 s{S_WAVE}, 6
    s_cselect_b32 s{sT1}, 0xffff, s{sT1}
    s_mov_b32 s{sT2}, 0x10001
    ''')
    for r in range(4):
        a(f'''v_bfe_u32 v{36+r}, v34, {2*r}, 2
        v_lshl_or_b32 v{36+r}, v{36+r}, 15, v{36+r}
        v_and_b32 v{36+r}, s{sT2}, v{36+r}
        v_mul_u32_u24 v{36+r}, s{sT1}, v{36+r}''')
    a(f'''
    v_lshlrev_b32 v35, 4, v0
    v_add_u32 v35, {BAND}, v35
    s_cmp_eq_u32 s{S_WAVE}, 7
    s_cbranch_scc1 L_b_noband
    ds_write_b128 v35, v[36:39]
    L_b_noband:
    ''')
    AX, AY = 34, 35
    sM0Y, sM0X = 52, 53
    a(f'''
    v_and_b32 v36, 31, v{LANE}
    v_lshrrev_b32 v37, 5, v{LANE}
    s_lshl_b32 s{sM0Y}, s{S_WAVE}, 8
    s_add_u32 s{sM0X}, s{sM0Y}, {XM}
    v_lshl_add_u32 v37, v37, 4, s{sM0Y}
    v_mov_b32 v39, {ROWS}
    v_mad_u32_u24 v{AY}, v36, v39, v37
    v_cmp_eq_u32 vcc, 5, v36
    v_cndmask_b32 v38, v36, 4, vcc
    v_or_b32 v36, 1, v36
    v_cmp_eq_u32 vcc, 13, v36
    v_cndmask_b32 v38, v38, 7, vcc
    v_mad_u32_u24 v{AX}, v38, v39, v37
    v_add_u32 v{AX}, {XBASE}, v{AX}
    s_mov_b32 m0, s{sM0X}
    v_mov_b32 v36, 0x3f80
    ds_write_addtid_b32 v36 offset:{XBASE-XM}
    ''')
    a(f'''
    s_mul_i32 s{sT1}, s{S_WAVE}, {USTR}
    s_add_u32 s{sT1}, s{sT1}, {UBASE}
    v_mov_b32 v36, 0
    v_mov_b32 v37, 0
    v_lshl_add_u32 v38, v{LANE}, 3, s{sT1}
    ds_write_b64 v38, v[36:37]
    v_cmp_ne_u32 vcc, 0, v{LANE}
    v_mov_b32 v39, {512*8}
    v_cndmask_b32 v39, 0, v39, vcc
    v_add_u32 v38, v38, v39
    s_waitcnt lgkmcnt(0)
    s_bitcmp1_b32 s{sD}, 0
    s_cselect_b32 s{sT1}, 16, 0
    s_lshr_b32 s{sUL}, s{sUL}, s{sT1}
    s_and_b32 s{sUL}, s{sUL}, 0xffff
    s_lshr_b32 s{sLD}, s{sLD}, s{sT1}
    s_lshl_b32 s{sLD}, s{sLD}, 16
    s_lshr_b32 s{sDS}, s{sDS}, s{sT1}
    s_lshl_b32 s{sDS}, s{sDS}, 16
    v_writelane_b32 v36, s{sUL}, 1
    s_mov_b64 exec, 15
    ds_write_b64 v38, v[36:37] offset:512
    s_mov_b64 exec, -1
    ''')
    sDT, sC2, sL2E, sI2P = 54, 56, 58, 59
    l2e_hi = struct.unpack('<f', struct.pack('<f', LOG2E))[0]
    a(f'''
    s_mov_b32 s{sL2E}, {f32(LOG2E)}
    s_mov_b32 s{sI2P}, {f32(0.15915494309189535)}
    v_mov_b32 v36, s{sLD}
    v_mul_f32 v37, s{sL2E}, v36
    v_fma_f32 v38, v36, s{sL2E}, -v37
    v_fmac_f32 v38, {f32(LOG2E - l2e_hi)}, v36
    v_exp_f32 v37, v37
    v_mul_f32 v38, {f32(0.6931471805599453)}, v38
    v_fma_f32 v37, v37, v38, v37
    v_cvt_pk_bf16_f32 v37, v37, v37
    v_lshlrev_b32 v37, 16, v37
    v_add_f32 v38, v37, v37
    v_readfirstlane_b32 s{sDT}, v37
    v_readfirstlane_b32 s{sC2}, v38
    ''')
    ACC = 40
    W = {k: 56 + 2 * i for i, k in enumerate((1, 2, 3, 4, 5, 6, 7, 8, 64, 256, 512, 768, 1032))}
    Y0 = 82
    T0 = 98
    CV = 114
    FR = 124
    sCNT = 60
    for i in range(16):
        a(f'v_mov_b32 v{ACC+i}, 0')
    a(f's_mov_b32 s{sCNT}, 3')
    hooks['pre_loop'](a)
    a(f'v_and_b32 v36, 1, v{LANE}\nv_lshlrev_b32 v36, 4, v36')
    hooks['wait_params'](a)
    for k in range(4):
        r = UD + 2 * k
        a(f'''v_alignbit_b32 v{r}, v{r+1}, v{r}, v36
        v_lshrrev_b32 v{r+1}, v36, v{r+1}
        v_lshlrev_b32 v{PAR+k}, 16, v{r}
        v_and_b32 v{PAR+4+k}, 0xffff0000, v{r}
        v_lshlrev_b32 v{PAR+8+k}, 16, v{r+1}''')
    hooks['st'](a, 0)
    hooks['out_of_line'](a)
    a('L_b_kgen:')
    hooks['slot'](a, 0)
    cvn = [0]

    def put(val, slot, isx):
        r = CV + cvn[0] % 8
        cvn[0] += 1
        off = (XBASE - XM + slot * ROWS) if isx else slot * ROWS
        return [f'v_cvt_pk_bf16_f32 v{r}, v{val}, {"" if isx else "-"}v{val+1}', f'ds_write_addtid_b32 v{r} offset:{off}']
    al, be = T0, T0 + 1
    a(f'''
    v_mul_f32 v{PAR}, s{sL2E}, v{PAR}
    v_mul_f32 v{be}, s{sDT}, v{PAR+1}
    v_exp_f32 v{PAR}, v{PAR}
    v_mul_f32 v{be}, s{sI2P}, v{be}
    v_cvt_pk_bf16_f32 v{PAR}, v{PAR}, v{PAR}
    v_lshlrev_b32 v{PAR}, 16, v{PAR}
    v_fract_f32 v{T0+2}, v{be}
    v_mul_f32 v{al}, s{sDT}, v{PAR}
    v_mul_f32 v{T0+3}, 0x42800000, v{be}
    v_mul_f32 v{al}, s{sL2E}, v{al}
    v_fract_f32 v{T0+3}, v{T0+3}
    v_mul_f32 v{T0+5}, 0x42800000, v{al}
    v_cos_f32 v{W[1]}, v{T0+2}
    v_sin_f32 v{W[1]+1}, v{T0+2}
    v_exp_f32 v{T0+4}, -v{al}
    v_cos_f32 v{W[64]}, v{T0+3}
    v_sin_f32 v{W[64]+1}, v{T0+3}
    v_exp_f32 v{T0+6}, -v{T0+5}
    v_pk_mul_f32 {vr(W[1],2)}, {vr(W[1],2)}, {vr(T0+4,2)} op_sel_hi:[1,0]
    v_pk_mul_f32 {vr(Y0,2)}, {vr(PAR+2,2)}, {sr(sC2,2)} op_sel_hi:[1,0]
    v_pk_mul_f32 {vr(W[64],2)}, {vr(W[64],2)}, {vr(T0+6,2)} op_sel_hi:[1,0]
    s_mov_b32 m0, s{sM0X}
    ''')
    xs = {1: 1, 2: 2, 3: 3, 256: 4, 258: 6, 260: 7, 4: 8, 5: 9, 6: 10, 7: 11, 262: 14, 264: 15,
          512: 16, 516: 17, 1032: 18, 1288: 19, 768: 20, 772: 21, 1544: 22, 1800: 23, 1024: 24}
    t = lambda i: T0 + 2 * i
    c1 = cmul(W[2], W[1], W[1]) + put(W[1], xs[1], 1) + cmul(W[4], W[2], W[2]) + put(W[2], xs[2], 1) + \
        cmul(W[8], W[4], W[4]) + put(W[4], xs[4], 1) + cmul(W[3], W[2], W[1]) + cmul(W[6], W[4], W[2]) + put(W[3], xs[3], 1) + \
        cmul(W[5], W[4], W[1]) + put(W[6], xs[6], 1) + cmul(W[7], W[4], W[3]) + put(W[5], xs[5], 1) + put(W[7], xs[7], 1)
    c2 = cmul(t(0), W[64], W[64]) + cmul(W[256], t(0), t(0)) + cmul(W[512], W[256], W[256]) + put(W[256], xs[256], 1) + \
        cmul(t(1), W[512], W[512]) + put(W[512], xs[512], 1) + cmul(W[768], W[512], W[256]) + put(t(1), xs[1024], 1) + \
        cmul(W[1032], t(1), W[8]) + put(W[768], xs[768], 1) + put(W[1032], xs[1032], 1)
    a(zipl(c1, c2))
    hooks['slot'](a, 1)
    prods = [(258, 256, 2), (260, 256, 4), (262, 256, 6), (264, 256, 8), (516, 512, 4), (772, 768, 4), (1288, 1032, 256), (1544, 1032, 512), (1800, 1032, 768)]
    c3 = []
    for i, (p, x, y) in enumerate(prods):
        c3 += cmul(t(i % 4), W[x], W[y]) + put(t(i % 4), xs[p], 1)
    c4 = []
    for j in range(1, 8):
        c4 += cmul(Y0 + 2 * j, Y0 + 2 * j - 2, W[8])
    a(interleave(c3, c4))
    a(f's_mov_b32 m0, s{sM0Y}')
    for rnd in range(4):
        if rnd == 1:
            hooks['slot'](a, 2)
        for j in range(0, 8, 2):
            p0, p1 = put(Y0 + 2 * j, 8 * rnd + j, 0), put(Y0 + 2 * j + 2, 8 * rnd + j + 1, 0)
            if rnd < 3:
                m0_, m1_ = cmul(Y0 + 2 * j, Y0 + 2 * j, W[64], t(4)), cmul(Y0 + 2 * j + 2, Y0 + 2 * j + 2, W[64], t(5))
                a([p0[0], m0_[0], p1[0], m1_[0], p0[1], m0_[1], p1[1], m1_[1]])
            else:
                a([p0[0], p1[0], p0[1], p1[1]])
    rd = lambda ks: [f'ds_read_b128 {vr(FR+8*(ks%4),4)}, v{AX} offset:{32*ks}', f'ds_read_b128 {vr(FR+8*(ks%4)+4,4)}, v{AY} offset:{32*ks}']
    for ks in range(4):
        a(rd(ks))
    for ks in range(8):
        a(f'v_mov_b32 v{PAR+ks}, v{PAR+4+ks}')
        a(f'v_mfma_f32_32x32x16_bf16 {vr(ACC,16)}, {vr(FR+8*(ks%4),4)}, {vr(FR+8*(ks%4)+4,4)}, {vr(ACC,16)}')
        if ks + 4 < 8:
            a(rd(ks + 4))
    a(f'''
    s_sub_u32 s{sCNT}, s{sCNT}, 1
    ''')
    hooks['loop_end'](a, sCNT)
    a(f'''
    s_cmp_lg_u32 s{sCNT}, 0
    s_cbranch_scc1 L_b_kgen
    ''')
    hooks['after_loop'](a)

    sP0, sP1 = 62, 63
    sTB = 64
    P, Q = 56, 60
    a(f'''
    s_lshl_b32 s{sTB}, s{S_WAVE}, 13
    v_mov_b32 v36, 0
    v_writelane_b32 v36, s{sDS}, 0
    v_add_f32 v{ACC}, v{ACC}, v36
    v_mov_b32_dpp v37, v{ACC+7} wave_shr:1 row_mask:0xf bank_mask:0xf bound_ctrl:1
    ''')
    for tt in range(4):
        a(f'v_cvt_pk_bf16_f32 v{P+tt}, v{ACC+2*tt+1}, v{ACC+2*tt}')
        a(f'v_cvt_pk_bf16_f32 v{Q+tt}, v{ACC+2*tt}, v{ACC+2*tt-1 if tt else 37}')
    sS, sF = 65, 66
    LO, HI, ZZ = 0x0100, 0x0302, 0x0c0c
    sel = {16: (HI, HI), 17: (LO, HI), 18: (LO, LO), 48: (HI, HI), 49: (HI, HI), 50: (LO, LO), 51: (ZZ, LO)}
    a(f'''
    v_cvt_pk_bf16_f32 v64, v{ACC+9}, v{ACC+8}
    v_cvt_pk_bf16_f32 v65, v{ACC+10}, v{ACC+11}
    v_cvt_pk_bf16_f32 v66, v{ACC+12}, v{ACC+12}
    v_mov_b32 v67, 0x0c0c0c0c
    v_readfirstlane_b32 s{sS}, v64
    v_readfirstlane_b32 s{sF}, v66
    ''')
    for ln, (lo, hi) in sel.items():
        a(f's_mov_b32 s{sT1}, {hex(lo | hi << 16)}\nv_writelane_b32 v67, s{sT1}, {ln}')
    a(f'''
    v_writelane_b32 v64, 0, 0
    v_perm_b32 v67, s{sS}, s{sS}, v67
    v_lshl_add_u32 v68, v{LANE}, 4, s{sTB}
    v_mov_b32 v72, 0
    v_mov_b32 v73, 0
    v_mov_b32 v74, 0
    v_mov_b32 v75, 0
    v_lshl_add_u32 v69, v{LANE}, 2, s{sTB}
    v_bfe_u32 v70, v{LANE}, 4, 1
    v_lshl_add_u32 v70, v70, 10, v69
    v_lshrrev_b32 v71, 5, v{LANE}
    v_mov_b32 v76, {TQ - 128}
    v_mad_u32_u24 v70, v71, v76, v70
    v_lshl_add_u32 v76, v71, 5, v{LANE}             ; 64*half + j
    v_and_b32 v77, 1, v{LANE}
    v_lshlrev_b32 v76, 1, v76
    v_lshlrev_b32 v77, 2, v77
    v_sub_u32 v76, v76, v77
    s_add_u32 s{sT1}, s{sTB}, {G8O + 65*4 + 2}
    v_add_u32 v76, s{sT1}, v76
    s_barrier
    ''')
    if not hooks['nou']:
        a(uld)
    a(f'''
    ds_write_b128 v68, v[72:75] offset:{TG}
    ds_write_b128 v68, {vr(P,4)} offset:64
    ds_write_b128 v68, {vr(Q,4)} offset:{TQ+64}
    ds_write_b32 v70, v67
    ds_write_b32 v69, v64 offset:{G4O + 64*4}
    ds_write_b16 v76, v65
    ds_write_b16_d16_hi v76, v65 offset:64
    ''')
    AK, AK2, AU, AG4, AG8, AB = 2, 3, 4, 5, 6, 7
    a(f'''
    v_add_u32 v8, 5, v{I16}
    v_lshrrev_b32 v8, 1, v8                          ; (i+5)>>1
    v_lshlrev_b32 v9, 2, v{QD}
    v_sub_u32 v8, v8, v9
    v_add_u32 v8, 13, v8                             ; z0-3+16
    v_and_b32 v10, 1, v{I16}
    v_mul_u32_u24 v10, {TQ}, v10
    v_lshl_add_u32 v{AK}, v8, 2, v10
    v_add_u32 v{AK}, s{sTB}, v{AK}
    v_add_u32 v{AK2}, 1024, v{AK}
    s_mul_i32 s{sT1}, s{S_WAVE}, {USTR}
    s_add_u32 s{sT1}, s{sT1}, {UBASE}
    v_lshl_add_u32 v8, v{I16}, 1, v{QD}
    v_lshl_add_u32 v{AU}, v8, 4, s{sT1}
    v_sub_u32 v8, v{I16}, v9
    s_add_u32 s{sT1}, s{sTB}, {G4O + 4*(64 - 4 + 2 - 3)}
    v_lshl_add_u32 v{AG4}, v8, 3, s{sT1}
    s_add_u32 s{sT1}, s{sTB}, {G8O + 4*(64 + 1 - 3)}
    v_lshl_add_u32 v{AG8}, v8, 2, s{sT1}
    v_lshlrev_b32 v{AB}, 4, v{LANE}
    v_add_u32 v{AB}, {BAND}, v{AB}
    ''')
    a(f'''
    v_lshl_add_u32 v68, v{LANE}, 3, s{sTB}
    v_lshlrev_b32 v69, 3, v0
    v_lshl_add_u32 v70, v{I16}, 2, v{QD}
    s_lshl_b32 s{sT1}, s{S_WAVE}, 6
    v_add_u32 v70, s{sT1}, v70
    v_mul_u32_u24 v70, {4*2560}, v70
    s_lshl_b32 s{sT1}, s{S_BIDX}, 4
    s_add_u32 s{sT1}, s{sT1}, {1280 + 2560}
    v_add_u32 v70, s{sT1}, v70
    v_add_u32 v71, {2*2560}, v70
    ''')
    YA = 8
    VV = 40
    AP = 56
    F32 = YA
    pool = list(range(72, 256, 4))

    def r2(r, ad, o):
        return [f'ds_read2_b32 {vr(r,2)}, v{ad} offset0:{o+3} offset1:{o+2}', f'ds_read2_b32 {vr(r+2,2)}, v{ad} offset0:{o+1} offset1:{o}']

    def load(key, r):
        k = key[0]
        if k == 'K':
            return r2(r, AK, 16 * key[1]) if key[1] < 16 else r2(r, AK2, 0)
        if k in ('U', 'U2'):
            return [f'ds_read_b128 {vr(r,4)}, v{AU} offset:{64*(key[1]+8)}']
        if k == 'UB':
            return [f'ds_read_b128 {vr(r,4)}, v{AU} offset:{64*(8*key[1]+8)-32}']
        if k == 'G4':
            return r2(r, AG4, 32 * (key[1] - 2) + 4 * (1 - key[2]))
        if k == 'G8':
            return r2(r, AG8, 16 * (key[1] - 4))
        if k == 'B':
            return [f'ds_read_b128 {vr(r,4)}, v{AB} offset:{1024*key[1]}']
    seq = []
    started = set()

    def mm(R, ka, kb):
        c = vr(YA + 4 * R, 4) if R in started else '0'
        started.add(R)
        A = '{0}' if isinstance(ka, tuple) else vr(ka, 4)
        keys = ([ka] if isinstance(ka, tuple) else []) + [kb]
        B = '{%d}' % (len(keys) - 1)
        return (f'v_mfma_f32_16x16x32_bf16 {vr(YA+4*R,4)}, {A}, {B}, {c}', keys)
    stages = hooks['stages']
    late = []

    def yout(R):
        return [(f'v_cvt_pk_bf16_f32 v{YA+4*R}, v{YA+4*R}, v{YA+4*R+1}', []), (f'v_cvt_pk_bf16_f32 v{YA+4*R+1}, v{YA+4*R+2}, v{YA+4*R+3}', []),
                (f'ds_write_b64 v68, {vr(YA+4*R,2)} offset:{TY+512*R}', [])]
    for R in range(8):
        dense = []
        for c in (7, 6, 5, 4, 3, 2, 1, 0):
            for ka in ((32, 16, 8, 0) if c == 0 else (c + 8, c)):
                m = 8 * R - ka
                if m >= -8:
                    dense.append(mm(R, ('K', ka) if ka < 32 else F32, ('U' if ka < 32 or R >= hooks['u2'] else 'U2', m)))
        b2, b3, cv2, cv3, sg = [], [], [], [], []
        n = R
        if n < 6:
            b2 = [(f'v_mfma_f32_16x16x32_bf16 {vr(VV+4*e,4)}, {{0}}, {{1}}, 0', [('UB', n), ('B', e, n // hooks['bres'])]) for e in range(4)]
            for hh in range(2):
                for m in range(4):
                    r = 2 * hh + (m >> 1); e = 2 * (m & 1)
                    cv2.append((f'v_cvt_pk_bf16_f32 v{AP+4*hh+m}, v{VV+4*e+r}, v{VV+4*(e+1)+r}', []))
            for dl in (2, 3, 4):
                for hh in range(2):
                    if n + dl < 8:
                        sg.append(mm(n + dl, AP + 4 * hh, ('G4', dl, hh)))
        if n < 4:
            b3 = [(f'v_mfma_f32_16x16x32_bf16 {vr(VV+4*e,4)}, {{0}}, {{1}}, 0', [('UB', n), ('B', 4 + e, n // hooks['bres'])]) for e in range(2)]
            cv3 = [(f'v_cvt_pk_bf16_f32 v{AP+8+m}, v{VV+m}, v{VV+4+m}', []) for m in range(4)]
        s3 = [mm(n + dl, AP + 8, ('G8', dl)) for dl in range(4, 8) if n < 4 and n + dl < 8]
        if R == 2:
            cv3 = cv3 + [(f'v_and_b32 v{F32+m}, s{sF}, {{0:{m}}}', [('B', 6, 0)]) for m in range(4)]
        k0 = 4 if len(dense) > 12 else 3
        seq += b2 + interleave(dense, cv2, ratio=1 if len(dense) > 12 else 2, start=k0) + b3
        seq += interleave(sg + s3[:0], cv3, ratio=2, start=3 if cv3 else 0) if sg else cv3
        seq += interleave(s3, yout(R), ratio=1) if s3 else yout(R)
        if R in stages:
            lo = ([-1] + [x for x in stages if x < R])[-1] + 1
            seq.append((f's_waitcnt lgkmcnt(0)\ns_barrier\ns_sub_u32 s{sT1}, s{S_WAVE}, {lo}\ns_cmp_le_u32 s{sT1}, {R-lo}\ns_cbranch_scc1 L_b_out{R}\nL_b_back{R}:', []))
            late.append(f';@reset\nL_b_out{R}:')
            for c in range(8):
                late.append(f'ds_read_b64 {vr(VV+2*c,2)}, v69 offset:{TY + c*TSTR}')
            for r in range(4):
                o = AP + 4 * (r % 3)
                for d in range(4):
                    late.append(f'v_perm_b32 v{o+d}, v{VV+4*d+2+(r>>1)}, v{VV+4*d+(r>>1)}, s{sP1 if r & 1 else sP0}')
                late.append(f'global_store_dwordx4 v{70+(r>>1)}, {vr(o,4)}, {sr(S_OUT,2)} offset:{-2560 if not r & 1 else 0} {hooks["bf"]}')
            if R in hooks['wbst']:
                late.append(f's_cmp_lg_u32 s5, 31\ns_cbranch_scc1 L_b_back{R}\ns_cmp_lg_u32 s{S_WAVE}, {R}\ns_cbranch_scc1 L_b_back{R}\nbuffer_wbl2 sc1')
            late.append(f's_branch L_b_back{R}')
    first, last = {}, {}
    mi, cnt = [], 0
    for txt, keys in seq:
        mi.append(cnt)
        cnt += txt.startswith('v_mfma')
    for i, (_, keys) in enumerate(seq):
        for k in keys:
            first.setdefault(k, i); last[k] = i
    order = sorted(first, key=lambda k: first[k])
    reg, nxt, pend = {}, 0, []
    for k in [k for k in order if k[0] in ('K', 'G4', 'G8') or (k[0] == 'B' and k[1] < 6 and k[2] == 0)]:
        order.remove(k)
        reg[k] = pool.pop(0)
        a(load(k, reg[k]))
    a(f'''
    s_mov_b32 s{sP0}, 0x05040100
    s_mov_b32 s{sP1}, 0x07060302
    v_lshlrev_b32 v36, 3, v0
    v_add_u32 v36, {UBASE + 65*8}, v36
    ''')
    for c in range(8):
        d, sp = c >> 1, (sP1 if c & 1 else sP0)
        r = 40 + 2 * c
        a(f'''v_perm_b32 v{r}, v{UD+4+d}, v{UD+d}, s{sp}
        v_perm_b32 v{r+1}, v{UD+12+d}, v{UD+8+d}, s{sp}
        ds_write_b64 v36, {vr(r,2)} offset:{c*USTR}''')
    a('s_waitcnt lgkmcnt(0)\ns_barrier')
    hooks['after_barrier'](a)
    LOOK = hooks['look']

    class FragFmt:
        def __init__(self, r): self.r = r
        def __format__(self, spec): return vr(self.r + int(spec)) if spec else vr(self.r, 4)
    ends = [mi[i] for i, (t, _) in enumerate(seq) if 's_barrier' in t]
    prio = {}
    for lo, hi in zip([0] + ends, ends):
        for q, fr in enumerate((0, 0.45, 0.75, 0.92)):
            prio[lo + int(fr * (hi - lo))] = 3 - q
    for i, (txt, keys) in enumerate(seq):
        look = lambda k: LOOK * (2 if k[0] in 'KG4G8' else 1)
        while nxt < len(order) and mi[first[order[nxt]]] <= mi[i] + LOOK and pool:
            k = order[nxt]; nxt += 1
            reg[k] = pool.pop(0)
            pend += [(mi[first[k]], x) for x in load(k, reg[k])]
        if txt.startswith('v_mfma'):
            if mi[i] in prio and hooks['prio']:
                a(f's_setprio {prio[mi[i]]}')
            cntr = 0 if i and seq[i - 1][0].startswith('v_mfma') else 1
            while pend and (pend[0][0] <= mi[i] + 3 or cntr < 2):
                x = pend.pop(0)[1]; cntr += 1
                if hooks['cx'] != 'nord':
                    a(x)
        assert all(k in reg for k in keys) and all(p[0] > mi[i] or not keys for p in pend), (i, txt)
        if 'L_b_out7' in txt:
            hooks['st'](a, 4)
        if hooks['cx'] == 'nord' and 0:
            pass
        a(txt.format(*[FragFmt(reg[k]) for k in keys]))
        for k in set(keys):
            if last[k] == i:
                pool.append(reg[k])
        if txt.startswith('ds_write_b64 v68') and f'offset:{TY}' not in txt:
            pool.append(int(txt.split('v[')[1].split(':')[0]))
    a(';@age 0')
    hooks['st'](a, 5)
    hooks['end'](a)
    a('s_endpgm')
    a(late)
```

```python
import sys, json
from asmlib import *
import gen_b, gen_a
NAME = 'concat_heads__linear_kernel_hedgehog__ssm_conv_s4d__prompt'
HEAD = open('cdna_kernels/%s.s.ref' % NAME).read().split('; @launch')[0]
STAMP_OFF = 64 << 20

def build(opts=None):
    opts = opts or {}
    a = Asm()
    diag = opts.get('diag')
    amp = opts.get('amp')
    role = ['L']
    def stamp(a, i, final=False):
        if i == 99: return
        if amp:
            r = role[0]
            if final: role[0] = {'L': 'C', 'C': 'B', 'B': ''}[r]
            if r != amp[0]: return
            if i == amp[1]: a('s_memrealtime s[80:81]')
            if final:
                if opts.get('rel'):
                    if amp[1] == 8: a('s_mov_b32 s80, s96')
                    a('''s_waitcnt vmcnt(0) lgkmcnt(0)
                    L_amp1:
                    s_sleep 2
                    s_memrealtime s[82:83]
                    s_waitcnt lgkmcnt(0)
                    s_sub_u32 s82, s82, s96
                    s_cmp_lt_u32 s82, 5000
                    s_cbranch_scc1 L_amp1
                    v_mov_b32 v2, 0
                    global_load_dword v3, v2, s[32:33] offset:192 sc1
                    s_waitcnt vmcnt(0)
                    v_readfirstlane_b32 s96, v3
                    s_sub_u32 s96, 0, s96''')
                a(f'''s_waitcnt vmcnt(0) lgkmcnt(0)
                s_sub_u32 s80, s80, s96
                s_mul_i32 s80, s80, {amp[2]}
                s_add_u32 s80, s80, 10000''')
                if opts.get('wbl2'):
                    a('''L_amp0:
                    s_sleep 2
                    s_memrealtime s[82:83]
                    s_waitcnt lgkmcnt(0)
                    s_sub_u32 s82, s82, s96
                    s_cmp_lt_u32 s82, 5000
                    s_cbranch_scc1 L_amp0
                    buffer_wbl2 sc1
                    s_waitcnt vmcnt(0)''')
                a('''L_amp:
                s_sleep 2
                s_memrealtime s[82:83]
                s_waitcnt lgkmcnt(0)
                s_sub_u32 s82, s82, s96
                s_cmp_lt_u32 s82, s80
                s_cbranch_scc1 L_amp''')
            return
        if not diag: return
        a(f'{"s_memtime" if opts.get("cyc") else "s_memrealtime"} s[{80+2*i}:{81+2*i}]')
        if final:
            a('s_waitcnt lgkmcnt(0)\nv_mov_b32 v2, 0')
            if opts.get('chunks') and role[0] == 'C': a('v_mov_b32 v2, v255')
            role[0] = {'L': 'C', 'C': 'B'}.get(role[0], 'x')
            for k in range(9):
                a(f'v_writelane_b32 v2, s{80+2*k}, {k}')
            a('s_getreg_b32 s80, hwreg(HW_REG_HW_ID)\ns_getreg_b32 s81, hwreg(HW_REG_XCC_ID)\nv_writelane_b32 v2, s80, 30\nv_writelane_b32 v2, s81, 31\nv_writelane_b32 v2, s99, 29')
            a(f's_lshl_b32 s80, s2, 3\ns_add_u32 s80, s80, s3\ns_lshl_b32 s80, s80, 8\ns_add_u32 s80, s80, {STAMP_OFF}\nv_lshl_add_u32 v3, v1, 2, s80\nglobal_store_dword v3, v2, s[34:35]')
    if diag or amp: a('s_memtime s[96:97]' if opts.get('cyc') else 's_memrealtime s[96:97]')
    a('''
    s_load_dwordx8 s[8:15], s[0:1], 0''')
    if not opts.get('ksplit'):
        a('s_load_dwordx16 s[16:31], s[0:1], 32\ns_load_dwordx4 s[32:35], s[0:1], 96')
    a('''
    s_cmp_ge_u32 s2, 256
    s_cbranch_scc1 L_end
    v_lshrrev_b32 v2, 6, v0
    v_and_b32 v1, 63, v0
    s_and_b32 s4, s2, 7
    v_readfirstlane_b32 s3, v2
    s_lshr_b32 s5, s2, 3
    ''')
    if opts.get('bal', 1):
        a('s_sub_u32 s36, s5, 21\ns_xor_b32 s37, s5, 3\ns_cmp_lt_u32 s36, 2\ns_cselect_b32 s5, s37, s5')
    if opts.get('cpf', 1):
        a(f'''
        s_getpc_b64 s[6:7]
        L_pc:
        s_lshl_b32 s36, s5, 10
        v_lshl_add_u32 v2, v2, 7, s36
        v_lshl_add_u32 v2, v1, 15, v2
        v_min_u32 v2, L_end-L_pc, v2
        s_mov_b64 exec, 3
        global_load_dword v31, v2, s[6:7] ;touch
        s_mov_b64 exec, -1
        ''')
    if opts.get('probe'):
        ptr, n = opts['probe']
        a(f'''s_waitcnt lgkmcnt(0)
        s_cmp_lg_u32 s3, 0
        s_cbranch_scc1 L_probe_done
        s_mul_i32 s36, s2, {n*128}
        v_mov_b32 v2, s36
        s_mov_b32 s37, {n}
        L_probe:
        global_load_dword v3, v2, s[{ptr}:{ptr+1}]
        s_waitcnt vmcnt(0)
        v_add_u32 v2, 128, v2
        s_sub_u32 s37, s37, 1
        s_cmp_lg_u32 s37, 0
        s_cbranch_scc1 L_probe
        L_probe_done:
        s_barrier''')
    if opts.get('rel'):
        a('''s_lshr_b32 s36, s2, 3
        s_or_b32 s36, s36, s3
        s_cbranch_scc1 L_norel
        s_waitcnt lgkmcnt(0)
        s_sub_u32 s36, 0, s96
        v_mov_b32 v2, 0
        v_mov_b32 v3, s36
        s_mov_b64 exec, 1
        global_atomic_umax v2, v3, s[32:33] offset:192
        s_mov_b64 exec, -1
        L_norel:''')
    top, a = a, Asm()
    a(';@reset\nL_A:')
    if opts.get('noA'):
        a('s_waitcnt lgkmcnt(0)')
        for k in range(8): stamp(a, k)
        stamp(a, 6, final=True)
        role[0] = 'L'
        a('s_endpgm')
    gen_a.gen_a(a, opts, stamp)
    part_a, a = a, Asm()
    if opts.get('ksplit'):
        a('s_load_dwordx16 s[16:31], s[0:1], 32\ns_load_dwordx4 s[32:35], s[0:1], 96')
    a('''
    s_mul_i32 s6, s4, 10
    s_add_u32 s6, s6, s5
    s_sub_u32 s6, s6, 22
    ''')
    nop = lambda a: None
    PF = opts.get('pf', 1)
    NALL = opts.get('nall', 1)
    noclear = opts.get('noclear')
    SX, SW, sOW, sA, sB, sUT = 72, 76, 39, 36, 37, 61
    SEQ = opts.get('seq', 'X1 X2 X3 X4 X5|X6 X7 X8 X9')
    SEQ = [x.split() for x in SEQ.split('|')]
    cnt_i = lambda l: sum({'S': 2, 'X': 3, 'x': 4, 'w': 1}[t[0]] for t in l)
    NI1 = cnt_i(SEQ[0])
    def pf(a, items):
        a(f's_mov_b32 exec_hi, {(1 << 26) - 1}')
        for t in items:
            c = int(t[1:])
            if t[0] == 'X':
                a(f'''s_mov_b32 s{sOW}, {c*64*3840}
                buffer_load_dword v31, v160, s[{SX}:{SX+3}], 0 offen offset:{128*c} ;touch
                buffer_load_dword v31, v161, s[{SX}:{SX+3}], 0 offen offset:{128*c} ;touch
                buffer_load_dword v31, v162, s[{SW}:{SW+3}], s{sOW} offen ;touch''')
            elif t[0] == 'x':
                a('s_mov_b32 exec_hi, -1')
                for i in range(4):
                    a(f's_add_u32 s{sOW}, s38, {8192*i}\nbuffer_load_dword v31, v171, s[{SX}:{SX+3}], s{sOW} offen ;touch')
                a(f's_mov_b32 exec_hi, {(1 << 26) - 1}')
            elif t[0] == 'w':
                a(f's_mov_b32 exec_hi, {(1 << 28) - 1}\ns_add_u32 s{sOW}, s70, {c*160*3840}\nbuffer_load_dword v31, v171, s[{SW}:{SW+3}], s{sOW} offen {opts.get("wnt", "")} ;touch\ns_mov_b32 exec_hi, {(1 << 26) - 1}')
            else:
                a(f'''s_mov_b32 s{sOW}, {c*128*3840}
                buffer_load_dword v31, v168, s[{SX}:{SX+3}], 0 offen offset:{256*c} ;touch
                buffer_load_dword v31, v169, s[{SW}:{SW+3}], s{sOW} offen ;touch''')
        a('s_mov_b32 exec_hi, -1')
    def before_params(a):
        a(f'''s_sub_u32 s{sA}, s5, 22
        s_mul_i32 s{sA}, s{sA}, 58
        v_add_u32 v160, s{sA}, v1
        v_mul_u32_u24 v161, 21846, v160
        v_lshrrev_b32 v161, 16, v161
        v_mul_u32_u24 v161, 896, v161
        s_lshr_b32 s{sB}, s4, 1
        s_mul_i32 s{sB}, s{sB}, 320
        s_and_b32 s{sB}, s{sB}, 0xff80
        v_lshl_add_u32 v162, v160, 7, s{sB}
        v_add_u32 v162, v161, v162
        s_and_b32 s{sB}, s4, 1
        s_mul_i32 s{sB}, s{sB}, 960
        s_add_u32 s{sA}, s{sA}, s{sB}
        v_add_u32 v160, s{sA}, v160
        v_mul_u32_u24 v160, 1280, v160
        v_add_u32 v161, {58*1280}, v160
        s_mul_i32 s{sA}, s40, 1152
        s_add_u32 s{sA}, s{sA}, {gen_a.OBYTES}
        v_lshl_add_u32 v163, v1, 4, s{sA}
        v_mov_b32 v164, -1
        v_mov_b32 v165, -1
        v_pk_mov_b32 v[166:167], v[164:165], v[164:165]''')
    def mid_params(a):
        a('''global_store_dwordx4 v163, v[164:167], s[34:35] sc1
        s_mov_b64 exec, 0xff
        global_store_dwordx4 v163, v[164:167], s[34:35] offset:1024 sc1
        s_mov_b64 exec, -1''')
        gen_a.srd(a, SX, 8, 2048 * 1280)
        gen_a.srd(a, SW, 10, 640 * 3840)
        c0 = int(SEQ[0][0][1:])
        a(f'''
        s_barrier
        s_cmp_lg_u32 s3, 0
        s_cbranch_scc1 L_b_nopf
        s_movk_i32 s{sA}, {128*c0}
        s_mov_b32 exec_hi, {(1 << 26) - 1}
        L_b_pf:
        s_mul_i32 s{sOW}, s{sA}, {64*3840//128}
        buffer_load_dword v31, v160, s[{SX}:{SX+3}], s{sA} offen ;touch
        buffer_load_dword v31, v161, s[{SX}:{SX+3}], s{sA} offen ;touch
        buffer_load_dword v31, v162, s[{SW}:{SW+3}], s{sOW} offen ;touch
        s_addk_i32 s{sA}, 128
        s_cmpk_lt_u32 s{sA}, {128*(c0+len(SEQ[0]))}
        s_cbranch_scc1 L_b_pf
        s_mov_b32 exec_hi, -1
        s_branch L_b_nopf
        ;@split
        L_b_nopf:''')
    def after_params(a):
        a(f'''
        s_sub_u32 s{sUT}, 2, s3
        s_max_u32 s{sUT}, s{sUT}, {opts.get('ut', 1)}
        s_cmp_ge_u32 s3, 2
        s_cselect_b32 s{sUT}, 100, s{sUT}''')
    def wait_params(a):
        a(f'''s_waitcnt vmcnt({NI1}) lgkmcnt(0)
        s_cmp_eq_u32 s3, 0
        s_cbranch_scc1 L_b_w0
        s_waitcnt vmcnt(0)
        L_b_w0:
        s_barrier
        s_cmp_lg_u32 s3, 7
        s_cbranch_scc1 L_b_w1
        v_mov_b32 v162, 0
        v_mov_b32 v163, 1
        s_mov_b64 exec, 1
        global_atomic_add v162, v163, s[32:33]
        s_mov_b64 exec, -1
        L_b_w1:
        ;@reset''')
    def out_of_line(a):
        a(f'''s_branch L_b_kgen
        L_b_side:
        s_cmp_eq_u32 s3, 1
        s_cbranch_scc1 L_b_ut''')
        if PF:
            pf(a, SEQ[1])
        if opts.get('wopf', 1):
            a(f'''s_mul_i32 s{sA}, s6, {80*128}
            v_lshl_add_u32 v163, v1, 7, s{sA}
            global_load_dword v31, v163, s[14:15] ;touch
            v_add_u32 v163, 8192, v163
            s_mov_b64 exec, 0xffff
            global_load_dword v31, v163, s[14:15] ;touch
            s_mov_b64 exec, -1''')
        a(f'''s_branch L_b_kgen
        L_b_ut:
        s_sub_u32 s{sA}, s5, 22
        s_mul_i32 s{sA}, s{sA}, {205*1280}
        s_mul_i32 s{sB}, s4, 160
        s_and_b32 s{sB}, s{sB}, 0xff80
        s_add_u32 s{sA}, s{sA}, s{sB}
        v_lshrrev_b32 v161, 1, v1
        v_mul_u32_u24 v161, 1280, v161
        v_and_b32 v160, 1, v1
        v_lshl_add_u32 v160, v160, 7, v161
        s_mov_b32 exec_hi, {(1 << 28) - 1}''')
        for i in range(7):
            a(f'buffer_load_dword v31, v160, s[48:51], s{sA} offen ;touch\ns_add_u32 s{sA}, s{sA}, {30*1280}')
        a('s_mov_b64 exec, -1\n;@reset')
    def loop_end(a, cnt):
        assert cnt == 60
        a(f'''s_cmp_eq_u32 s{cnt}, s{sUT}
        s_cbranch_scc1 L_b_side''')
    def after_loop(a):
        stamp(a, 1)
    slot = lambda a, k: None
    def end(a):
        if opts.get('bwb'):
            a(f's_cmp_lg_u32 s3, 7\ns_cbranch_scc1 L_b_nowb\ns_cmp_lt_u32 s5, {opts["bwb"]}\ns_cbranch_scc1 L_b_nowb\ns_waitcnt vmcnt(0)\nbuffer_wbl2 sc1\nL_b_nowb:')
        stamp(a, 3)
        if diag: a('s_waitcnt vmcnt(0)')
        stamp(a, 6, final=True)
    def pre_loop(a):
        if opts.get('pfonly'):
            a(f's_waitcnt vmcnt({NI1})')
            stamp(a, 0)
            a('s_cmp_lg_u32 s3, 1\ns_cbranch_scc1 L_x\ns_waitcnt vmcnt(0)\nv_mov_b32 v162, 0\nv_mov_b32 v163, 1\ns_mov_b64 exec, 1')
            if opts['pfonly'] == 1: a('global_atomic_add v162, v163, s[32:33]')
            a('s_mov_b64 exec, -1\nL_x:\ns_cmp_lg_u32 s3, 0\ns_cbranch_scc1 L_y')
            a(f's_waitcnt vmcnt({NI1//2})')
            stamp(a, 1)
            pf(a, SEQ[1])
            n2 = cnt_i(SEQ[1])
            a(f's_waitcnt vmcnt({n2})')
            stamp(a, 2)
            a(f's_waitcnt vmcnt({n2//2})')
            stamp(a, 4)
            a(f's_waitcnt vmcnt(0)')
            stamp(a, 5)
            a('s_branch L_z\nL_y:')
            for k in (1, 2, 4, 5): stamp(a, k)
            a('L_z:')
            stamp(a, 3)
            stamp(a, 6, final=True)
            a('s_endpgm')
    hooks = dict(pre_loop=pre_loop, mid_params=mid_params, before_params=before_params, after_params=after_params, after_u=nop, st=stamp, wait_params=wait_params, slot=slot, loop_end=loop_end,
                 after_loop=after_loop, out_of_line=out_of_line, before_barrier=nop, after_barrier=lambda a: stamp(a, 2), end=end)
    hooks['nou'] = opts.get('nou')
    hooks.update(stages=opts.get('stages', [2, 4, 6, 7]), look=opts.get('look', 6), age=opts.get('age', 5), ubar=opts.get('ubar', 1), prio=opts.get('cprio', 1), cx=opts.get('cx'), wbst=opts.get('wbst', []), bf=opts.get('bf', ''), bres=opts.get('bres', 8), u2=opts.get('u2', 6))
    gen_b.gen_b(a, 6, hooks)
    k = a.lines.index(';@split')
    if opts.get('bhead', 0):
        top('s_cmp_lt_u32 s5, 22\ns_cbranch_scc1 L_A')
        top(a.lines[:k] + part_a.lines + [';@reset'] + a.lines[k:])
    else:
        top('s_cmp_ge_u32 s5, 22\ns_cbranch_scc1 L_B')
        top(part_a.lines + [';@reset', 'L_B:'] + a.lines)
    a = top
    a('L_end:')
    body = a.finish()
    if opts.get('align', 1):
        body = align8(body)
    txt = HEAD + '; @launch grid=(256,1,1) block=(512,1,1) lds=163840\n'
    txt += f'''.amdgcn_target "amdgcn-amd-amdhsa--gfx950"
.text
.globl {NAME}_kernel
.p2align 8
.type {NAME}_kernel,@function
{NAME}_kernel:
'''
    txt += '\n'.join(l if l.endswith(':') else '    ' + l for l in body if not l.startswith(';@'))
    txt += f'''
    s_endpgm
.section .rodata,"a"
.p2align 6
.amdhsa_kernel {NAME}_kernel
  .amdhsa_next_free_vgpr 256
  .amdhsa_next_free_sgpr 102
  .amdhsa_accum_offset 256
  .amdhsa_group_segment_fixed_size 0
  .amdhsa_kernarg_size 112
  .amdhsa_user_sgpr_count 2
  .amdhsa_user_sgpr_kernarg_segment_ptr 1
  .amdhsa_system_sgpr_workgroup_id_x 1
.end_amdhsa_kernel
'''
    return txt
if __name__ == '__main__':
    out = sys.argv[1] if len(sys.argv) > 1 else 'k.s'
    opts = json.loads(sys.argv[2]) if len(sys.argv) > 2 else {}
    open(out, 'w').write(build(opts))
```

```python
from asmlib import *
from gen_b import f32, LOG2E, zipl

SLOT = 49152
WOFF = 24576
WOB = 77824
WPB = 147456
KVI = 159744
FLAG = 163840 - 64
OBYTES = 2048 * 1280
KVS = 4096
KVBYTES = 11 * 16 * KVS
NCLEAR = 80
BIG = 0x7f000000

S_WAVE, S_XCD, S_IDX = 3, 4, 5
S_X, S_W, S_WPHI, S_WO, S_OUT, S_DBG, S_WS = 8, 10, 12, 14, 30, 32, 34
sRT, sP, sPQ, sT0, sT1, sT2, sT3 = 36, 37, 38, 39, 40, 41, 42
SRX, SRW, SRO, SRK = 44, 48, 52, 56
LANE = 1
MF32 = 'v_mfma_f32_32x32x16_bf16'
MF16 = 'v_mfma_f32_16x16x32_bf16'
CAP = 1 << 20


def srd(a, d, base, size, add=0):
    if add:
        a(f's_add_u32 s{d}, s{base}, {add}\ns_addc_u32 s{d+1}, s{base+1}, 0')
    else:
        a(f's_mov_b32 s{d}, s{base}\ns_mov_b32 s{d+1}, s{base+1}')
    a(f's_mov_b32 s{d+2}, {size}\ns_mov_b32 s{d+3}, 0x20000')


def pf_addr(a, vi, vx, vw, t, n, sa, sb):
    a(f'''
    s_and_b32 s{sa}, s{S_XCD}, 1
    s_mul_i32 s{sa}, s{sa}, 960
    s_lshr_b32 s{sb}, s{S_XCD}, 1
    s_mul_i32 s{sb}, s{sb}, 320
    s_and_b32 s{sb}, s{sb}, 0xff80
    v_add_u32 v{vx}, s{sa}, v{vi}
    v_mul_u32_u24 v{vx}, 1280, v{vx}
    v_subrev_u32 v{t}, 1152, v{vi}
    v_cmp_gt_u32 vcc, {n - 1152}, v{t}
    v_mul_u32_u24 v{t+1}, 21846, v{t}
    v_lshrrev_b32 v{t+1}, 16, v{t+1}
    v_mul_u32_u24 v{t+1}, 896, v{t+1}
    v_lshl_add_u32 v{t}, v{t}, 7, s{sb}
    v_add_u32 v{t}, v{t}, v{t+1}
    v_mov_b32 v{t+1}, {BIG}
    v_cndmask_b32 v{vw}, v{t+1}, v{t}, vcc
    v_cmp_gt_u32 vcc, 1152, v{vi}
    v_cndmask_b32 v{vx}, v{t+1}, v{vx}, vcc
    ''')


def pf_init(a, nall, sw, vx, vw, t, sa, sb):
    a(f'''
    s_lshl_b32 s{sa}, s{S_IDX}, 2
    s_add_u32 s{sa}, s{sa}, s{sw}
    v_mul_u32_u24 v{t+2}, 3277, v{LANE}
    v_lshrrev_b32 v{t+2}, 16, v{t+2}
    v_mul_u32_u24 v{t+3}, 20, v{t+2}
    v_sub_u32 v{t+3}, v{LANE}, v{t+3}
    v_mul_u32_u24 v{t+3}, 88, v{t+3}
    v_add_u32 v{t+3}, s{sa}, v{t+3}
    ''')
    pf_addr(a, t + 3, vx, vw, t, 1728, sa, sb)
    a(f'''
    v_lshl_add_u32 v{vx}, v{t+2}, 7, v{vx}
    v_mul_u32_u24 v{t+2}, {64*3840}, v{t+2}
    v_add_u32 v{vw}, v{vw}, v{t+2}
    ''')


def clear_check(a, late, lbl, vc, vz):
    a(f'''
    v_readfirstlane_b32 s{sT0}, v{vc}
    s_mov_b32 s{sT1}, 0
    s_cmp_lt_u32 s{sT0}, {NCLEAR}
    s_cbranch_scc1 {lbl}
    {lbl}_ok:
    ''')
    late.append(f'''
    ;@reset
    {lbl}:
    s_sleep 32
    global_load_dword v{vc}, v{vz}, {sr(S_DBG,2)} sc1
    s_add_u32 s{sT1}, s{sT1}, 1
    s_waitcnt vmcnt(0)
    v_readfirstlane_b32 s{sT0}, v{vc}
    s_cmp_ge_u32 s{sT1}, {CAP}
    s_cselect_b32 s{sT0}, {NCLEAR}, s{sT0}
    s_cmp_lt_u32 s{sT0}, {NCLEAR}
    s_cbranch_scc1 {lbl}
    s_branch {lbl}_ok
    ''')


def gen_a(a, opts, stamp):
    if opts.get('qtouch', 1):
        a(f'''
        s_cmp_gt_u32 s{S_WAVE}, 1
        s_cbranch_scc1 L_a_nt
        s_add_u32 s{sT0}, s98, s{S_IDX}
        s_mul_i32 s{sT0}, s{sT0}, 48
        s_lshr_b32 s{sT1}, s{S_XCD}, 1
        s_mul_i32 s{sT1}, s{sT1}, 320
        s_and_b32 s{sT1}, s{sT1}, 0xff80
        s_mul_i32 s{sT2}, s{S_IDX}, 10
        s_lshl_b32 s{sT3}, s{S_WAVE}, 1
        s_cselect_b32 s{sT0}, s{sT2}, s{sT0}
        s_cselect_b32 s{sT1}, s{sT1}, {128 * opts.get('xt', 0)}
        v_lshrrev_b32 v2, s{sT3}, v{LANE}
        v_add_u32 v2, s{sT0}, v2
        v_min_u32 v2, 2047, v2
        v_mul_u32_u24 v2, 1280, v2
        v_bfe_u32 v3, v{LANE}, 0, s{sT3}
        v_lshl_add_u32 v3, v3, 7, s{sT1}
        v_add_u32 v2, v2, v3
        s_cselect_b32 exec_lo, 0x77777777, -1
        s_mov_b32 exec_hi, 0xffff
        s_cselect_b32 exec_hi, 0x77, exec_hi
        s_waitcnt lgkmcnt(0)
        s_cselect_b64 s[6:7], {sr(S_W,2)}, {sr(S_X,2)}
        global_load_dword v31, v2, s[6:7] ;touch
        ''')
        if opts.get('t2'):
            a(f's_movk_i32 s{sT0}, 128\ns_cselect_b32 s{sT0}, {64*3840}, s{sT0}\nv_add_u32 v2, s{sT0}, v2\nglobal_load_dword v31, v2, s[6:7] ;touch')
        a(f'''
        s_mov_b64 exec, -1
        L_a_nt:
        ''')
    if opts.get('ksplit'):
        a('s_load_dwordx2 s[30:31], s[0:1], 88\ns_load_dwordx4 s[32:35], s[0:1], 96')
    a(f'''
    s_add_u32 s{sT0}, s98, s{S_IDX}
    s_lshr_b32 s{sRT}, s{sT0}, 2
    {f"s_add_u32 s{sT0}, s{sT0}, s{sRT}" if opts.get('mix', 1) else ""}
    s_and_b32 s{sT0}, s{sT0}, 3
    s_lshr_b32 s{sT1}, s{S_XCD}, 1
    s_lshl_b32 s{sT1}, s{sT1}, 2
    s_add_u32 s{sP}, s{sT0}, s{sT1}
    s_xor_b32 s{sPQ}, s{sP}, {opts.get('qswap', 1)}
    s_cmp_lt_u32 s{S_WAVE}, 4
    s_cbranch_scc1 L_a_C
    ''')
    late = []
    gen_l(a, opts, stamp, late)
    a(';@reset\nL_a_C:')
    gen_c(a, opts, stamp, late)
    a('s_endpgm')
    a(late)


def gen_l(a, opts, stamp, late):
    sLW, sSX, sSW, sCNT, sXB, sWB0, sPT, sWB, sWO, sC1, sC2 = 60, 61, 62, 63, 64, 65, 66, 67, 68, 69, 43
    sMK, sMQ, sM, sH, sK1, sK2, sHN, sFA = 70, 72, 74, 6, 16, 17, 18, 19
    SRWO = 20
    VX, VW = 2, 8
    LD, RD, SEL = 32, 80, 88
    VWO, VH, VK, VKW, VCL, VP, VZ, VC, VHV = 96, 97, 98, 102, 103, 104, 108, 109, 110
    a(f's_setprio {opts.get("lprio", 1)}\ns_sub_u32 s{sLW}, s{S_WAVE}, 4')
    a(f's_mov_b32 s{SRX+2}, {2048*1280}\ns_mov_b32 s{SRX+3}, 0x20000\ns_mov_b32 s{SRW+2}, {640*3840}\ns_mov_b32 s{SRW+3}, 0x20000')
    a(f's_waitcnt lgkmcnt(0)\ns_mov_b64 {sr(SRX,2)}, {sr(S_X,2)}\ns_mov_b64 {sr(SRW,2)}, {sr(S_W,2)}')
    if opts.get('setup_at', 3) < 0:
        a('s_branch L_l_setup\nL_l_back:')
    a(f"""
    v_lshrrev_b32 v14, 3, v{LANE}
    v_lshrrev_b32 v15, 4, v{LANE}
    v_and_b32 v16, 7, v{LANE}
    s_and_b32 s{sT1}, s{sLW}, 1
    s_lshl_b32 s{sT1}, s{sT1}, 2
    v_xor_b32 v17, v15, v16
    v_xor_b32 v17, s{sT1}, v17
    v_mul_u32_u24 v19, 1280, v14
    v_lshl_add_u32 v{VX}, v17, 4, v19
    v_and_b32 v15, 1, v15
    v_lshlrev_b32 v15, 2, v15
    v_xor_b32 v17, v15, v16
    v_lshl_add_u32 v{VWO}, v17, 4, v19
    s_lshr_b32 s{sT1}, s{sT1}, 1
    v_lshrrev_b32 v15, 5, v{LANE}
    v_and_b32 v17, 3, v{LANE}
    v_lshl_add_u32 v17, v15, 2, v17
    v_xor_b32 v17, s{sT1}, v17
    v_bfe_u32 v14, v{LANE}, 2, 3
    v_mul_u32_u24 v18, 3840, v14
    v_lshl_add_u32 v18, v17, 4, v18
    s_mul_i32 s{sT1}, s{sP}, 80
    s_and_b32 s{sT1}, s{sT1}, 0xffc0
    s_add_u32 s{sT1}, s{sT1}, 1280
    s_mul_i32 s{sT2}, s{sPQ}, 80
    s_and_b32 s{sT2}, s{sT2}, 0xffc0
    v_add_u32 v{VW}, s{sT1}, v18
    v_add_u32 v{VW+4}, s{sT2}, v18
    v_add_u32 v{VW+2}, 1280, v{VW}
    s_and_b32 s{sT1}, s{sP}, 3
    v_subrev_u32 v15, s{sT1}, v17
    v_cmp_gt_u32 {sr(sMK,2)}, 5, v15
    s_and_b32 s{sT1}, s{sPQ}, 3
    v_subrev_u32 v15, s{sT1}, v17
    v_and_b32 v15, 7, v15
    v_cmp_gt_u32 {sr(sMQ,2)}, 6, v15
    v_cmp_eq_u32 vcc, 5, v15
    v_mov_b32 v16, {BIG}
    v_cndmask_b32 v{VW+4}, v{VW+4}, v16, vcc
    """)
    for i in range(1, 6):
        a(f'v_add_u32 v{VX+i}, {i*32*1280}, v{VX}')
    for p in range(3):
        a(f'v_add_u32 v{VW+2*p+1}, {32*3840}, v{VW+2*p}')
    a(f"""
    s_mul_i32 s{sSX}, s{sRT}, 24
    s_add_u32 s{sSX}, s{sSX}, s{sLW}
    s_mul_i32 s{sSX}, s{sSX}, {8*1280}
    s_mul_i32 s{sSW}, s{sLW}, {8*3840}
    s_lshl_b32 m0, s{sLW}, 10
    s_mov_b32 s{sCNT}, 0
    """)
    if opts.get('thr') or opts.get('latewo'):
        a(f's_lshr_b32 s{sFA}, s{sP}, 2\ns_xor_b32 s{sFA}, s{sFA}, s{sP}\ns_and_b32 s{sFA}, s{sFA}, 1')
    TH = opts.get('thr', 0)
    if TH:
        a(f's_cmp_eq_u32 s{sFA}, 0\ns_cbranch_scc1 L_l_loopf')
    for tg in ('', 'f') if TH else ('',):
        a(f'L_l_loop{tg}:')
        SPL = opts.get('split', 8)
        for i in range(12):
            if i in (6, 10):
                a(f's_mov_b64 exec, {sr(sMK if i == 6 else sMQ,2)}')
            if opts.get('nodma'):
                pass
            elif i < 6:
                a(f'buffer_load_dwordx4 v{VX+i}, {sr(SRX,4)}, s{sSX} offen lds')
            else:
                a(f'buffer_load_dwordx4 v{VW+i-6}, {sr(SRW,4)}, s{sSW} offen lds')
            a('s_add_u32 m0, m0, 4096')
            if tg:
                a(f's_waitcnt vmcnt({TH})')
            if i == opts.get('setup_at', 3):
                a(f's_cmp_eq_u32 s{sCNT}, 0\ns_cbranch_scc1 L_l_setup\nL_l_back{tg}:')
            if i + 1 == SPL:
                a(f"""
                s_cmp_eq_u32 s{sCNT}, 0
                s_cbranch_scc1 L_l_first{tg}
                s_waitcnt vmcnt({SPL})
                s_barrier
                L_l_first{tg}:""")
        a(f"""
        s_mov_b64 exec, -1
        s_cmp_lt_u32 m0, {2*SLOT}
        s_cselect_b32 s{sT1}, {3*SLOT}, 0
        s_add_u32 m0, m0, s{sT1}
        s_sub_u32 m0, m0, {2*SLOT}
        s_add_u32 s{sSX}, s{sSX}, 128
        s_add_u32 s{sSW}, s{sSW}, {64*3840}
        s_add_u32 s{sCNT}, s{sCNT}, 1
        s_cmp_lt_u32 s{sCNT}, 10
        s_cbranch_scc1 L_l_loop{tg}
        """)
        if TH and not tg:
            a('s_branch L_l_after')
    a('L_l_after:')
    b = Asm()
    b(f"""
    ;@reset
    L_l_setup:
    s_cmp_ge_u32 s{S_IDX}, 10
    s_cselect_b32 s{sT0}, 10, 0
    s_cselect_b32 s{sT1}, 4, 0
    s_sub_u32 s{sT0}, s{S_IDX}, s{sT0}
    s_lshl_b32 s{sT0}, s{sT0}, 7
    s_mul_i32 s{sWO}, s{sLW}, {8*1280}
    s_add_u32 s{sWO}, s{sWO}, s{sT0}
    s_lshl_b32 s{sWB}, s{sLW}, 10
    s_add_u32 s{sWB}, s{sWB}, {WOB}
    """)
    srd(b, SRWO, S_WO, 640 * 1280)
    b(f's_cmp_ge_u32 s{S_IDX}, 20\ns_cselect_b32 s{SRWO+2}, 0, s{SRWO+2}')
    srd(b, SRO, S_WS, OBYTES)
    srd(b, SRK, S_WS, KVBYTES, OBYTES)
    b(f"""
    s_mul_i32 s{sC1}, s{sRT}, 6
    s_add_u32 s{sC1}, s{sC1}, s{sLW}
    s_lshl_b32 s{sC1}, s{sC1}, 4
    s_add_u32 s{sC1}, s{sC1}, s{sPQ}
    s_mul_i32 s{sC1}, s{sC1}, 2560
    s_add_u32 s{sC2}, s{sC1}, {4*40960}
    s_cmp_ge_u32 s{sLW}, 2
    s_cselect_b32 s{sC2}, {BIG}, s{sC2}
    v_lshlrev_b32 v{VCL}, 4, v{LANE}
    v_mov_b32 v{VP}, -1
    v_mov_b32 v{VP+1}, -1
    v_mov_b32 v{VP+2}, -1
    v_mov_b32 v{VP+3}, -1
    v_mov_b32 v{VZ}, 0
    v_mov_b32 v{VHV}, 0
    v_and_b32 v14, 15, v{LANE}
    v_lshrrev_b32 v15, 4, v{LANE}
    s_lshl_b32 s{sT0}, s{sLW}, 6
    v_add_u32 v16, s{sT0}, v14
    s_lshl_b32 s{sT1}, s{sPQ}, 12
    v_lshl_add_u32 v17, v15, 16, s{sT1}
    """)
    for c in range(4):
        b(f"""v_add_u32 v18, {16*c}, v16
        v_min_u32 v18, 239, v18
        v_lshl_add_u32 v{VK+c}, v18, 4, v17""")
    b(f"""
    v_lshrrev_b32 v17, 1, v15
    v_lshl_add_u32 v16, v17, 4, v16
    v_and_b32 v17, 1, v15
    v_lshlrev_b32 v17, 3, v17
    v_lshl_add_u32 v{VKW}, v16, 4, v17
    v_add_u32 v{VKW}, {KVI}, v{VKW}
    v_and_b32 v16, 1, v14
    v_lshlrev_b32 v16, 4, v16
    v_mov_b32 v17, 0x3f80
    v_lshlrev_b32 v16, v16, v17
    v_lshrrev_b32 v17, 1, v14
    """)
    for m in range(0, 8, 2):
        b(f'v_cmp_eq_u32 vcc, {m}, v17\nv_cmp_eq_u32 {sr(sM,2)}, {m+1}, v17\nv_cndmask_b32 v{SEL+m}, 0, v16, vcc\nv_cndmask_b32 v{SEL+m+1}, 0, v16, {sr(sM,2)}')
    b(f"""
    v_lshl_add_u32 v{VH}, v14, 16, s{sT1}
    s_lshl_b32 s{sHN}, s{sRT}, 4
    s_add_u32 s{sHN}, s{sHN}, s{sP}
    s_lshl_b32 s{sHN}, s{sHN}, 12
    s_cmp_eq_u32 s{sLW}, 0
    s_cselect_b32 s{sHN}, s{sHN}, {BIG}
    s_mov_b32 s{sK1}, {4*16*KVS}
    s_mov_b32 s{sK2}, {8*16*KVS}
    s_mov_b64 {sr(sH,2)}, 0xfff
    """)
    b([f's_mov_b64 {sr(sM+2*m,2)}, -1' for m in range(3)])
    if TH:
        b(f's_cmp_eq_u32 s{sFA}, 0\ns_cbranch_scc1 L_l_backf')
    b('s_branch L_l_back')

    def wo(i0, i1):
        for i in (list(range(5, 20)) + list(range(5)))[i0:i0 if opts.get('nowo') else i1]:
            a(f's_add_u32 m0, s{sWB}, {4096*i}\ns_add_u32 s{sT0}, s{sWO}, {32*1280*i}')
            a(f'buffer_load_dwordx4 v{VWO}, {sr(SRWO,4)}, s{sT0} offen lds')
    W0 = opts.get('wo0', 6)
    W1 = opts.get('wo1', 15)
    a(f'global_load_dword v{VC}, v{VZ}, {sr(S_DBG,2)} sc1')
    LW = opts.get('latewo', 0)
    if LW:
        a(f's_cmp_eq_u32 s{sFA}, 0\ns_cbranch_scc1 L_l_f1')
        late.append(f';@reset\nL_l_f1:\ns_waitcnt vmcnt(1)\ns_barrier\ns_waitcnt vmcnt(0)\ns_branch L_l_f1b')
    wo(0, W0)
    a(f's_waitcnt vmcnt({1 if opts.get("nowo") else W0 + 1})\ns_barrier')
    wo(W0, W1)
    a(f's_waitcnt vmcnt({W1})\nL_l_f1b:')
    clear_check(a, late, 'L_l_clr', VC, VZ)
    a('s_barrier')
    if LW == 3:
        a(f's_cmp_lg_u32 s{sFA}, 0\ns_cbranch_scc1 L_l_f3')
        wo(0, W1)
        a('L_l_f3:')
    elif LW:
        a(f's_cmp_eq_u32 s{sFA}, 0\ns_cbranch_scc1 L_l_f2')
    wo(W1, 20)
    a('L_l_f2:')
    if opts.get('cre', 0):
        a(f"""
        s_getpc_b64 s[24:25]
        L_l_pc:
        s_lshl2_add_u32 s{sT0}, s{S_IDX}, s{sLW}
        s_lshl_b32 s{sT0}, s{sT0}, 8
        s_add_u32 s{sT0}, s{sT0}, L_c_tail-L_l_pc
        v_lshl_add_u32 v14, v{LANE}, 7, s{sT0}
        v_min_u32 v14, L_end-L_l_pc, v14
        s_mov_b64 exec, 3
        global_load_dword v31, v14, s[24:25] ;touch
        s_mov_b64 exec, -1
        """)
    for so in (sC1, sC2):
        a(f"""buffer_store_dwordx4 {vr(VP,4)}, v{VCL}, {sr(SRO,4)}, s{so} offen sc1
        buffer_store_dwordx4 {vr(VP,4)}, v{VCL}, {sr(SRO,4)}, s{so} offen offset:1024 sc1
        s_mov_b32 exec_hi, 0
        buffer_store_dwordx4 {vr(VP,4)}, v{VCL}, {sr(SRO,4)}, s{so} offen offset:2048 sc1
        s_mov_b32 exec_hi, -1""")
    a(f"""
    s_mov_b32 s{sCNT}, 0
    s_waitcnt vmcnt(0)
    """)
    stamp(a, 2)
    a(f"""
    s_setprio 3
    s_barrier
    """)
    if opts.get('early1', 1) == 1:
        a(f's_mov_b64 exec, 1\nbuffer_store_dword v{VZ}, v{VZ}, {sr(SRK,4)}, s{sHN} offen offset:3840 sc1')
    if LW == 2:
        a(f's_mov_b64 exec, -1\ns_cmp_lg_u32 s{sFA}, 0\ns_cbranch_scc1 L_l_poll')
        wo(0, 20)
        a(';@reset')
    a(f"""
    L_l_poll:
    s_mov_b64 exec, {sr(sH,2)}
    buffer_load_dword v{VHV}, v{VH}, {sr(SRK,4)}, 0 offen offset:3840 sc1
    s_mov_b64 exec, -1
    s_cmp_lg_u32 s{sCNT}, 0
    s_cbranch_scc1 L_l_nob
    s_barrier
    """)
    if LW == 1:
        a(f's_cmp_lg_u32 s{sFA}, 0\ns_cbranch_scc1 L_l_nob')
        wo(0, 20)
        a(';@reset')
    a(f"""
    L_l_nob:
    s_waitcnt vmcnt(0)
    {"s_sleep %d" % opts['psleep'] if opts.get('psleep') else ""}
    s_add_u32 s{sCNT}, s{sCNT}, 1
    s_cmp_ge_u32 s{sCNT}, {CAP}
    s_cbranch_scc1 L_l_got1
    s_mov_b32 s{sT1}, s{sH}
    v_cmp_eq_u32 {sr(sH,2)}, -1, v{VHV}
    """)
    if opts.get('prog', 0):
        a(f"""
        s_cmp_eq_u32 s{sH}, s{sT1}
        s_cbranch_scc1 L_l_poll
        s_cmp_lg_u32 s{sH}, 0
        s_cbranch_scc1 L_l_part
        """)
        late.append(';@reset\nL_l_part:')
        for m in range(3):
            late.append(f's_and_b32 s{sT0}, s{sH}, {15 << (4*m)}\ns_cselect_b64 exec, 0, {sr(sM+2*m,2)}\ns_cbranch_execz L_l_pk{m}\ns_mov_b64 {sr(sM+2*m,2)}, 0')
            for c in range(4):
                late.append(f'buffer_load_dwordx4 {vr(LD+16*m+4*c,4)}, v{VK+c}, {sr(SRK,4)}, {("0", f"s{sK1}", f"s{sK2}")[m]} offen sc1')
            late.append(f'L_l_pk{m}:')
        late.append('s_branch L_l_poll')
    else:
        a(f's_cmp_lg_u32 s{sH}, 0\ns_cbranch_scc1 L_l_poll')
    stamp(a, 4)
    a('L_l_poll2:')
    for m in range(3):
        a(f's_mov_b64 exec, {sr(sM+2*m,2)}\ns_cbranch_execz L_l_sk{m}')
        for c in range(4):
            a(f'buffer_load_dwordx4 {vr(LD+16*m+4*c,4)}, v{VK+c}, {sr(SRK,4)}, {("0", f"s{sK1}", f"s{sK2}")[m]} offen sc1')
        a(f'L_l_sk{m}:')
    a(f"""
    s_mov_b64 exec, -1
    s_add_u32 s{sCNT}, s{sCNT}, 1
    s_cmp_ge_u32 s{sCNT}, {CAP}
    s_cbranch_scc1 L_l_got1
    """)
    h2 = f's_mov_b64 exec, 1\nbuffer_store_dword v{VZ}, v{VZ}, {sr(SRK,4)}, s{sHN} offen offset:3968 sc1\ns_mov_b64 exec, -1'
    E2 = opts.get('early2', 1)
    if E2 >= 3:
        a(f's_waitcnt vmcnt({E2})\n{h2}\ns_waitcnt vmcnt(1)')
    else:
        a('s_waitcnt vmcnt(0)')
    if E2 == 2:
        a(h2)
    for m in range(3):
        for c in range(4):
            r, d = LD + 16 * m + 4 * c, RD + 4 * (c >> 1)
            a(f'{MF16} {vr(d,4)}, {vr(SEL+4*(c&1),4)}, {vr(r,4)}, {"0" if m == 0 and not c & 1 else vr(d,4)}')
            a(f'v_max3_u32 v11, v{r}, v{r+1}, {"v11" if c else "0"}\nv_max3_u32 v11, v11, v{r+2}, v{r+3}')
        a(f'v_cmp_eq_u32 {sr(sM+2*m,2)}, -1, v11')
    a(f"""
    s_or_b64 vcc, {sr(sM,2)}, {sr(sM+2,2)}
    s_or_b64 vcc, vcc, {sr(sM+4,2)}
    s_cbranch_scc1 L_l_poll2
    L_l_got1:
    """)
    stamp(a, 5)
    for i in range(4):
        a(f'v_cvt_pk_bf16_f32 v{12+i}, v{RD+2*i}, v{RD+2*i+1}')
    a(f"""
    ds_write_b64 v{VKW}, v[12:13]
    ds_write_b64 v{VKW}, v[14:15] offset:512
    s_waitcnt lgkmcnt(0)
    s_barrier
    """)
    if E2 == 1:
        a(f's_mov_b64 exec, 1\nbuffer_store_dword v{VZ}, v{VZ}, {sr(SRK,4)}, s{sHN} offen offset:3968 sc1\ns_mov_b64 exec, -1')
    stamp(a, 3)
    stamp(a, 6, final=True)
    a('s_endpgm')
    a(b.lines)


def gen_c(a, opts, stamp, late):
    sHH, sPG, sDEL, sCNT, sC = 60, 61, 62, 63, 64
    sHM = 66
    sO1, sO2, sOB, sEPS, sQ0, sHN, sH2, sH = 68, 69, 70, 71, 72, 48, 49, 50
    AX, AW, AE, AKV, AO = 2, 4, 8, 16, 24
    ACC, FR, WP, PK = 32, 128, 184, 216
    PKT = (216, 232, 168)
    ONE = 248
    AS = 251
    T = lambda i: PK + i
    a(f's_and_b32 s{sHH}, s{S_WAVE}, 1\ns_lshr_b32 s{sPG}, s{S_WAVE}, 1')
    c32, hf, r4, cq, fh, q4, c16 = (T(i) for i in range(7))
    t0, t1, t2, t3 = (T(i) for i in range(8, 12))
    a(f'''
    v_and_b32 v{c32}, 31, v{LANE}
    v_lshrrev_b32 v{hf}, 5, v{LANE}
    v_bfe_u32 v{r4}, v{LANE}, 2, 2
    v_and_b32 v{cq}, 3, v{LANE}
    v_bfe_u32 v{fh}, v{LANE}, 4, 1
    v_lshrrev_b32 v{q4}, 4, v{LANE}
    v_and_b32 v{c16}, 15, v{LANE}
    s_mov_b32 s{sHM}, 0
    s_mov_b32 s{sHM+1}, -1
    v_bfe_u32 v{t0}, v{LANE}, 1, 3
    v_xor_b32 v{t0}, v{t0}, v{q4}
    v_lshlrev_b32 v{t0}, 4, v{t0}
    v_lshl_add_u32 v{t0}, v{c16}, 7, v{t0}
    s_mul_i32 s{sT0}, s{sPG}, {96*128}
    v_add_u32 v{AX}, s{sT0}, v{t0}
    v_xor_b32 v{AX+1}, 64, v{AX}
    s_and_b32 s{sT0}, s{sP}, 3
    s_lshl_b32 s{sT0}, s{sT0}, 4
    s_and_b32 s{sT1}, s{sPQ}, 3
    s_lshl_b32 s{sT1}, s{sT1}, 4
    s_add_u32 s{sT2}, s{sT1}, 88
    s_mul_i32 s{sT3}, s{sHH}, 40
    s_add_u32 s{sT0}, s{sT0}, s{sT3}
    s_add_u32 s{sT1}, s{sT1}, s{sT3}
    s_add_u32 s{sT1}, s{sT1}, 16384
    s_lshl_b32 s{sT3}, s{sHH}, 3
    s_sub_u32 s{sT2}, s{sT2}, s{sT3}
    s_and_b32 s{sT2}, s{sT2}, 127
    s_add_u32 s{sT2}, s{sT2}, 16384
    v_lshl_add_u32 v{t0}, v{q4}, 4, v{r4}
    v_lshlrev_b32 v{t0}, 6, v{t0}
    v_add_u32 v{t0}, {WOFF}, v{t0}
    v_lshlrev_b32 v{t1}, 5, v{fh}
    v_and_b32 v{t2}, 1, v{cq}
    v_lshrrev_b32 v{t3}, 1, v{cq}
    v_lshl_add_u32 v{t3}, v{t2}, 1, v{t3}
    v_lshl_add_u32 v{AW}, v{t3}, 3, s{sT0}
    v_lshl_add_u32 v{AW+2}, v{t3}, 3, s{sT1}
    s_add_u32 s{sT0}, s{sT0}, 32
    s_add_u32 s{sT1}, s{sT1}, 32
    v_lshl_add_u32 v{AW+1}, v{t2}, 13, s{sT0}     ; k4, v4
    v_mov_b32 v{t2}, s{sT1}
    v_mov_b32 v{t3}, s{sT2}
    v_cmp_eq_u32 vcc, 2, v{cq}
    v_cndmask_b32 v{AW+1}, v{AW+1}, v{t2}, vcc
    v_cmp_eq_u32 vcc, 3, v{cq}
    v_cndmask_b32 v{AW+1}, v{AW+1}, v{t3}, vcc
    v_and_b32 v{t2}, 64, v{AW}
    v_mad_u32_u24 v{t2}, v{t2}, 7, v{t0}
    v_xad_u32 v{AW}, v{AW}, v{t1}, v{t2}
    v_and_b32 v{t2}, 64, v{AW+1}
    v_mad_u32_u24 v{t2}, v{t2}, 7, v{t0}
    v_xad_u32 v{AW+1}, v{AW+1}, v{t1}, v{t2}
    v_and_b32 v{t2}, 64, v{AW+2}
    v_mad_u32_u24 v{t2}, v{t2}, 7, v{t0}
    v_xad_u32 v{AW+2}, v{AW+2}, v{t1}, v{t2}
    ''')
    a(f'''
    s_lshl_b32 s{sT0}, s{sP}, 1
    s_add_u32 s{sT0}, s{sT0}, s{sHH}
    s_mul_i32 s{sT0}, s{sT0}, 800
    s_lshl_b32 s{sT1}, s{sPQ}, 1
    s_add_u32 s{sT1}, s{sT1}, s{sHH}
    s_mul_i32 s{sT1}, s{sT1}, 800
    v_lshlrev_b32 v29, 4, v{LANE}
    s_lshl_b32 s{sT2}, s{S_WAVE}, 11
    s_add_u32 s{sT2}, s{sT2}, {WPB}
    s_mov_b32 m0, s{sT2}
    s_waitcnt lgkmcnt(0)
    ''')
    srd(a, SRX, S_WPHI, 32 * 800)
    a(f'''
    buffer_load_dwordx4 v29, {sr(SRX,4)}, s{sT0} offen lds
    s_add_u32 m0, m0, 1024
    buffer_load_dwordx4 v29, {sr(SRX,4)}, s{sT1} offen lds
    ''')
    srd(a, SRO, S_WS, OBYTES)
    srd(a, SRK, S_WS, KVBYTES, OBYTES)
    main_a, a = a, Asm()
    a(f'''
    v_and_b32 v{t0}, 9, v{LANE}
    v_bfe_u32 v{t1}, v{LANE}, 2, 1
    v_lshl_or_b32 v{t0}, v{t1}, 1, v{t0}
    v_bfe_u32 v{t1}, v{LANE}, 1, 1
    v_lshl_or_b32 v{t0}, v{t1}, 2, v{t0}         ; sigma
    s_lshl_b32 s{sT0}, s{sHH}, 1
    s_add_u32 s{sT0}, s{sT0}, s{sPG}
    s_mul_i32 s{sT0}, s{sT0}, {96*128}
    v_lshl_add_u32 v{t1}, v{c32}, 7, s{sT0}
    v_mul_u32_u24 v{t2}, 5, v{hf}
    ''')
    for i in (0, 1, 2, 3, 4, 7):
        a(f'v_add_u32 v{t3}, {i}, v{t2}' if i < 5 else f'v_add_u32 v{t3}, 10, v{hf}')
        a(f'v_xor_b32 v{t3}, v{t3}, v{t0}\nv_lshl_add_u32 v{AE+i}, v{t3}, 3, v{t1}')
    a(f'''
    v_lshl_add_u32 v{t1}, v{c16}, 7, s{sT0}
    v_lshl_add_u32 v{t3}, v{fh}, 1, v{hf}
    v_add_u32 v{t3}, 12, v{t3}
    v_xor_b32 v{t3}, v{t3}, v{t0}
    v_lshl_add_u32 v{AE+5}, v{t3}, 3, v{t1}
    ''')
    a(f'''
    v_and_b32 v{t0}, 1, v{r4}
    v_lshrrev_b32 v{t1}, 1, v{r4}
    v_lshl_or_b32 v{t0}, v{t1}, 2, v{t0}
    v_lshl_or_b32 v{t0}, v{fh}, 3, v{t0}
    v_xor_b32 v{t0}, v{t0}, v{cq}
    v_lshl_add_u32 v{t1}, v{q4}, 3, v{r4}
    s_mul_i32 s{sT0}, s{sHH}, {192*128}
    v_lshl_add_u32 v{t1}, v{t1}, 7, s{sT0}
    v_lshl_add_u32 v{AKV}, v{t0}, 3, v{t1}
    v_xor_b32 v{AKV+2}, 32, v{AKV}
    v_xor_b32 v{AKV+4}, 64, v{AKV}
    s_lshl_b32 s{sT0}, s{sPG}, 5
    s_xor_b32 s{sT0}, s{sT0}, 0x60
    v_xor_b32 v{AKV+6}, s{sT0}, v{AKV}
    ''')
    for i in range(4):
        a(f'v_xor_b32 v{AKV+2*i+1}, 16, v{AKV+2*i}')
    a(f'''
    v_bfe_u32 v{t0}, v{LANE}, 2, 1
    v_bfe_u32 v{t1}, v{LANE}, 3, 1
    v_lshl_add_u32 v{t1}, v{t0}, 1, v{t1}
    v_lshl_add_u32 v{t1}, v{t1}, 2, v{cq}
    v_add_u32 v{t2}, 80, v{cq}
    v_cmp_le_u32 vcc, 16, v{c32}
    v_cndmask_b32 v{t1}, v{t1}, v{t2}, vcc
    v_cndmask_b32 v{t0}, 8, 7, vcc
    v_mov_b32 v{t2}, 84
    v_cmp_le_u32 vcc, 24, v{c32}
    v_cndmask_b32 v{t1}, v{t1}, v{t2}, vcc
    s_mul_i32 s{sT0}, s{sHH}, 1920
    s_add_u32 s{sT0}, s{sT0}, {KVI}
    v_lshl_add_u32 v{t1}, v{t1}, 4, s{sT0}
    ''')
    oq = lambda ph: ph & 3 if ph < 8 else 4
    op = lambda ph: 8 * (ph >> 2) if ph < 8 else 8 * (ph - 8)
    for t in range(5):
        a(f'''v_cndmask_b32 v{t2}, {oq(t)}, {oq(5+t)}, {sr(sHM,2)}
        v_cndmask_b32 v{t3}, {op(t)}, {op(5+t)}, {sr(sHM,2)}
        v_lshl_add_u32 v{t2}, v{t2}, v{t0}, v{t3}
        v_add_u32 v{AO+t}, v{t1}, v{t2}''')
    a(f'''
    s_lshl_b32 s{sT0}, s{sRT}, 4
    s_add_u32 s{sT0}, s{sT0}, s{sP}
    s_lshl_b32 s{sT0}, s{sT0}, 12
    s_cmp_eq_u32 s{S_WAVE}, 3
    s_cselect_b32 s{sHN}, s{sT0}, {BIG}
    s_mul_i32 s{sT1}, s{sHH}, 1920
    s_add_u32 s{sT0}, s{sT0}, s{sT1}
    s_mul_i32 s{sT1}, s{sPG}, {1280 - 128}
    s_add_u32 s{sT0}, s{sT0}, s{sT1}
    v_lshl_add_u32 v{t1}, v{c16}, 4, s{sT0}
    s_lshl_b32 s{sT1}, s{sPG}, 3
    v_mov_b32 v{t3}, {BIG}
    v_cmp_gt_u32 vcc, s{sT1}, v{c16}
    v_cndmask_b32 v{t1}, v{t1}, v{t3}, vcc
    s_sub_u32 s{sT1}, 8, s{sPG}
    v_lshl_add_u32 v{AS}, v{q4}, s{sT1}, v{t1}
    s_lshl_b32 s{sT1}, 4, s{sT1}
    v_add_u32 v{t2}, s{sT1}, v{t1}
    v_cmp_gt_u32 {sr(sQ0,2)}, 16, v{LANE}
    v_cndmask_b32 v{AS+1}, v{t3}, v{t2}, {sr(sQ0,2)}
    s_mul_i32 s{sT0}, s{sRT}, 6
    s_mul_i32 s{sT1}, s{sPG}, 3
    s_add_u32 s{sT0}, s{sT0}, s{sT1}
    ''')
    for t in range(3):
        a(f'''s_cmp_lt_u32 s{sT0}, {64 - t}
        s_cselect_b32 s{sT1}, 0x3f80, 0
        v_mov_b32 v{ONE+t}, s{sT1}''')
    a(f'''
    s_lshl_b32 s{sT0}, s{sT0}, 5
    s_lshl_b32 s{sT1}, s{sPQ}, 1
    s_add_u32 s{sT0}, s{sT0}, s{sT1}
    s_add_u32 s{sT0}, s{sT0}, s{sHH}
    s_mul_i32 s{sT0}, s{sT0}, 1280
    v_lshl_add_u32 v{AS+2}, v{LANE}, 4, s{sT0}
    v_lshl_add_u32 v{t2}, v{fh}, 1, v{hf}
    v_mul_u32_u24 v{t2}, 40960, v{t2}
    v_lshl_add_u32 v{t2}, v{c16}, 4, v{t2}
    v_add_u32 v{t2}, s{sT0}, v{t2}
    v_cmp_gt_u32 vcc, 48, v{LANE}
    v_cndmask_b32 v{AS+3}, v{t3}, v{t2}, vcc
    ''')
    a(f'''
    v_lshrrev_b32 v{t0}, 1, v{cq}
    v_lshl_add_u32 v{t0}, v{fh}, 1, v{t0}        ; a
    v_mul_u32_u24 v{t1}, 40, v{r4}
    v_add_u32 v{t1}, s{sT2}, v{t1}
    v_lshl_add_u32 v{t0}, v{t0}, 3, v{t1}
    v_mul_u32_u24 v{t3}, 160, v{hf}
    v_add_u32 v{t2}, v{t0}, v{t3}
    v_add_u32 v{t3}, v{t1}, v{t3}
    s_waitcnt vmcnt(0)
    ''')
    for w in range(2):
        for o in range(2):
            b = WP + 16 * w + 8 * o
            for t in range(2):
                a(f'ds_read_b64_tr_b16 {vr(b+2*t,2)}, v{t3 if o else t2} offset:{1024*w + 320*t + 32*o}')
            a(f'ds_read_b64_tr_b16 {vr(b+4,2)}, v{t1 if o else t0} offset:{1024*w + 640 + 32*o}')
    a(f'''
    v_bfe_u32 v29, v{LANE}, 2, 1
    v_mov_b32 v30, 0x80008000
    v_mul_lo_u32 v29, v29, v30
    ''')
    for w in range(2):
        for o in range(2):
            b = WP + 16 * w + 8 * o
            for i in range(6):
                a(f'v_xor_b32 v{b+i}, v29, v{b+i}')
            for i in (4, 5):
                a(f'v_cndmask_b32 v{b+i}, 0, v{b+i}, {sr(sHM,2)}' if w else f'v_cndmask_b32 v{b+i}, v{b+i}, 0, {sr(sHM,2)}')
            a(f'v_mov_b32 v{b+6}, 0\nv_mov_b32 v{b+7}, 0')
    a(f's_mov_b32 s{sC}, {f32(LOG2E)}\ns_mov_b32 s{sO1}, 40960\ns_mov_b32 s{sO2}, 81920')
    a(f'''
    v_mov_b32 v31, 0
    ''')
    fill = [l for l in a.lines if not l.startswith(';')]
    a = main_a
    if opts.get('m16hack'):
        a([f'v_mov_b32 v{ACC+i}, 0' for i in range(96)])

    KM, VM, LF, QM = (lambda t, o=o: PKT[t] + o for o in (0, 4, 8, 12))

    def pack(t):
        b = ACC + 32 * t
        cv = [f'v_cvt_pk_bf16_f32 v{PKT[t]+i}, v{b+2*i}, v{b+2*i+1}' for i in range(16)]
        sw = [f'v_permlane16_swap_b32 v{PKT[t]+4*f+i}, v{PKT[t]+4*f+i+2}' for f in range(4) for i in range(2)]
        return cv[:4] + cv[8:12] + sw[:2] + cv[4:8] + sw[4:6] + cv[12:] + [f'v_cndmask_b32 v{LF(t)+2}, v{LF(t)+2}, v{ONE+t}, {sr(sHM,2)}']

    def vwr(t):
        return [f'ds_write_b64 v{AE+5}, {vr(VM(t),2)} offset:{4096*t}', f'ds_write_b64 v{AE+5}, {vr(VM(t)+2,2)} offset:{4096*t+2048}',
                f'ds_write_b64 v{AE+7}, {vr(LF(t)+2,2)} offset:{4096*t}']

    def wphi(t, w):
        b = FR if (t, w) == (0, 1) else ACC + 32 * t
        m = QM(t) if w else KM(t)
        o = []
        for s in range(2):
            for j in range(2):
                d = vr(b + 16 * j, 16)
                o.append(f'{MF32} {d}, {vr(WP+16*w+8*j+4*s,4)}, {vr(LF(t) if s else m,4)}, {d if s else "0"}')
        return o

    def softmax(t, ph, b=None):
        b = b or ACC + 32 * t
        m, m2, s, s2 = b + 20, b + 21, b + 22, b + 24
        o = [f'v_max3_f32 v{m}, v{b}, v{b+1}, v{b+2}', f'v_max3_f32 v{m2}, v{b+3}, v{b+4}, v{b+5}']
        for i in range(6, 20, 2):
            x = m if i % 4 == 2 else m2
            o.append(f'v_max3_f32 v{x}, v{x}, v{b+i}, v{b+i+1}')
        o += [f'v_max_f32 v{m}, v{m}, v{m2}', f'v_mul_f32 v{m}, s{sC}, v{m}']
        fm = [f'v_pk_fma_f32 {vr(b+2*i,2)}, {vr(b+2*i,2)}, {sr(sC,2)}, {vr(m,2)} op_sel_hi:[1,0,0] neg_lo:[0,0,1] neg_hi:[0,0,1]' for i in range(10)]
        ex = [f'v_exp_f32 v{b+i}, v{b+i}' for i in range(20)]
        ad = {1: f'v_pk_add_f32 {vr(s,2)}, {vr(b,2)}, {vr(b+2,2)}'}
        for i in range(2, 10):
            ad[i] = f'v_pk_add_f32 {vr(s,2)}, {vr(s,2)}, {vr(b+2*i,2)}'
        o += fm[:2]
        for i in range(10):
            o += ex[2 * i:2 * i + 2]
            if i + 2 < 10:
                o.append(fm[i + 2])
            if i - 1 in ad:
                o.append(ad[i - 1])
        o += [ad[9], f'v_add_f32 v{s}, v{s}, v{s+1}', f'v_rcp_f32 v{s}, v{s}']
        tail = []
        for i in range(10):
            tail.append(f'v_pk_mul_f32 {vr(b+2*i,2)}, {vr(b+2*i,2)}, {vr(s,2)} op_sel_hi:[1,0]')
        cv = [f'v_cvt_pk_bf16_f32 v{ph+i}, v{b+2*i}, v{b+2*i+1}' for i in range(10)]
        return o, tail, cv
    XF = FR

    def wreg(ch, f, ks):
        return ((152 if ch & 1 else 232) if f < 2 else 152) + 8 * f + 4 * ks

    def wread(ch, f, ks):
        return [f'ds_read_b64_tr_b16 {vr(wreg(ch,f,ks)+2*t,2)}, v{AW+(0,0,1,2)[f]} offset:{4096*ks + 256*t + (8192 if f == 1 else 0)}' for t in range(2)]

    def xread(tt):
        return [f'ds_read_b128 {vr(XF+8*(tt%3)+4*ks,4)}, v{AX+ks} offset:{2048*tt}' for ks in range(2)]

    def block(ch, tt):
        d = lambda f: vr(ACC + 32 * (tt >> 1) + 8 * f + 4 * (tt & 1), 4)
        if opts.get('nomfma'):
            return ['s_nop 0'] * 8
        return [f'{MF16} {d(f)}, {vr(wreg(ch,f,ks),4)}, {vr(XF+8*(tt%3)+4*ks,4)}, {"0" if ch == 0 and ks == 0 else d(f)}' for f in range(4) for ks in range(2)]

    def bar(ch):
        assert ch < 8 or not any(x.startswith('ds_') for x in fill)
        a('s_barrier')
        if ch in (0, 9):
            stamp(a, 7 if ch else 0)
    take = lambda n: [fill.pop(0) for _ in range(min(n, len(fill)))]
    a('s_setprio 2')
    bar(0)
    x0 = xread(0)
    a(wread(0, 0, 0) + x0[:1] + wread(0, 0, 1) + x0[1:] + sum([wread(0, f, ks) for f in range(1, 4) for ks in range(2)], []) + xread(1))
    rd, ep = xread(2), []
    for ch in range(10):
        dl = 2 * SLOT if ch % 3 == 0 else -SLOT
        ex = [f'v_add_u32 v{AX+i}, {dl}, v{AX+i}' for i in range(5)] if ch < 9 else []
        NB = opts.get('barlast', 5) if ch == 8 else 4
        for tt in range(6):
            if tt == NB:
                assert not rd and not ex
                a('s_waitcnt lgkmcnt(0)')
                bar(ch + 1)
                if ch < 9:
                    x0 = xread(0)
                    rd = wread(ch + 1, 0, 0) + x0[:1] + wread(ch + 1, 0, 1) + x0[1:] + wread(ch + 1, 1, 0) + wread(ch + 1, 1, 1)
            if tt == 5 and ch < 9:
                rd += xread(1)
            for n, m in enumerate(block(ch, tt)):
                a(m)
                if ch == 9 and (tt, n) in ((2, 3), (4, 3)):
                    a(ep); ep = pack(tt // 2 - 1)
                if tt == 5 and n >= 4 and ch < 9:
                    rd += wread(ch + 1, n >> 1, n & 1)
                if ch == 9 and tt >= 4 and n % 4 == 1:
                    if (tt, n) == (4, 1):
                        a(ep); ep = []
                    a([wphi(0, 0)[2 * (tt - 4) + n // 4]] + ep[:4]); ep = ep[4:]
                elif rd:
                    k = 3 if NB == 5 and tt == 5 else 2 if tt == 5 or (tt == 4 and n < 2) else 1
                    a(rd[:k]); rd = rd[k:]
                elif tt == 3 and ex:
                    a(ex.pop(0))
                elif ep:
                    k = 1 if ep[0].startswith('v_perm') else 2
                    a(ep[:k]); ep = ep[k:]
                else:
                    a(take(2 if n & 1 else 1))
            if tt < 3:
                rd += xread(tt + 3)
            elif tt == 5 and ch < 9:
                a(rd)
                rd = xread(2)
        assert ch < 8 or not fill, len(fill)
    a(ep)
    a(';@age 0')
    stamp(a, 1)
    a(interleave(wphi(1, 0), pack(2), start=1, ratio=7))
    pw = []
    for t in range(3):
        ph = FR + 12 * t
        o, tail, cv = softmax(t, ph)
        if t == 0:
            o = interleave(wphi(2, 0), o, ratio=5)
        pw += vwr(t)
        pw = ['\n'.join(pw[i:i + 2]) for i in range(0, len(pw), 2)]
        hint1 = f's_mov_b64 exec, 1\nbuffer_store_dword v31, v31, {sr(SRK,4)}, s{sHN} offen offset:3840 sc1\ns_mov_b64 exec, -1'
        if opts.get('early1', 1) == 7 - 2 * t:
            a(hint1)
        a(interleave(o, pw, start=opts.get('w0st', 50) if t == 0 else 0))
        if opts.get('early1', 1) == 6 - 2 * t:
            a(hint1)
        a(tail[:2])
        pw = []
        for i in range(10):
            if i + 2 < 10:
                a(tail[i + 2])
            a(cv[i])
            if i & 1:
                (a if t == 2 else pw.append)(f'ds_write_b64 v{AE+i//2}, {vr(ph+i-1,2)} offset:{4096*t}')
    a('s_waitcnt lgkmcnt(0)\ns_barrier')
    stamp(a, 2)
    a('L_c_tail:')
    KB = ACC

    def kvrd(ks):
        return [f'ds_read_b64_tr_b16 {vr(KB+16*ks+4*j+2*t,2)}, v{AKV+2*j+t} offset:{(32*ks+4*t)*128}' for j in (3, 0, 1, 2) for t in range(2)]
    qm = [wphi(t, 1) for t in range(3)]
    qsw = [[f'v_permlane16_swap_b32 v{QM(t)+i}, v{QM(t)+i+2}' for i in range(2)] for t in range(3)]
    pend = sum([kvrd(ks) for ks in range(6)], [])
    a(pend[:4] + qsw[0] + pend[4:6] + [qm[0][0]] + pend[6:10] + [qm[0][1]] + pend[10:14])
    pend = pend[14:]
    for ks in range(6):
        for j in range(3):
            d = vr(KM(j), 4)
            a(f'{MF16} {d}, {vr(KB+16*ks+4*j,4)}, {vr(KB+16*ks+12,4)}, {d if ks else "0"}')
            if j == 2 and ks < 2:
                a(qm[0][2 + ks])
            a(pend[:3]); pend = pend[3:]
    a(qsw[1] + qsw[2])
    S0, S1 = VM(0), VM(1)
    for j in (0, 1, 2):
        for i in range(2):
            a(f'v_cvt_pk_bf16_f32 v{(S0, S0+2, S1)[j]+i}, v{KM(j)+2*i}, v{KM(j)+2*i+1}')
    a(f'buffer_store_dwordx4 {vr(S0,4)}, v{AS}, {sr(SRK,4)}, 0 offen sc1')
    a(f'v_permlane16_swap_b32 v{S1}, v{S1+2}\nv_permlane16_swap_b32 v{S1+1}, v{S1+3}')
    a(f'buffer_store_dwordx4 {vr(S1,4)}, v{AS+1}, {sr(SRK,4)}, 0 offen sc1')
    if not opts.get('early1', 1):
        a(f's_mov_b64 exec, 1\nbuffer_store_dword v31, v31, {sr(SRK,4)}, s{sHN} offen offset:3840 sc1\ns_mov_b64 exec, -1')
    stamp(a, 3)
    if opts.get('ack'):
        a('s_waitcnt vmcnt(0)')
        stamp(a, 0)
    a('s_setprio 0\ns_barrier')
    for t in range(3):
        ph = FR + 12 * t
        o, tail, cv = softmax(t, ph, FR if t == 0 else None)
        if t == 0:
            a(interleave(qm[1] + qm[2], o, ratio=5))
        else:
            a(o)
        a(tail[:2])
        for i in range(10):
            if i + 2 < 10:
                a(tail[i + 2])
            a(cv[i])
        a(f'v_mov_b32 v{ph+10}, 0\nv_mov_b32 v{ph+11}, 0')
    KA = WP
    a(f'''
    v_mov_b32 v{KA+10}, 0
    v_mov_b32 v{KA+11}, 0
    s_mov_b32 s{sEPS}, {f32(1e-6)}
    ''')
    if opts.get('h2_k1', -1) >= 0:
        a(f'''
        s_cmp_ge_u32 s{S_IDX}, 10
        s_cselect_b32 s{sT1}, 4, 0
        s_lshl_b32 s{sT2}, s{S_XCD}, 3
        s_add_u32 s{sT2}, s{sT2}, s{sT1}
        s_add_u32 s{sT2}, s{sT2}, s{S_WAVE}
        s_mul_i32 s{sH2}, s{sT2}, 10923
        s_and_b32 s{sH2}, s{sH2}, 0xffff0000
        v_and_b32 v22, 15, v{LANE}
        v_lshlrev_b32 v22, 12, v22
        v_bfe_u32 v21, v{LANE}, 4, 1
        v_lshl_add_u32 v22, v21, 7, v22
        ''')
    a(f'''
    s_setprio 2
    s_waitcnt lgkmcnt(0)
    s_barrier
    ''')
    stamp(a, 4)
    for t in range(5):
        a(f'ds_read_b64 {vr(KA+2*t,2)}, v{AO+t}')
    if opts.get('h2_k1', -1) >= 0:
        a(f's_mov_b32 exec_hi, 0\nbuffer_load_dword v21, v22, {sr(SRK,4)}, s{sH2} offen offset:3840 sc1\ns_mov_b32 exec_hi, -1')
    om = [[f'{MF32} {vr(ACC+16*t,16)}, {vr(KA+4*s,4)}, {vr(FR+12*t+4*s,4)}, {vr(ACC+16*t,16) if s else "0"}' for s in range(3)] for t in range(3)]

    def ofin(t):
        b, o, so = ACC + 16 * t, PK + 8 * t, ('0', f's{sO1}', f's{sO2}')[t]
        mul = [f'v_pk_mul_f32 {vr(b+2*i,2)}, {vr(b+2*i,2)}, {vr(b+12,2)} op_sel_hi:[1,0]' for i in range(6)]
        cv = [f'v_cvt_pk_bf16_f32 v{o+i}, v{b+2*i}, v{b+2*i+1}' for i in range(6)]
        lo = (PK + 4, PK + 12, PK + 6)[t]
        cv[4:] = [f'v_cvt_pk_bf16_f32 v{lo+i}, v{b+8+2*i}, v{b+9+2*i}' for i in range(2)]
        st = [f'buffer_store_dwordx4 {vr(o,4)}, v{AS+2}, {sr(SRO,4)}, {so} offen sc1']
        head = [f'v_add_f32 v{b+12}, s{sEPS}, v{b+12}', f'v_rcp_f32 v{b+12}, v{b+12}']
        if t == 2:
            head += [f'v_cndmask_b32 v{PK+4+i}, v{PK+4+i}, v{PK+12+i}, {sr(sHM,2)}' for i in range(2)]
            return head + mul[4:] + mul[:4] + cv[4:] + cv[:4] + [f'v_permlane16_swap_b32 v{PK+4+i}, v{PK+6+i}' for i in range(2)] + st + \
                [f'buffer_store_dwordx4 {vr(PK+4,4)}, v{AS+3}, {sr(SRO,4)}, 0 offen offset:1024 sc1']
        return head + mul + cv + st
    a(om[0] + om[1][:2] + ['s_nop 5', om[1][2], 's_nop 2'])
    a(interleave(om[2], ofin(0), ratio=5))
    a(ofin(1) + ofin(2))
    if not opts.get('early2', 1):
        a(f's_mov_b64 exec, 1\nbuffer_store_dword v31, v31, {sr(SRK,4)}, s{sHN} offen offset:3968 sc1\ns_mov_b64 exec, -1')
    stamp(a, 5)
    a(f'''
    s_cmp_ge_u32 s{S_IDX}, 20
    s_cbranch_scc1 L_c_done
    {"s_mov_b32 s99, 0" if opts.get('diag') else ""}
    s_mov_b32 s{sCNT}, 0
    s_cmp_ge_u32 s{S_IDX}, 10
    s_cselect_b32 s{sT0}, 10, 0
    s_cselect_b32 s{sT1}, 4, 0
    s_sub_u32 s{sT0}, s{S_IDX}, s{sT0}
    s_lshl_b32 s{sT2}, s{S_XCD}, 3
    s_add_u32 s{sT2}, s{sT2}, s{sT1}
    s_add_u32 s{sT2}, s{sT2}, s{S_WAVE}
    s_mul_i32 s{sOB}, s{sT2}, 40960
    s_mul_i32 s{sH2}, s{sT2}, 10923
    s_lshr_b32 s{sH2}, s{sH2}, 16
    s_lshl_b32 s{sH2}, s{sH2}, 16
    s_mul_i32 s{sT2}, s{sT2}, {32*2560}
    s_lshl_b32 s{sT0}, s{sT0}, 7
    s_add_u32 s{sT2}, s{sT2}, s{sT0}
    v_lshlrev_b32 v2, 4, v{LANE}
    v_and_b32 v14, 31, v{LANE}
    v_lshrrev_b32 v15, 5, v{LANE}
    v_lshrrev_b32 v16, 4, v{LANE}
    v_mul_u32_u24 v16, 1280, v16
    v_and_b32 v17, 15, v{LANE}
    v_lshl_add_u32 v3, v17, 4, v16
    v_lshlrev_b32 v19, 12, v17
    v_mov_b32 v20, 0
    s_mul_i32 s{sT0}, s{S_WAVE}, {32*144}
    v_mul_u32_u24 v16, 144, v14
    v_lshl_add_u32 v16, v15, 5, v16
    v_add_u32 v8, s{sT0}, v16
    v_lshrrev_b32 v16, 3, v{LANE}
    v_and_b32 v17, 7, v{LANE}
    v_lshlrev_b32 v17, 4, v17
    v_mul_u32_u24 v18, 144, v16
    v_add3_u32 v9, v17, v18, s{sT0}
    v_mul_u32_u24 v18, 2560, v16
    v_add3_u32 v10, v17, v18, s{sT2}
    v_add_u32 v11, {8*2560}, v10
    v_add_u32 v12, {16*2560}, v10
    v_add_u32 v13, {24*2560}, v10
    v_bfe_u32 v14, v{LANE}, 2, 2                 ; r
    v_and_b32 v16, 1, v{LANE}
    v_bfe_u32 v17, v{LANE}, 4, 1
    v_lshl_add_u32 v16, v16, 1, v17
    v_bfe_u32 v17, v{LANE}, 1, 1
    v_lshl_add_u32 v16, v16, 1, v17
    v_bfe_u32 v17, v{LANE}, 3, 1
    v_lshl_add_u32 v16, v17, 3, v16
    v_lshlrev_b32 v16, 3, v16
    v_lshl_add_u32 v16, v14, 7, v16
    s_and_b32 s{sT0}, s{S_IDX}, {opts.get('rot', 3)}
    s_mul_i32 s{sT1}, s{sT0}, 20480
    s_add_u32 s{sT1}, s{sT1}, {WOB}
    v_add_u32 v16, s{sT1}, v16
    v_lshl_add_u32 v4, v15, 10, v16
    v_xor_b32 v5, 64, v4
    v_mul_u32_u24 v15, {40*128}, v15
    v_add_u32 v6, v15, v16
    v_xor_b32 v7, 64, v6
    ''')
    sG, sD = [72 + g for g in range(8)], [44, 45, 46]
    for p in range(4):
        a(f's_mul_i32 s{sG[2*p]}, s{sT0}, 10240\ns_add_u32 s{sG[2*p]}, s{sG[2*p]}, s{sOB}\ns_add_u32 s{sG[2*p+1]}, s{sG[2*p]}, 5120')
        if p < 3:
            a(f's_mov_b32 s{sD[p]}, 20480\ns_add_u32 s{sT0}, s{sT0}, 1\ns_and_b32 s{sT0}, s{sT0}, 3\ns_cselect_b32 s{sD[p]}, s{sD[p]}, {-3*20480}')
    AC, WF, OF, NR, NW = 32, 64, 192, 3, 16

    def old(g):
        so = f's{sG[g]}'
        b = OF + 20 * (g % NR)
        return [f'buffer_load_dwordx4 {vr(b+4*h,4)}, v2, {sr(SRO,4)}, {so} offen offset:{1280*h} sc1' for h in range(4)] + \
               [f'buffer_load_dwordx4 {vr(b+16,4)}, v3, {sr(SRO,4)}, {so} offen offset:1024 sc1']

    def ochk(g):
        b = OF + 20 * (g % NR)
        if opts.get('chk1'):
            return [f'v_max3_u32 v14, v{b+16}, v{b}, v{b+4}', f'v_max3_u32 v14, v14, v{b+8}, v{b+12}', 'v_cmp_eq_u32 vcc, -1, v14']
        return [f'v_max3_u32 v14, v{b+18}, v{b+19}, 0'] + [f'v_max3_u32 v14, v14, v{b+2*i}, v{b+2*i+1}' for i in range(9)] + ['v_cmp_eq_u32 vcc, -1, v14']
        return [f'v_max_u32 v14, v{b}, v{b+1}'] + [f'v_max3_u32 v14, v14, v{b+2*i}, v{b+2*i+1}' for i in range(1, 10)] + ['v_cmp_eq_u32 vcc, -1, v14']

    def wrd(k):
        g, h = divmod(k, 5)
        b = WF + 8 * (k % NW)
        o = (g % 2) * 80 * 128
        r = []
        if k in (10, 20, 30):
            r += [f'v_add_u32 v{4+i}, s{sD[k//10-1]}, v{4+i}' for i in range(4)]
        for j in range(2):
            for t in range(2):
                if h < 4:
                    r.append(f'ds_read_b64_tr_b16 {vr(b+4*j+2*t,2)}, v{4+j} offset:{o + (20*h+4*t)*128}')
                else:
                    r.append(f'ds_read_b64_tr_b16 {vr(b+4*j+2*t,2)}, v{6+j} offset:{o + (20*t+16)*128}')
        return r
    AH = opts.get('o_ahead', 2)
    LK = opts.get('g2pre', 16)
    pre = [x for k in range(LK) for x in wrd(k)]
    wq = [(k, x) for k in range(LK, 40) for x in wrd(k)]
    wrate, wacc = len(wq) / 72, 0.0
    K1, K2, NP0 = opts.get('h2_k1', -1), opts.get('h2_k', 0), opts.get('np0', 24)
    assert K2 == 0 and (K1 < 0 or opts.get('early1', 1) == 1)
    a(pre[:NP0])
    if K1 >= 0:
        a(f'''
        v_cmp_eq_u32 vcc, -1, v21
        s_mov_b64 {sr(sH,2)}, 0xffff
        s_bcnt1_i32_b32 s{sT0}, vcc_lo
        s_and_b32 s{sT1}, vcc_lo, 0xffff
        s_cselect_b32 s{sT0}, 99, s{sT0}
        s_cmp_gt_u32 s{sT0}, {K1}
        s_cbranch_scc1 L_c_poll
        L_c_go:
        ''')
        b = late.append
        b(';@reset')
    else:
        b = a
        a(f's_mov_b64 {sr(sH,2)}, 0xffff')
    b('L_c_poll:')
    if K2 >= 16:
        b(f's_waitcnt vmcnt({opts.get("o_wait", 0)})')
    else:
        b(f'''
        s_mov_b64 exec, {sr(sH,2)}
        buffer_load_dword v20, v19, {sr(SRK,4)}, s{sH2} offen offset:3968 sc1
        s_mov_b64 exec, -1
        {"s_sleep %d" % opts['psleep'] if opts.get('psleep') else ""}
        s_add_u32 s{sCNT}, s{sCNT}, 1
        v_cmp_eq_u32 {sr(sH,2)}, -1, v20
        s_bcnt1_i32_b32 s{sT0}, s{sH}
        s_cmp_ge_u32 s{sCNT}, {CAP}
        s_cselect_b32 s{sT0}, 0, s{sT0}
        s_cmp_gt_u32 s{sT0}, {K2}
        s_cbranch_scc1 L_c_poll
        ''')
    if K1 >= 0:
        b('s_branch L_c_go')
    if opts.get('ack') or opts.get('st0'):
        stamp(a, 1)
    a(old(0))
    n1 = NP0 + opts.get('np1', 20)
    a(pre[NP0:n1])
    a(old(1))
    a(pre[n1:])
    a(ochk(0))
    for g in range(8):
        a(f's_cbranch_vccnz L_c_fail{g}\nL_c_ok{g}:')
        if g == 0:
            stamp(a, 7 if opts.get('st0') else 99)
        late.append(f';@reset\nL_c_fail{g}:')
        if opts.get('diag'):
            late.append(f's_add_u32 s99, s99, {1 << (4 * g)}')
        for gg in range(g, min(8, g + (1 if opts.get('lite', 1) else AH))):
            late.extend(old(gg))
        late.extend(ochk(g))
        late.append(f'''s_add_u32 s{sCNT}, s{sCNT}, 1
        s_cmp_ge_u32 s{sCNT}, {CAP}
        s_cbranch_scc1 L_c_ok{g}
        s_cbranch_vccnz L_c_fail{g}''')
        if opts.get('lite', 1) and g < 7:
            late.extend(old(g + 1))
        late.append(f's_branch L_c_ok{g}')
        ld = old(g + AH) if g + AH < 8 else []
        ck = ochk(g + 1) if g < 7 else []
        for h in range(5):
            k = 5 * g + h
            for j in range(2):
                d = vr(AC + 16 * j, 16)
                a(f'{MF32} {d}, {vr(WF+8*(k%NW)+4*j,4)}, {vr(OF+20*(g%NR)+4*h,4)}, {d if k else "0"}')
                wacc += wrate
                while wq and wacc >= 1 and wq[0][0] - NW <= k - 1 + j:
                    assert wq[0][0] > k + 1
                    a(wq.pop(0)[1]); wacc -= 1
                n = 2 * h + j
                b = OF + 20 * (g % NR) + 16
                if n < 5 and not opts.get('nold'):
                    a(ld[n:n + 1])
                if n in (1, 3):
                    a(f'v_permlane16_swap_b32 v{b+n//2}, v{b+2+n//2}')
                if len(ck) == 3:
                    a(ck[:2] if n == 8 else ck[2:] if n == 9 else [])
                elif n >= 5:
                    a(ck[(0, 2, 4, 7, 9)[n-5]:(2, 4, 7, 9, 11)[n-5]])
    a(';@age 0')
    stamp(a, 0 if opts.get('st0') else 99)
    for j in range(2):
        for i in range(8):
            a(f'v_cvt_pk_bf16_f32 v{WF+8*j+i}, v{AC+16*j+2*i}, v{AC+16*j+2*i+1}')
            if i % 4 == 3:
                a(f'ds_write_b128 v8, {vr(WF+8*j+i-3,4)} offset:{64*j + (i//4)*16}')
    for i in range(4):
        a(f'ds_read_b128 {vr(WF+16+4*i,4)}, v9 offset:{i*8*144}')
    for i in range(4):
        a(f'global_store_dwordx4 v{10+i}, {vr(WF+16+4*i,4)}, {sr(S_OUT,2)} {opts.get("outf", "sc1")}')
    a('L_c_done:')
    stamp(a, 6, final=True)
```

```python
from asmlib import *
import struct


def f32(x):
    return '0x%08x' % struct.unpack('<I', struct.pack('<f', x))[0]


LOG2E = 1.4426950408889634
ROWS = 2064
XBASE = 32 * ROWS
XM = 57344
UBASE = 57 * ROWS
USTR = 4640
BAND = UBASE + 8 * USTR
TSTR = 8192
TQ, TG, TY = 1216, 2432, 3456
G4O = TG - 32 * 4
G8O = TG + 132 * 4 - 50 * 4
assert BAND + 7 * 1024 <= 163840

S_WAVE = 3
S_U, S_LOGA, S_AIM, S_CRE, S_CIM, S_LOGDT, S_DSK, S_OUT, S_DBG, S_WS = 16, 18, 20, 22, 24, 26, 28, 30, 32, 34


def cmul(d, x, y, t=None):
    if t is None:
        t = d
        assert d != x and d != y
    return [f'v_pk_mul_f32 {vr(t,2)}, {vr(x,2)}, {vr(y,2)} op_sel:[0,0] op_sel_hi:[0,1]',
            f'v_pk_fma_f32 {vr(d,2)}, {vr(x,2)}, {vr(y,2)}, {vr(t,2)} op_sel:[1,1,0] op_sel_hi:[1,0,1] neg_lo:[0,1,0]']


def zipl(*ls):
    out = []
    for i in range(max(map(len, ls))):
        for l in ls:
            if i < len(l):
                out.append(l[i])
    return out


def gen_b(a, S_BIDX, hooks):
    LANE = 1
    PAR = 2
    UD = 16
    sD, sT0, sT1, sT2, sLD, sDS, sUL = 40, 41, 42, 43, 44, 45, 46
    SRDU = 48
    a(f'''
    s_lshl_b32 s{sD}, s{S_BIDX}, 3
    s_add_u32 s{sD}, s{sD}, s{S_WAVE}            ; channel
    s_mul_i32 s{sT0}, s{sD}, 384
    v_mul_u32_u24 v14, 6, v{LANE}
    v_and_b32 v14, -4, v14
    v_add_u32 v14, s{sT0}, v14
    s_lshr_b32 s{sT1}, s{sD}, 1
    s_lshl_b32 s{sT1}, s{sT1}, 2
    s_add_u32 s{sT2}, s{sT1}, {2047*1280}
    ''')
    hooks['before_params'](a)
    a('s_waitcnt lgkmcnt(0)')
    for k, sp in enumerate((S_LOGA, S_AIM, S_CRE, S_CIM)):
        a(f'global_load_dwordx2 {vr(UD+2*k,2)}, v14, {sr(sp,2)}')
    a(f'''
    s_load_dword s{sLD}, {sr(S_LOGDT,2)}, s{sT1}
    s_load_dword s{sDS}, {sr(S_DSK,2)}, s{sT1}
    s_load_dword s{sUL}, {sr(S_U,2)}, s{sT2}
    ''')
    hooks['mid_params'](a)
    a(f'''
    v_mul_u32_u24 v15, {4*1280}, v0
    s_mov_b32 s{SRDU}, s{S_U}
    s_mov_b32 s{SRDU+1}, s{S_U+1}
    s_mov_b32 s{SRDU+2}, {2048*1280}
    s_mov_b32 s{SRDU+3}, 0x20000
    s_lshl_b32 s{sT0}, s{S_BIDX}, 4
    v_subrev_u32 v14, 1280, v15
    ''')
    hooks['after_params'](a)
    sUO = 47
    a(f's_mov_b32 s{sUO}, s{sT0}')
    uld = [
        f'buffer_load_dwordx4 {vr(UD,4)}, v14, {sr(SRDU,4)}, s{sUO} offen',
        f'buffer_load_dwordx4 {vr(UD+4,4)}, v15, {sr(SRDU,4)}, s{sUO} offen',
        f'buffer_load_dwordx4 {vr(UD+8,4)}, v15, {sr(SRDU,4)}, s{sUO} offen offset:1280',
        f'buffer_load_dwordx4 {vr(UD+12,4)}, v15, {sr(SRDU,4)}, s{sUO} offen offset:2560']
    hooks['after_u'](a)
    bt = [(off + 21 - h, 2 * h + 1) for off, h in ((-20, 1), (-16, 2), (-12, 1), (-8, 2), (-16, 4), (-8, 3))] + [(1, 7), (0, 1)]
    lo_pack = sum(l << (4 * i) for i, (l, w) in enumerate(bt))
    wd_pack = sum(w << (4 * i) for i, (l, w) in enumerate(bt))
    I16, QD = 32, 33
    a(f'''
    v_and_b32 v{I16}, 15, v{LANE}
    v_lshrrev_b32 v{QD}, 4, v{LANE}
    s_lshl_b32 s{sT1}, s{S_WAVE}, 2
    s_lshr_b32 s{sT2}, {hex(wd_pack)}, s{sT1}
    s_and_b32 s{sT2}, s{sT2}, 15
    s_bfm_b32 s{sT2}, s{sT2}, 0                   ; (1<<wid)-1
    s_lshr_b32 s{sT1}, {hex(lo_pack)}, s{sT1}
    s_and_b32 s{sT1}, s{sT1}, 15
    s_lshl_b32 s{sT2}, s{sT2}, s{sT1}
    v_lshlrev_b32 v34, v{I16}, s{sT2}
    v_lshlrev_b32 v35, 3, v{QD}
    v_lshrrev_b32 v34, v35, v34
    s_movk_i32 s{sT1}, 0x3f80
    s_cmp_eq_u32 s{S_WAVE}, 6
    s_cselect_b32 s{sT1}, 0xffff, s{sT1}
    s_mov_b32 s{sT2}, 0x10001
    ''')
    for r in range(4):
        a(f'''v_bfe_u32 v{36+r}, v34, {2*r}, 2
        v_lshl_or_b32 v{36+r}, v{36+r}, 15, v{36+r}
        v_and_b32 v{36+r}, s{sT2}, v{36+r}
        v_mul_u32_u24 v{36+r}, s{sT1}, v{36+r}''')
    a(f'''
    v_lshlrev_b32 v35, 4, v0
    v_add_u32 v35, {BAND}, v35
    s_cmp_eq_u32 s{S_WAVE}, 7
    s_cbranch_scc1 L_b_noband
    ds_write_b128 v35, v[36:39]
    L_b_noband:
    ''')
    AX, AY = 34, 35
    sM0Y, sM0X = 52, 53
    a(f'''
    v_and_b32 v36, 31, v{LANE}
    v_lshrrev_b32 v37, 5, v{LANE}
    s_lshl_b32 s{sM0Y}, s{S_WAVE}, 8
    s_add_u32 s{sM0X}, s{sM0Y}, {XM}
    v_lshl_add_u32 v37, v37, 4, s{sM0Y}
    v_mov_b32 v39, {ROWS}
    v_mad_u32_u24 v{AY}, v36, v39, v37
    v_cmp_eq_u32 vcc, 5, v36
    v_cndmask_b32 v38, v36, 4, vcc
    v_or_b32 v36, 1, v36
    v_cmp_eq_u32 vcc, 13, v36
    v_cndmask_b32 v38, v38, 7, vcc
    v_mad_u32_u24 v{AX}, v38, v39, v37
    v_add_u32 v{AX}, {XBASE}, v{AX}
    s_mov_b32 m0, s{sM0X}
    v_mov_b32 v36, 0x3f80
    ds_write_addtid_b32 v36 offset:{XBASE-XM}
    ''')
    a(f'''
    s_mul_i32 s{sT1}, s{S_WAVE}, {USTR}
    s_add_u32 s{sT1}, s{sT1}, {UBASE}
    v_mov_b32 v36, 0
    v_mov_b32 v37, 0
    v_lshl_add_u32 v38, v{LANE}, 3, s{sT1}
    ds_write_b64 v38, v[36:37]
    v_cmp_ne_u32 vcc, 0, v{LANE}
    v_mov_b32 v39, {512*8}
    v_cndmask_b32 v39, 0, v39, vcc
    v_add_u32 v38, v38, v39
    s_waitcnt lgkmcnt(0)
    s_bitcmp1_b32 s{sD}, 0
    s_cselect_b32 s{sT1}, 16, 0
    s_lshr_b32 s{sUL}, s{sUL}, s{sT1}
    s_and_b32 s{sUL}, s{sUL}, 0xffff
    s_lshr_b32 s{sLD}, s{sLD}, s{sT1}
    s_lshl_b32 s{sLD}, s{sLD}, 16
    s_lshr_b32 s{sDS}, s{sDS}, s{sT1}
    s_lshl_b32 s{sDS}, s{sDS}, 16
    v_writelane_b32 v36, s{sUL}, 1
    s_mov_b64 exec, 15
    ds_write_b64 v38, v[36:37] offset:512
    s_mov_b64 exec, -1
    ''')
    sDT, sC2, sL2E, sI2P = 54, 56, 58, 59
    l2e_hi = struct.unpack('<f', struct.pack('<f', LOG2E))[0]
    a(f'''
    s_mov_b32 s{sL2E}, {f32(LOG2E)}
    s_mov_b32 s{sI2P}, {f32(0.15915494309189535)}
    v_mov_b32 v36, s{sLD}
    v_mul_f32 v37, s{sL2E}, v36
    v_fma_f32 v38, v36, s{sL2E}, -v37
    v_fmac_f32 v38, {f32(LOG2E - l2e_hi)}, v36
    v_exp_f32 v37, v37
    v_mul_f32 v38, {f32(0.6931471805599453)}, v38
    v_fma_f32 v37, v37, v38, v37
    v_cvt_pk_bf16_f32 v37, v37, v37
    v_lshlrev_b32 v37, 16, v37
    v_add_f32 v38, v37, v37
    v_readfirstlane_b32 s{sDT}, v37
    v_readfirstlane_b32 s{sC2}, v38
    ''')
    ACC = 40
    W = {k: 56 + 2 * i for i, k in enumerate((1, 2, 3, 4, 5, 6, 7, 8, 64, 256, 512, 768, 1032))}
    Y0 = 82
    T0 = 98
    CV = 114
    FR = 176
    hooks['pre_loop'](a)
    a(f'v_and_b32 v36, 1, v{LANE}\nv_lshlrev_b32 v36, 4, v36')
    hooks['wait_params'](a)
    for k in range(4):
        r = UD + 2 * k
        a(f'''v_alignbit_b32 v{r}, v{r+1}, v{r}, v36
        v_lshrrev_b32 v{r+1}, v36, v{r+1}
        v_lshlrev_b32 v{PAR+k}, 16, v{r}
        v_and_b32 v{PAR+4+k}, 0xffff0000, v{r}
        v_lshlrev_b32 v{PAR+8+k}, 16, v{r+1}''')
    hooks['st'](a, 0)
    late = []
    xs = {1: 1, 2: 2, 3: 3, 256: 4, 258: 6, 260: 7, 4: 8, 5: 9, 6: 10, 7: 11, 262: 14, 264: 15,
          512: 16, 516: 17, 1032: 18, 1288: 19, 768: 20, 772: 21, 1544: 22, 1800: 23, 1024: 24}
    t = lambda i: T0 + 2 * i
    al, be = T0, T0 + 1
    put = lambda val, slot, isx: [('put', val, (XBASE - XM + slot * ROWS) if isx else slot * ROWS, '' if isx else '-')]
    mf = lambda it: [f'v_mfma_f32_32x32x16_bf16 {vr(ACC,16)}, {vr(FR+8*ks,4)}, {vr(FR+8*ks+4,4)}, {vr(ACC,16) if it or ks else "0"}' for ks in range(8)]
    cvn = 0
    for it in range(3):
        P = PAR + 4 * it
        if hooks['kprio']:
            a(f's_setprio {3 - it}')
        base = f'''
        v_mul_f32 v{P}, s{sL2E}, v{P}
        v_mul_f32 v{be}, s{sDT}, v{P+1}
        v_exp_f32 v{P}, v{P}
        v_mul_f32 v{be}, s{sI2P}, v{be}
        v_cvt_pk_bf16_f32 v{P}, v{P}, v{P}
        v_lshlrev_b32 v{P}, 16, v{P}
        v_fract_f32 v{T0+2}, v{be}
        v_mul_f32 v{al}, s{sDT}, v{P}
        v_mul_f32 v{T0+3}, 0x42800000, v{be}
        v_mul_f32 v{al}, s{sL2E}, v{al}
        v_fract_f32 v{T0+3}, v{T0+3}
        v_mul_f32 v{T0+5}, 0x42800000, v{al}
        v_cos_f32 v{W[1]}, v{T0+2}
        v_sin_f32 v{W[1]+1}, v{T0+2}
        v_exp_f32 v{T0+4}, -v{al}
        v_cos_f32 v{W[64]}, v{T0+3}
        v_sin_f32 v{W[64]+1}, v{T0+3}
        v_exp_f32 v{T0+6}, -v{T0+5}
        v_pk_mul_f32 {vr(W[1],2)}, {vr(W[1],2)}, {vr(T0+4,2)} op_sel_hi:[1,0]
        v_pk_mul_f32 {vr(Y0,2)}, {vr(P+2,2)}, {sr(sC2,2)} op_sel_hi:[1,0]
        v_pk_mul_f32 {vr(W[64],2)}, {vr(W[64],2)}, {vr(T0+6,2)} op_sel_hi:[1,0]
        s_mov_b32 m0, s{sM0X}'''.strip().split('\n')
        st = cmul(W[2], W[1], W[1]) + put(W[1], xs[1], 1) + cmul(W[4], W[2], W[2]) + put(W[2], xs[2], 1) + \
            cmul(W[8], W[4], W[4]) + put(W[4], xs[4], 1) + cmul(W[3], W[2], W[1]) + cmul(W[6], W[4], W[2]) + put(W[3], xs[3], 1) + \
            cmul(W[5], W[4], W[1]) + put(W[6], xs[6], 1) + cmul(W[7], W[4], W[3]) + put(W[5], xs[5], 1) + put(W[7], xs[7], 1) + \
            cmul(t(0), W[64], W[64]) + cmul(W[256], t(0), t(0)) + cmul(W[512], W[256], W[256]) + put(W[256], xs[256], 1) + \
            cmul(t(1), W[512], W[512]) + put(W[512], xs[512], 1) + cmul(W[768], W[512], W[256]) + put(t(1), xs[1024], 1) + \
            cmul(W[1032], t(1), W[8]) + put(W[768], xs[768], 1) + put(W[1032], xs[1032], 1)
        for i, (p, x, y) in enumerate([(258, 256, 2), (260, 256, 4), (262, 256, 6), (264, 256, 8), (516, 512, 4), (772, 768, 4),
                                       (1288, 1032, 256), (1544, 1032, 512), (1800, 1032, 768)]):
            st += cmul(t(i % 4), W[x], W[y]) + put(t(i % 4), xs[p], 1)
        st.append(f's_mov_b32 m0, s{sM0Y}')
        for j in range(1, 8):
            st += cmul(Y0 + 2 * j, Y0 + 2 * j - 2, W[8]) + put(Y0 + 2 * j - 2, j - 1, 0)
        st += put(Y0 + 14, 7, 0)
        for j in range(8, 32):
            y = Y0 + 2 * (j % 8)
            st += cmul(y, y, W[64], t(4 + j % 2)) + put(y, j, 0)
        st = base + st
        if it:
            m = mf(it - 1)
            for k in range(8):
                st.insert(14 + 7 * k, m[k])
        pend = []
        for x in st:
            if isinstance(x, tuple):
                r = CV + cvn % 16
                cvn += 1
                a(f'v_cvt_pk_bf16_f32 v{r}, v{x[1]}, {x[3]}v{x[1]+1}')
                pend.append(f'ds_write_addtid_b32 v{r} offset:{x[2]}')
                if len(pend) == hooks['kgrp']:
                    a(pend); pend = []
            else:
                if x.startswith('s_mov_b32 m0'):
                    a(pend); pend = []
                a(x)
        a(pend)
        for ks in range(8):
            a(f'ds_read_b128 {vr(FR+8*ks,4)}, v{AX} offset:{32*ks}\nds_read_b128 {vr(FR+8*ks+4,4)}, v{AY} offset:{32*ks}')
        if it < 2:
            hooks['side'](a, late.append, it)
    if hooks['kprio']:
        a('s_setprio 0')
    a(mf(2))
    hooks['after_loop'](a)

    sP0, sP1 = 62, 63
    sTB = 64
    P, Q = 56, 60
    a(f'''
    s_mul_i32 s{sTB}, s{S_WAVE}, {USTR}
    s_add_u32 s{sTB}, s{sTB}, {UBASE + 528}
    v_mov_b32 v36, 0
    v_writelane_b32 v36, s{sDS}, 0
    v_add_f32 v{ACC}, v{ACC}, v36
    v_mov_b32_dpp v37, v{ACC+7} wave_shr:1 row_mask:0xf bank_mask:0xf bound_ctrl:1
    ''')
    for tt in range(4):
        a(f'v_cvt_pk_bf16_f32 v{P+tt}, v{ACC+2*tt+1}, v{ACC+2*tt}')
        a(f'v_cvt_pk_bf16_f32 v{Q+tt}, v{ACC+2*tt}, v{ACC+2*tt-1 if tt else 37}')
    sS, sF = 65, 66
    LO, HI, ZZ = 0x0100, 0x0302, 0x0c0c
    sel = {16: (HI, HI), 17: (LO, HI), 18: (LO, LO), 48: (HI, HI), 49: (HI, HI), 50: (LO, LO), 51: (ZZ, LO)}
    a(f'''
    v_cvt_pk_bf16_f32 v64, v{ACC+9}, v{ACC+8}
    v_cvt_pk_bf16_f32 v65, v{ACC+10}, v{ACC+11}
    v_cvt_pk_bf16_f32 v66, v{ACC+12}, v{ACC+12}
    v_mov_b32 v67, 0x0c0c0c0c
    v_readfirstlane_b32 s{sS}, v64
    v_readfirstlane_b32 s{sF}, v66
    ''')
    for ln, (lo, hi) in sel.items():
        a(f's_mov_b32 s{sT1}, {hex(lo | hi << 16)}\nv_writelane_b32 v67, s{sT1}, {ln}')
    a(f'''
    v_writelane_b32 v64, 0, 0
    v_perm_b32 v67, s{sS}, s{sS}, v67
    v_lshl_add_u32 v68, v{LANE}, 4, s{sTB}
    v_mov_b32 v72, 0
    v_mov_b32 v73, 0
    v_mov_b32 v74, 0
    v_mov_b32 v75, 0
    v_lshl_add_u32 v69, v{LANE}, 2, s{sTB}
    v_bfe_u32 v70, v{LANE}, 4, 1
    v_lshl_add_u32 v70, v70, 10, v69
    v_lshrrev_b32 v71, 5, v{LANE}
    v_mov_b32 v76, {TQ - 128}
    v_mad_u32_u24 v70, v71, v76, v70
    v_lshl_add_u32 v76, v71, 5, v{LANE}             ; 64*half + j
    v_and_b32 v77, 1, v{LANE}
    v_lshlrev_b32 v76, 1, v76
    v_lshlrev_b32 v77, 2, v77
    v_sub_u32 v76, v76, v77
    s_add_u32 s{sT1}, s{sTB}, {G8O + 65*4 + 2}
    v_add_u32 v76, s{sT1}, v76
    ''')
    if hooks['ubar'] == 0:
        a(uld)
    a(f'''
    ds_write_b128 v68, v[72:75] offset:{TG}
    ds_write_b128 v68, {vr(P,4)} offset:64
    ds_write_b128 v68, {vr(Q,4)} offset:{TQ+64}
    ds_write_b32 v70, v67
    ds_write_b32 v69, v64 offset:{G4O + 64*4}
    ds_write_b16 v76, v65
    ds_write_b16_d16_hi v76, v65 offset:64
    ''')
    AK, AK2, AU, AG4, AG8, AB = 2, 3, 4, 5, 6, 7
    a(f'''
    v_add_u32 v8, 5, v{I16}
    v_lshrrev_b32 v8, 1, v8                          ; (i+5)>>1
    v_lshlrev_b32 v9, 2, v{QD}
    v_sub_u32 v8, v8, v9
    v_add_u32 v8, 13, v8                             ; z0-3+16
    v_and_b32 v10, 1, v{I16}
    v_mul_u32_u24 v10, {TQ}, v10
    v_lshl_add_u32 v{AK}, v8, 2, v10
    v_add_u32 v{AK}, s{sTB}, v{AK}
    v_add_u32 v{AK2}, 1024, v{AK}
    s_mul_i32 s{sT1}, s{S_WAVE}, {USTR}
    s_add_u32 s{sT1}, s{sT1}, {UBASE}
    v_lshl_add_u32 v8, v{I16}, 1, v{QD}
    v_lshl_add_u32 v{AU}, v8, 4, s{sT1}
    v_sub_u32 v8, v{I16}, v9
    s_add_u32 s{sT1}, s{sTB}, {G4O + 4*(64 - 4 + 2 - 3)}
    v_lshl_add_u32 v{AG4}, v8, 3, s{sT1}
    s_add_u32 s{sT1}, s{sTB}, {G8O + 4*(64 + 1 - 3)}
    v_lshl_add_u32 v{AG8}, v8, 2, s{sT1}
    v_lshlrev_b32 v{AB}, 4, v{LANE}
    v_add_u32 v{AB}, {BAND}, v{AB}
    ''')
    a(f'''
    s_lshl_b32 s{sT1}, s{S_WAVE}, 13
    v_lshl_add_u32 v68, v{LANE}, 3, s{sT1}
    v_lshlrev_b32 v69, 3, v0
    v_lshl_add_u32 v70, v{I16}, 2, v{QD}
    s_lshl_b32 s{sT1}, s{S_WAVE}, 6
    v_add_u32 v70, s{sT1}, v70
    v_mul_u32_u24 v70, {4*2560}, v70
    s_lshl_b32 s{sT1}, s{S_BIDX}, 4
    s_add_u32 s{sT1}, s{sT1}, {1280 + 2560}
    v_add_u32 v70, s{sT1}, v70
    v_add_u32 v71, {2*2560}, v70
    ''')
    YA = 8
    VV = 40
    AP = 56
    F32 = YA
    pool = list(range(72, 256, 4))

    def r2(r, ad, o):
        return [f'ds_read2_b32 {vr(r,2)}, v{ad} offset0:{o+3} offset1:{o+2}', f'ds_read2_b32 {vr(r+2,2)}, v{ad} offset0:{o+1} offset1:{o}']

    def load(key, r):
        k = key[0]
        if k == 'K':
            return r2(r, AK, 16 * key[1]) if key[1] < 16 else r2(r, AK2, 0)
        if k in ('U', 'U2'):
            return [f'ds_read_b128 {vr(r,4)}, v{AU} offset:{64*(key[1]+8)}']
        if k == 'UB':
            return [f'ds_read_b128 {vr(r,4)}, v{AU} offset:{64*(8*key[1]+8)-32}']
        if k == 'G4':
            return r2(r, AG4, 32 * (key[1] - 2) + 4 * (1 - key[2]))
        if k == 'G8':
            return r2(r, AG8, 16 * (key[1] - 4))
        if k == 'B':
            return [f'ds_read_b128 {vr(r,4)}, v{AB} offset:{1024*key[1]}']
    seq = []
    started = set()

    def mm(R, ka, kb):
        c = vr(YA + 4 * R, 4) if R in started else '0'
        started.add(R)
        A = '{0}' if isinstance(ka, tuple) else vr(ka, 4)
        keys = ([ka] if isinstance(ka, tuple) else []) + [kb]
        B = '{%d}' % (len(keys) - 1)
        return (f'v_mfma_f32_16x16x32_bf16 {vr(YA+4*R,4)}, {A}, {B}, {c}', keys)
    stages = hooks['stages']

    def yout(R):
        return [(f'v_cvt_pk_bf16_f32 v{YA+4*R}, v{YA+4*R}, v{YA+4*R+1}', []), (f'v_cvt_pk_bf16_f32 v{YA+4*R+1}, v{YA+4*R+2}, v{YA+4*R+3}', []),
                (f'ds_write_b64 v68, {vr(YA+4*R,2)} offset:{TY+512*R}', [])]
    for R in range(8):
        dense = []
        for c in (7, 6, 5, 4, 3, 2, 1, 0):
            for ka in ((32, 16, 8, 0) if c == 0 else (c + 8, c)):
                m = 8 * R - ka
                if m >= -8:
                    dense.append(mm(R, ('K', ka) if ka < 32 else F32, ('U' if ka < 32 or R >= hooks['u2'] else 'U2', m)))
        b2, b3, cv2, cv3, sg = [], [], [], [], []
        n = R
        if n < 6:
            b2 = [(f'v_mfma_f32_16x16x32_bf16 {vr(VV+4*e,4)}, {{0}}, {{1}}, 0', [('UB', n), ('B', e, n // hooks['bres'])]) for e in range(4)]
            for hh in range(2):
                for m in range(4):
                    r = 2 * hh + (m >> 1); e = 2 * (m & 1)
                    cv2.append((f'v_cvt_pk_bf16_f32 v{AP+4*hh+m}, v{VV+4*e+r}, v{VV+4*(e+1)+r}', []))
            for dl in (2, 3, 4):
                for hh in range(2):
                    if n + dl < 8:
                        sg.append(mm(n + dl, AP + 4 * hh, ('G4', dl, hh)))
        if n < 4:
            b3 = [(f'v_mfma_f32_16x16x32_bf16 {vr(VV+4*e,4)}, {{0}}, {{1}}, 0', [('UB', n), ('B', 4 + e, n // hooks['bres'])]) for e in range(2)]
            cv3 = [(f'v_cvt_pk_bf16_f32 v{AP+8+m}, v{VV+m}, v{VV+4+m}', []) for m in range(4)]
        s3 = [mm(n + dl, AP + 8, ('G8', dl)) for dl in range(4, 8) if n < 4 and n + dl < 8]
        if R == 2:
            cv3 = cv3 + [(f'v_and_b32 v{F32+m}, s{sF}, {{0:{m}}}', [('B', 6, 0)]) for m in range(4)]
        k0 = 4 if len(dense) > 12 else 3
        seq += b2 + interleave(dense, cv2, ratio=1 if len(dense) > 12 else 2, start=k0) + b3
        seq += interleave(sg + s3[:0], cv3, ratio=2, start=3 if cv3 else 0) if sg else cv3
        seq += interleave(s3, yout(R), ratio=1) if s3 else yout(R)
        if R in stages:
            lo = ([-1] + [x for x in stages if x < R])[-1] + 1
            seq.append((f's_waitcnt lgkmcnt(0)\ns_barrier\ns_sub_u32 s{sT1}, s{S_WAVE}, {lo}\ns_cmp_le_u32 s{sT1}, {R-lo}\ns_cbranch_scc1 L_b_out{R}\nL_b_back{R}:', []))
            late.append(f';@reset\nL_b_out{R}:')
            for c in range(8):
                late.append(f'ds_read_b64 {vr(VV+2*c,2)}, v69 offset:{TY + c*TSTR}')
            for r in range(4):
                o = AP + 4 * (r % 3)
                for d in range(4):
                    late.append(f'v_perm_b32 v{o+d}, v{VV+4*d+2+(r>>1)}, v{VV+4*d+(r>>1)}, s{sP1 if r & 1 else sP0}')
                late.append(f'global_store_dwordx4 v{70+(r>>1)}, {vr(o,4)}, {sr(S_OUT,2)} offset:{-2560 if not r & 1 else 0} {hooks["bf"]}')
            if R in hooks['wbst']:
                late.append(f's_cmp_lg_u32 s5, 31\ns_cbranch_scc1 L_b_back{R}\ns_cmp_lg_u32 s{S_WAVE}, {R}\ns_cbranch_scc1 L_b_back{R}\nbuffer_wbl2 sc1')
            late.append(f's_branch L_b_back{R}')
    first, last = {}, {}
    mi, cnt = [], 0
    for txt, keys in seq:
        mi.append(cnt)
        cnt += txt.startswith('v_mfma')
    for i, (_, keys) in enumerate(seq):
        for k in keys:
            first.setdefault(k, i); last[k] = i
    order = sorted(first, key=lambda k: first[k])
    reg, nxt, pend = {}, 0, []
    for k in [k for k in order if k[0] in ('K', 'G4', 'G8') or (k[0] == 'B' and k[1] < 6 and k[2] == 0)]:
        order.remove(k)
        reg[k] = pool.pop(0)
        a(load(k, reg[k]))
    if hooks['ubar'] == 1:
        a(uld)
    a('s_waitcnt lgkmcnt(0)\ns_barrier')
    if hooks['ubar'] == 2:
        a(uld)
    a(f'''
    s_mov_b32 s{sP0}, 0x05040100
    s_mov_b32 s{sP1}, 0x07060302
    v_lshlrev_b32 v36, 3, v0
    v_add_u32 v36, {UBASE + 65*8}, v36
    ''')
    for c in range(8):
        d, sp = c >> 1, (sP1 if c & 1 else sP0)
        r = 40 + 2 * c
        a(f'''v_perm_b32 v{r}, v{UD+4+d}, v{UD+d}, s{sp}
        v_perm_b32 v{r+1}, v{UD+12+d}, v{UD+8+d}, s{sp}
        ds_write_b64 v36, {vr(r,2)} offset:{c*USTR}''')
    a('s_waitcnt lgkmcnt(0)\ns_barrier')
    hooks['after_barrier'](a)
    LOOK = hooks['look']

    class FragFmt:
        def __init__(self, r): self.r = r
        def __format__(self, spec): return vr(self.r + int(spec)) if spec else vr(self.r, 4)
    ends = [mi[i] for i, (t, _) in enumerate(seq) if 's_barrier' in t]
    prio = {}
    for lo, hi in zip([0] + ends, ends):
        for q, fr in enumerate((0, 0.45, 0.75, 0.92)):
            prio[lo + int(fr * (hi - lo))] = 3 - q
    for i, (txt, keys) in enumerate(seq):
        look = lambda k: LOOK * (2 if k[0] in 'KG4G8' else 1)
        while nxt < len(order) and mi[first[order[nxt]]] <= mi[i] + LOOK and pool:
            k = order[nxt]; nxt += 1
            reg[k] = pool.pop(0)
            pend += [(mi[first[k]], x) for x in load(k, reg[k])]
        if txt.startswith('v_mfma'):
            if mi[i] in prio and hooks['prio']:
                a(f's_setprio {prio[mi[i]]}')
            cntr = 0 if i and seq[i - 1][0].startswith('v_mfma') else 1
            while pend and (pend[0][0] <= mi[i] + 3 or cntr < 2):
                x = pend.pop(0)[1]; cntr += 1
                if hooks['cx'] != 'nord':
                    a(x)
        assert all(k in reg for k in keys) and all(p[0] > mi[i] or not keys for p in pend), (i, txt)
        if 'L_b_out7' in txt:
            hooks['st'](a, 4)
        if hooks['cx'] == 'nord' and 0:
            pass
        a(txt.format(*[FragFmt(reg[k]) for k in keys]))
        for k in set(keys):
            if last[k] == i:
                pool.append(reg[k])
        if txt.startswith('ds_write_b64 v68') and f'offset:{TY}' not in txt:
            pool.append(int(txt.split('v[')[1].split(':')[0]))
    a(';@age 0')
    hooks['st'](a, 5)
    hooks['end'](a)
    a('s_endpgm')
    a(late)
```

```python
import sys, json
from asmlib import *
import gen_b, gen_a
NAME = 'concat_heads__linear_kernel_hedgehog__ssm_conv_s4d__prompt'
HEAD = open('cdna_kernels/%s.s.ref' % NAME).read().split('; @launch')[0]
STAMP_OFF = 64 << 20

def build(opts=None):
    opts = opts or {}
    a = Asm()
    diag = opts.get('diag')
    amp = opts.get('amp')
    role = ['L']
    def stamp(a, i, final=False):
        if i == 99: return
        if amp:
            r = role[0]
            if final: role[0] = {'L': 'C', 'C': 'B', 'B': ''}[r]
            if r != amp[0]: return
            if i == amp[1]: a('s_memrealtime s[80:81]')
            if final:
                if opts.get('rel'):
                    if amp[1] == 8: a('s_mov_b32 s80, s96')
                    a('''s_waitcnt vmcnt(0) lgkmcnt(0)
                    L_amp1:
                    s_sleep 2
                    s_memrealtime s[82:83]
                    s_waitcnt lgkmcnt(0)
                    s_sub_u32 s82, s82, s96
                    s_cmp_lt_u32 s82, 5000
                    s_cbranch_scc1 L_amp1
                    v_mov_b32 v2, 0
                    global_load_dword v3, v2, s[32:33] offset:192 sc1
                    s_waitcnt vmcnt(0)
                    v_readfirstlane_b32 s96, v3
                    s_sub_u32 s96, 0, s96''')
                a(f'''s_waitcnt vmcnt(0) lgkmcnt(0)
                s_sub_u32 s80, s80, s96
                s_mul_i32 s80, s80, {amp[2]}
                s_add_u32 s80, s80, 10000''')
                if opts.get('wbl2'):
                    a('''L_amp0:
                    s_sleep 2
                    s_memrealtime s[82:83]
                    s_waitcnt lgkmcnt(0)
                    s_sub_u32 s82, s82, s96
                    s_cmp_lt_u32 s82, 5000
                    s_cbranch_scc1 L_amp0
                    buffer_wbl2 sc1
                    s_waitcnt vmcnt(0)''')
                a('''L_amp:
                s_sleep 2
                s_memrealtime s[82:83]
                s_waitcnt lgkmcnt(0)
                s_sub_u32 s82, s82, s96
                s_cmp_lt_u32 s82, s80
                s_cbranch_scc1 L_amp''')
            return
        if not diag: return
        a(f'{"s_memtime" if opts.get("cyc") else "s_memrealtime"} s[{80+2*i}:{81+2*i}]')
        if final:
            a('s_waitcnt lgkmcnt(0)\nv_mov_b32 v2, 0')
            if opts.get('chunks') and role[0] == 'C': a('v_mov_b32 v2, v255')
            role[0] = {'L': 'C', 'C': 'B'}.get(role[0], 'x')
            for k in range(9):
                a(f'v_writelane_b32 v2, s{80+2*k}, {k}')
            a('s_getreg_b32 s80, hwreg(HW_REG_HW_ID)\ns_getreg_b32 s81, hwreg(HW_REG_XCC_ID)\nv_writelane_b32 v2, s80, 30\nv_writelane_b32 v2, s81, 31\nv_writelane_b32 v2, s99, 29')
            a(f's_lshl_b32 s80, s2, 3\ns_add_u32 s80, s80, s3\ns_lshl_b32 s80, s80, 8\ns_add_u32 s80, s80, {STAMP_OFF}\nv_lshl_add_u32 v3, v1, 2, s80\nglobal_store_dword v3, v2, s[34:35]')
    if diag or amp: a('s_memtime s[96:97]' if opts.get('cyc') else 's_memrealtime s[96:97]')
    a('''
    s_load_dwordx8 s[8:15], s[0:1], 0''')
    if not opts.get('ksplit'):
        a('s_load_dwordx16 s[16:31], s[0:1], 32\ns_load_dwordx4 s[32:35], s[0:1], 96')
    a('''
    s_cmp_ge_u32 s2, 256
    s_cbranch_scc1 L_end
    v_lshrrev_b32 v2, 6, v0
    v_and_b32 v1, 63, v0
    s_and_b32 s4, s2, 7
    v_readfirstlane_b32 s3, v2
    s_lshr_b32 s5, s2, 3
    ''')
    a('s_add_u32 s101, s4, 1\ns_bfe_u32 s101, s101, 0x10001\ns_cselect_b32 s100, 20, 24\ns_cselect_b32 s98, 0, 20')
    if opts.get('cpf', 1):
        a(f'''
        s_getpc_b64 s[6:7]
        L_pc:
        s_lshl_b32 s36, s5, 10
        v_lshl_add_u32 v2, v2, 7, s36
        v_lshl_add_u32 v2, v1, 15, v2
        v_min_u32 v2, L_end-L_pc, v2
        s_mov_b64 exec, 3
        global_load_dword v31, v2, s[6:7] ;touch
        s_mov_b64 exec, -1
        ''')
    if opts.get('probe'):
        ptr, n = opts['probe']
        a(f'''s_waitcnt lgkmcnt(0)
        s_cmp_lg_u32 s3, 0
        s_cbranch_scc1 L_probe_done
        s_mul_i32 s36, s2, {n*128}
        v_mov_b32 v2, s36
        s_mov_b32 s37, {n}
        L_probe:
        global_load_dword v3, v2, s[{ptr}:{ptr+1}]
        s_waitcnt vmcnt(0)
        v_add_u32 v2, 128, v2
        s_sub_u32 s37, s37, 1
        s_cmp_lg_u32 s37, 0
        s_cbranch_scc1 L_probe
        L_probe_done:
        s_barrier''')
    if opts.get('rel'):
        a('''s_lshr_b32 s36, s2, 3
        s_or_b32 s36, s36, s3
        s_cbranch_scc1 L_norel
        s_waitcnt lgkmcnt(0)
        s_sub_u32 s36, 0, s96
        v_mov_b32 v2, 0
        v_mov_b32 v3, s36
        s_mov_b64 exec, 1
        global_atomic_umax v2, v3, s[32:33] offset:192
        s_mov_b64 exec, -1
        L_norel:''')
    top, a = a, Asm()
    a(';@reset\nL_A:')
    if opts.get('noA'):
        a('s_waitcnt lgkmcnt(0)')
        for k in range(8): stamp(a, k)
        stamp(a, 6, final=True)
        role[0] = 'L'
        a('s_endpgm')
    gen_a.gen_a(a, opts, stamp)
    part_a, a = a, Asm()
    if opts.get('ksplit'):
        a('s_load_dwordx16 s[16:31], s[0:1], 32\ns_load_dwordx4 s[32:35], s[0:1], 96')
    a('''
    s_sub_u32 s5, s5, s100
    s_and_b32 s7, s4, 3
    s_mul_i32 s6, s7, 12
    s_sub_u32 s6, s6, 4
    s_max_i32 s6, s6, 0
    s_lshr_b32 s7, s4, 2
    s_mul_i32 s7, s7, 40
    s_add_u32 s7, s7, s6
    s_add_u32 s6, s7, s5
    ''')
    nop = lambda a: None
    PF = opts.get('pf', 1)
    NALL = opts.get('nall', 1)
    noclear = opts.get('noclear')
    SX, SW, sOW, sA, sB, sUT = 72, 76, 39, 36, 37, 61
    BAT = opts.get('bat', [4, 5, 0])
    NI1 = 5 * BAT[0]
    sOX, sDX, sDW, sMX, sMW = 38, 67, 61, 68, 70
    def pf(a, n, lbl):
        a(f'''s_add_u32 s{sB}, s{sOX}, {128*n}
        {lbl}:
        s_mov_b64 exec, s[{sMX}:{sMX+1}]
        s_add_u32 s{sA}, s{sOX}, s{sDX}
        buffer_load_dword v31, v160, s[{SX}:{SX+3}], s{sOX} offen ;touch
        buffer_load_dword v31, v160, s[{SX}:{SX+3}], s{sA} offen ;touch
        s_add_u32 s{sA}, s{sA}, s{sDX}
        s_mul_i32 s{sOW}, s{sOX}, {64*3840//128}
        buffer_load_dword v31, v160, s[{SX}:{SX+3}], s{sA} offen ;touch
        s_mov_b64 exec, s[{sMW}:{sMW+1}]
        s_add_u32 s{sA}, s{sOW}, s{sDW}
        buffer_load_dword v31, v162, s[{SW}:{SW+3}], s{sOW} offen ;touch
        buffer_load_dword v31, v162, s[{SW}:{SW+3}], s{sA} offen ;touch
        s_addk_i32 s{sOX}, 128
        s_cmp_lt_u32 s{sOX}, s{sB}
        s_cbranch_scc1 {lbl}
        s_mov_b64 exec, -1''')
    C1 = opts.get('clr1', 1)
    def before_params(a):
        a(f'''s_cmp_lg_u32 s101, 0
        s_cselect_b32 s{sDX}, 27, 46
        s_cselect_b32 s{sDW}, 24, 36
        s_cselect_b32 s{sB}, 0, 960
        s_bfm_b64 s[{sMX}:{sMX+1}], s{sDX}, 0
        s_bfm_b64 s[{sMW}:{sMW+1}], s{sDW}, 0
        s_mul_i32 s{sA}, s5, s{sDX}
        s_mul_i32 s{sA}, s{sA}, 3
        s_add_u32 s{sA}, s{sA}, s{sB}
        v_add_u32 v160, s{sA}, v1
        v_mul_u32_u24 v160, 1280, v160
        s_mul_i32 s{sDX}, s{sDX}, 1280
        s_mul_i32 s{sDW}, s{sDW}, 1280
        s_mul_hi_u32 s{sDW}, s{sDW}, 0x55555556
        v_mul_u32_u24 v161, 21846, v1
        v_lshrrev_b32 v161, 16, v161
        v_mul_u32_u24 v161, 896, v161
        s_lshr_b32 s{sB}, s4, 1
        s_mul_i32 s{sB}, s{sB}, 320
        s_and_b32 s{sB}, s{sB}, 0xff80
        s_mul_i32 s{sA}, s5, s{sDW}
        s_lshl1_add_u32 s{sB}, s{sA}, s{sB}
        v_lshl_add_u32 v162, v1, 7, s{sB}
        v_add_u32 v162, v161, v162
        s_movk_i32 s{sOX}, {256 if opts.get('t2') else 128}
        s_mul_i32 s{sA}, {"s6, 9216" if C1 else "s40, 1152"}
        s_add_u32 s{sA}, s{sA}, {gen_a.OBYTES}
        v_lshl_add_u32 v163, v1, 4, s{sA}
        v_mov_b32 v164, -1
        v_mov_b32 v165, -1
        v_pk_mov_b32 v[166:167], v[164:165], v[164:165]''')
    def mid_params(a):
        if C1:
            a('s_cmp_lg_u32 s3, 7\ns_cbranch_scc1 L_b_noclr')
            for i in range(9):
                if i in (4, 8): a('v_add_u32 v163, 4096, v163')
                a(f'global_store_dwordx4 v163, v[164:167], s[34:35] offset:{1024*(i%4)} sc1')
            a('L_b_noclr:')
        else:
            a('''global_store_dwordx4 v163, v[164:167], s[34:35] sc1
            s_mov_b64 exec, 0xff
            global_store_dwordx4 v163, v[164:167], s[34:35] offset:1024 sc1
            s_mov_b64 exec, -1''')
        gen_a.srd(a, SX, 8, 2048 * 1280)
        gen_a.srd(a, SW, 10, 640 * 3840)
        a('s_barrier\ns_cmp_lg_u32 s3, 0\ns_cbranch_scc1 L_b_nopf')
        pf(a, BAT[0], 'L_b_pf0')
        a('s_branch L_b_nopf\n;@split\nL_b_nopf:')
    after_params = nop
    def wait_params(a):
        a(f'''s_waitcnt vmcnt({NI1}) lgkmcnt(0)
        s_cmp_eq_u32 s3, 0
        s_cbranch_scc1 L_b_w0
        s_waitcnt vmcnt(0)
        L_b_w0:
        {"" if C1 else "s_barrier"}
        s_cmp_lg_u32 s3, 7
        s_cbranch_scc1 L_b_w1
        v_mov_b32 v162, 0
        v_mov_b32 v163, 1
        s_mov_b64 exec, 1
        global_atomic_add v162, v163, s[32:33]
        s_mov_b64 exec, -1
        L_b_w1:
        ;@reset''')
    def side(a0, a, it):
        a0(f's_cmp_eq_u32 s3, 0\ns_cbranch_scc1 L_b_side{it}\nL_b_sb{it}:')
        a(f';@reset\nL_b_side{it}:')
        if it == 0:
            pf(a, BAT[1], 'L_b_pf1')
            a('s_branch L_b_sb0')
            return
        if BAT[2]:
            pf(a, BAT[2], 'L_b_pf2')
        a(f'''s_cmp_eq_u32 s101, 0
        s_cbranch_scc1 L_b_nowo
        s_lshr_b32 s{sA}, s4, 1
        s_mul_i32 s{sA}, s{sA}, 12
        s_add_u32 s{sA}, s{sA}, s5
        s_mul_i32 s{sA}, s{sA}, 135
        v_add_u32 v163, s{sA}, v1
        v_min_u32 v163, {6399 - 90}, v163
        v_lshlrev_b32 v163, 7, v163
        s_mov_b32 exec_hi, 0x1fff
        global_load_dword v31, v163, s[14:15] ;touch
        v_add_u32 v163, {45*128}, v163
        global_load_dword v31, v163, s[14:15] ;touch
        v_add_u32 v163, {45*128}, v163
        global_load_dword v31, v163, s[14:15] ;touch
        s_mov_b64 exec, -1
        L_b_nowo:
        v_lshrrev_b32 v161, s101, v1
        v_mul_u32_u24 v161, 1280, v161
        v_and_b32 v160, s101, v1
        v_lshl_add_u32 v160, v160, 7, v161
        s_cmp_lg_u32 s101, 0
        s_cselect_b32 s{sDX}, 29, 43
        s_lshl_b32 s{sA}, s{sDX}, s101
        s_bfm_b64 exec, s{sA}, 0
        s_mul_i32 s{sDX}, s{sDX}, 1280
        s_mul_i32 s{sA}, s5, s{sDX}
        s_mul_i32 s{sA}, s{sA}, 6
        s_lshl_b32 s{sB}, s7, 4
        s_and_b32 s{sB}, s{sB}, 0xff80
        s_add_u32 s{sA}, s{sA}, s{sB}''')
        for i in range(6):
            a(f'buffer_load_dword v31, v160, s[48:51], s{sA} offen ;touch\ns_add_u32 s{sA}, s{sA}, s{sDX}')
        a('s_mov_b64 exec, -1\ns_branch L_b_sb1')
    def after_loop(a):
        stamp(a, 1)
    slot = lambda a, k: None
    def end(a):
        if opts.get('bwb'):
            a(f's_cmp_lg_u32 s3, 7\ns_cbranch_scc1 L_b_nowb\ns_cmp_lt_u32 s5, {opts["bwb"]}\ns_cbranch_scc1 L_b_nowb\ns_waitcnt vmcnt(0)\nbuffer_wbl2 sc1\nL_b_nowb:')
        stamp(a, 3)
        if diag: a('s_waitcnt vmcnt(0)')
        stamp(a, 6, final=True)
    pre_loop = nop
    hooks = dict(pre_loop=pre_loop, mid_params=mid_params, before_params=before_params, after_params=after_params, after_u=nop, st=stamp, wait_params=wait_params, slot=slot, side=side,
                 after_loop=after_loop, before_barrier=nop, after_barrier=lambda a: stamp(a, 2), end=end)
    hooks['nou'] = opts.get('nou')
    hooks.update(stages=opts.get('stages', [2, 4, 6, 7]), look=opts.get('look', 6), age=opts.get('age', 5), ubar=opts.get('ubar', 1), prio=opts.get('cprio', 1), cx=opts.get('cx'), kprio=opts.get('kprio', 1), kgrp=opts.get('kgrp', 8), wbst=opts.get('wbst', []), bf=opts.get('bf', ''), bres=opts.get('bres', 8), u2=opts.get('u2', 6))
    gen_b.gen_b(a, 6, hooks)
    k = a.lines.index(';@split')
    if opts.get('bhead', 0):
        top('s_cmp_lt_u32 s5, s100\ns_cbranch_scc1 L_A')
        top(a.lines[:k] + part_a.lines + [';@reset'] + a.lines[k:])
    else:
        top('s_cmp_ge_u32 s5, s100\ns_cbranch_scc1 L_B')
        top(part_a.lines + [';@reset', 'L_B:'] + a.lines)
    a = top
    a('L_end:')
    body = a.finish()
    if opts.get('align', 1):
        body = align8(body)
    txt = HEAD + '; @launch grid=(256,1,1) block=(512,1,1) lds=163840\n'
    txt += f'''.amdgcn_target "amdgcn-amd-amdhsa--gfx950"
.text
.globl {NAME}_kernel
.p2align 8
.type {NAME}_kernel,@function
{NAME}_kernel:
'''
    txt += '\n'.join(l if l.endswith(':') else '    ' + l for l in body if not l.startswith(';@'))
    txt += f'''
    s_endpgm
.section .rodata,"a"
.p2align 6
.amdhsa_kernel {NAME}_kernel
  .amdhsa_next_free_vgpr 256
  .amdhsa_next_free_sgpr 102
  .amdhsa_accum_offset 256
  .amdhsa_group_segment_fixed_size 0
  .amdhsa_kernarg_size 112
  .amdhsa_user_sgpr_count 2
  .amdhsa_user_sgpr_kernarg_segment_ptr 1
  .amdhsa_system_sgpr_workgroup_id_x 1
.end_amdhsa_kernel
'''
    return txt
if __name__ == '__main__':
    out = sys.argv[1] if len(sys.argv) > 1 else 'k.s'
    opts = json.loads(sys.argv[2]) if len(sys.argv) > 2 else {}
    open(out, 'w').write(build(opts))
```

```python
from asmlib import *
from gen_b import f32, LOG2E, zipl

SLOT = 49152
WOFF = 24576
WOB = 77824
WPB = 147456
KVI = 159744
FLIP = 49152
OBYTES = 4 << 20
KVOFF = OBYTES + 16384
KVS = 4096
KVBYTES = 11 * 16 * KVS
NCLEAR = 80
BIG = 0x7f000000

S_WAVE, S_XCD, S_IDX = 3, 4, 5
S_X, S_W, S_WPHI, S_WO, S_OUT, S_DBG, S_WS = 8, 10, 12, 14, 30, 32, 34
sRT, sP, sPQ, sT0, sT1, sT2, sT3, sSP = 36, 37, 38, 39, 40, 41, 42, 29
SRX, SRW, SRO, SRK = 44, 48, 52, 56
LANE = 1
MF32 = 'v_mfma_f32_32x32x16_bf16'
MF16 = 'v_mfma_f32_16x16x32_bf16'
CAP = 1 << 20


def srd(a, d, base, size, add=0):
    if add:
        a(f's_add_u32 s{d}, s{base}, {add}\ns_addc_u32 s{d+1}, s{base+1}, 0')
    else:
        a(f's_mov_b32 s{d}, s{base}\ns_mov_b32 s{d+1}, s{base+1}')
    a(f's_mov_b32 s{d+2}, {size}\ns_mov_b32 s{d+3}, 0x20000')


def pf_addr(a, vi, vx, vw, t, n, sa, sb):
    a(f'''
    s_and_b32 s{sa}, s{S_XCD}, 1
    s_mul_i32 s{sa}, s{sa}, 960
    s_lshr_b32 s{sb}, s{S_XCD}, 1
    s_mul_i32 s{sb}, s{sb}, 320
    s_and_b32 s{sb}, s{sb}, 0xff80
    v_add_u32 v{vx}, s{sa}, v{vi}
    v_mul_u32_u24 v{vx}, 1280, v{vx}
    v_subrev_u32 v{t}, 1152, v{vi}
    v_cmp_gt_u32 vcc, {n - 1152}, v{t}
    v_mul_u32_u24 v{t+1}, 21846, v{t}
    v_lshrrev_b32 v{t+1}, 16, v{t+1}
    v_mul_u32_u24 v{t+1}, 896, v{t+1}
    v_lshl_add_u32 v{t}, v{t}, 7, s{sb}
    v_add_u32 v{t}, v{t}, v{t+1}
    v_mov_b32 v{t+1}, {BIG}
    v_cndmask_b32 v{vw}, v{t+1}, v{t}, vcc
    v_cmp_gt_u32 vcc, 1152, v{vi}
    v_cndmask_b32 v{vx}, v{t+1}, v{vx}, vcc
    ''')


def pf_init(a, nall, sw, vx, vw, t, sa, sb):
    a(f'''
    s_lshl_b32 s{sa}, s{S_IDX}, 2
    s_add_u32 s{sa}, s{sa}, s{sw}
    v_mul_u32_u24 v{t+2}, 3277, v{LANE}
    v_lshrrev_b32 v{t+2}, 16, v{t+2}
    v_mul_u32_u24 v{t+3}, 20, v{t+2}
    v_sub_u32 v{t+3}, v{LANE}, v{t+3}
    v_mul_u32_u24 v{t+3}, 88, v{t+3}
    v_add_u32 v{t+3}, s{sa}, v{t+3}
    ''')
    pf_addr(a, t + 3, vx, vw, t, 1728, sa, sb)
    a(f'''
    v_lshl_add_u32 v{vx}, v{t+2}, 7, v{vx}
    v_mul_u32_u24 v{t+2}, {64*3840}, v{t+2}
    v_add_u32 v{vw}, v{vw}, v{t+2}
    ''')


def clear_check(a, late, lbl, vc, vz):
    a(f'''
    v_readfirstlane_b32 s{sT2}, v{vc}
    s_mov_b32 s{sT1}, 0
    s_and_b32 s{sT0}, s{sT2}, 0xffff
    s_cmp_lt_u32 s{sT0}, {NCLEAR}
    s_cbranch_scc1 {lbl}
    {lbl}_ok:
    ''')
    late.append(f'''
    ;@reset
    {lbl}:
    s_sleep 32
    global_load_dword v{vc}, v{vz}, {sr(S_DBG,2)} sc1
    s_add_u32 s{sT1}, s{sT1}, 1
    s_waitcnt vmcnt(0)
    v_readfirstlane_b32 s{sT2}, v{vc}
    s_and_b32 s{sT0}, s{sT2}, 0xffff
    s_cmp_ge_u32 s{sT1}, {CAP}
    s_cselect_b32 s{sT0}, {NCLEAR}, s{sT0}
    s_cmp_lt_u32 s{sT0}, {NCLEAR}
    s_cbranch_scc1 {lbl}
    s_branch {lbl}_ok
    ''')


def shift_ws(sf):
    return [f's_add_u32 s{SRO}, s{SRO}, s{sf}', f's_addc_u32 s{SRO+1}, s{SRO+1}, 0', f's_add_u32 s{SRK}, s{SRK}, s{sf}', f's_addc_u32 s{SRK+1}, s{SRK+1}, 0']


def tile_base(a, d, pt, t):
    a(f'''
    s_lshr_b32 s{t}, s{pt}, 1
    s_xor_b32 s{t}, s{t}, s{pt}
    s_bfe_u32 s{t}, s{t}, 0x10004
    s_and_b32 s{d}, s{pt}, 31
    s_lshl4_add_u32 s{d}, s{d}, s{t}
    s_lshl_b32 s{d}, s{d}, 13
    s_bitcmp1_b32 s{pt}, 0
    s_cselect_b32 s{t}, 3072, 0
    s_add_u32 s{d}, s{d}, s{t}
    s_cmp_ge_u32 s{pt}, 64
    s_cselect_b32 s{d}, {BIG}, s{d}
    ''')


def kv_slot(a):
    a(f'''
    s_and_b32 s{sSP}, s{sP}, 6
    s_lshr_b32 s{sT0}, s{sP}, 3
    s_add_u32 s{sSP}, s{sSP}, s{sT0}
    s_and_b32 s{sT0}, s{sP}, 1
    s_lshl1_add_u32 s{sSP}, s{sSP}, s{sT0}
    ''')


def set_bases(a, opts, sa, sb):
    a(f'''
    s_lshr_b32 s{sb}, s{S_XCD}, 1
    s_lshl_b32 s{sb}, s{sb}, 3
    s_lshr_b32 s{sb}, {opts['sets']}, s{sb}
    s_and_b32 s{sa}, s{sb}, 15
    s_bfe_u32 s{sb}, s{sb}, 0x40004
    s_mul_i32 s{sa}, s{sa}, 160
    s_mul_i32 s{sb}, s{sb}, 160
    s_and_b32 s{sa}, s{sa}, 0xff80
    s_and_b32 s{sb}, s{sb}, 0xff80
    ''')


def gen_a(a, opts, stamp):
    if opts.get('sets'):
        a(f's_cmp_gt_u32 s{S_WAVE}, 1\ns_cbranch_scc1 L_a_nt')
        set_bases(a, opts, sT1, sRT)
        a(f'''
        s_add_u32 s{sT0}, s98, s{S_IDX}
        s_mul_i32 s{sT0}, s{sT0}, 48
        s_sub_u32 s{sRT}, s{sRT}, s{sT1}
        s_mul_i32 s{sT2}, s{S_IDX}, 10
        v_bfe_u32 v4, v{LANE}, 1, 1
        v_mul_i32_i24 v4, s{sRT}, v4
        v_and_b32 v3, 1, v{LANE}
        v_lshl_add_u32 v3, v3, 7, s{sT1}
        v_add_u32 v3, v3, v4
        v_mul_u32_u24 v3, s{S_WAVE}, v3
        s_lshl_b32 s{sT3}, s{S_WAVE}, 1
        s_cselect_b32 s{sT0}, s{sT2}, s{sT0}
        v_lshrrev_b32 v2, s{sT3}, v{LANE}
        v_add_u32 v2, s{sT0}, v2
        v_min_u32 v2, 2047, v2
        v_mul_u32_u24 v2, 1280, v2
        v_add_u32 v2, v2, v3
        s_mov_b32 exec_hi, 0xffff
        s_cselect_b32 exec_hi, 0xff, exec_hi
        s_waitcnt lgkmcnt(0)
        s_cselect_b64 s[6:7], {sr(S_W,2)}, {sr(S_X,2)}
        global_load_dword v31, v2, s[6:7] ;touch
        s_mov_b64 exec, -1
        L_a_nt:
        ''')
    if not opts.get('sets'):
        a(f'''
        s_cmp_gt_u32 s{S_WAVE}, 1
        s_cbranch_scc1 L_a_nt
        s_add_u32 s{sT0}, s98, s{S_IDX}
        s_mul_i32 s{sT0}, s{sT0}, 48
        s_lshr_b32 s{sT1}, s{S_XCD}, 1
        s_mul_i32 s{sT1}, s{sT1}, 320
        s_and_b32 s{sT1}, s{sT1}, 0xff80
        s_mul_i32 s{sT2}, s{S_IDX}, 10
        s_lshl_b32 s{sT3}, s{S_WAVE}, 1
        s_cselect_b32 s{sT0}, s{sT2}, s{sT0}
        s_cselect_b32 s{sT1}, s{sT1}, {128 * opts.get('xt', 0)}
        v_lshrrev_b32 v2, s{sT3}, v{LANE}
        v_add_u32 v2, s{sT0}, v2
        v_min_u32 v2, 2047, v2
        v_mul_u32_u24 v2, 1280, v2
        v_bfe_u32 v3, v{LANE}, 0, s{sT3}
        v_lshl_add_u32 v3, v3, 7, s{sT1}
        v_add_u32 v2, v2, v3
        s_cselect_b32 exec_lo, 0x77777777, -1
        s_mov_b32 exec_hi, 0xffff
        s_cselect_b32 exec_hi, 0x77, exec_hi
        s_waitcnt lgkmcnt(0)
        s_cselect_b64 s[6:7], {sr(S_W,2)}, {sr(S_X,2)}
        global_load_dword v31, v2, s[6:7] ;touch
        ''')
        if opts.get('t2'):
            a(f's_movk_i32 s{sT0}, 128\ns_cselect_b32 s{sT0}, {64*3840}, s{sT0}\nv_add_u32 v2, s{sT0}, v2\nglobal_load_dword v31, v2, s[6:7] ;touch')
        a(f'''
        s_mov_b64 exec, -1
        L_a_nt:
        ''')
    if opts.get('ksplit'):
        a('s_load_dwordx2 s[30:31], s[0:1], 88\ns_load_dwordx4 s[32:35], s[0:1], 96')
    a(f'''
    s_add_u32 s{sT0}, s98, s{S_IDX}
    s_lshr_b32 s{sRT}, s{sT0}, 2
    {f"s_add_u32 s{sT0}, s{sT0}, s{sRT}" if opts.get('mix', 1) else ""}
    s_and_b32 s{sT0}, s{sT0}, 3
    s_lshr_b32 s{sT1}, s{S_XCD}, 1
    s_lshl_b32 s{sT1}, s{sT1}, 2
    s_add_u32 s{sP}, s{sT0}, s{sT1}
    ''')
    if opts.get('sets'):
        a(f'''
        s_lshr_b32 s{sT1}, s{sP}, 1
        s_lshl_b32 s{sT1}, s{sT1}, 2
        s_lshr_b32 s{sT1}, {opts['sets']}, s{sT1}
        s_and_b32 s{sT1}, s{sT1}, 15
        s_and_b32 s{sP}, s{sP}, 1
        s_lshl1_add_u32 s{sP}, s{sT1}, s{sP}
        ''')
    a(f'''
    s_xor_b32 s{sPQ}, s{sP}, {opts.get('qswap', 1)}
    s_cmp_lt_u32 s{S_WAVE}, 4
    s_cbranch_scc1 L_a_C
    ''')
    late = []
    gen_l(a, opts, stamp, late)
    a(';@reset\nL_a_C:')
    gen_c(a, opts, stamp, late)
    a('s_endpgm')
    a(late)


def gen_l(a, opts, stamp, late):
    sLW, sSX, sSW, sCNT, sXB, sWB0, sPT, sWB, sWO, sC1, sC2 = 60, 61, 62, 63, 64, 65, 66, 67, 68, 69, 43
    sMK, sMQ, sM, sH, sK1, sK2, sHN, sFA, sHN2 = 70, 72, 74, 6, 16, 17, 18, 19, 28
    SRWO = 20
    VX, VW = 2, 8
    LD, RD, SEL = 32, 80, 88
    VWO, VH, VK, VKW, VCL, VP, VZ, VC, VHV = 96, 97, 98, 102, 103, 104, 108, 109, 110
    a(f's_setprio {opts.get("lprio", 1)}\ns_sub_u32 s{sLW}, s{S_WAVE}, 4')
    a(f's_mov_b32 s{SRX+2}, {2048*1280}\ns_mov_b32 s{SRX+3}, 0x20000\ns_mov_b32 s{SRW+2}, {640*3840}\ns_mov_b32 s{SRW+3}, 0x20000')
    a(f's_waitcnt lgkmcnt(0)\ns_mov_b64 {sr(SRX,2)}, {sr(S_X,2)}\ns_mov_b64 {sr(SRW,2)}, {sr(S_W,2)}')
    if opts.get('setup_at', 3) < 0:
        a('s_branch L_l_setup\nL_l_back:')
    a(f"""
    v_lshrrev_b32 v14, 3, v{LANE}
    v_lshrrev_b32 v15, 4, v{LANE}
    v_and_b32 v16, 7, v{LANE}
    s_and_b32 s{sT1}, s{sLW}, 1
    s_lshl_b32 s{sT1}, s{sT1}, 2
    v_xor_b32 v17, v15, v16
    v_xor_b32 v17, s{sT1}, v17
    v_mul_u32_u24 v19, 1280, v14
    v_lshl_add_u32 v{VX}, v17, 4, v19
    v_and_b32 v15, 1, v15
    v_lshlrev_b32 v15, 2, v15
    v_xor_b32 v17, v15, v16
    v_lshl_add_u32 v{VWO}, v17, 4, v19
    s_lshr_b32 s{sT1}, s{sT1}, 1
    v_lshrrev_b32 v15, 5, v{LANE}
    v_and_b32 v17, 3, v{LANE}
    v_lshl_add_u32 v17, v15, 2, v17
    v_xor_b32 v17, s{sT1}, v17
    v_bfe_u32 v14, v{LANE}, 2, 3
    v_mul_u32_u24 v18, 3840, v14
    v_lshl_add_u32 v18, v17, 4, v18
    s_mul_i32 s{sT1}, s{sP}, 80
    s_and_b32 s{sT1}, s{sT1}, 0xffc0
    s_add_u32 s{sT1}, s{sT1}, 1280
    s_mul_i32 s{sT2}, s{sPQ}, 80
    s_and_b32 s{sT2}, s{sT2}, 0xffc0
    v_add_u32 v{VW}, s{sT1}, v18
    v_add_u32 v{VW+4}, s{sT2}, v18
    v_add_u32 v{VW+2}, 1280, v{VW}
    s_and_b32 s{sT1}, s{sP}, 3
    v_subrev_u32 v15, s{sT1}, v17
    v_cmp_gt_u32 {sr(sMK,2)}, 5, v15
    s_and_b32 s{sT1}, s{sPQ}, 3
    v_subrev_u32 v15, s{sT1}, v17
    v_and_b32 v15, 7, v15
    v_cmp_gt_u32 {sr(sMQ,2)}, 6, v15
    v_cmp_eq_u32 vcc, 5, v15
    v_mov_b32 v16, {BIG}
    v_cndmask_b32 v{VW+4}, v{VW+4}, v16, vcc
    """)
    for i in range(1, 6):
        a(f'v_add_u32 v{VX+i}, {i*32*1280}, v{VX}')
    for p in range(3):
        a(f'v_add_u32 v{VW+2*p+1}, {32*3840}, v{VW+2*p}')
    a(f"""
    s_mul_i32 s{sSX}, s{sRT}, 24
    s_add_u32 s{sSX}, s{sSX}, s{sLW}
    s_mul_i32 s{sSX}, s{sSX}, {8*1280}
    s_mul_i32 s{sSW}, s{sLW}, {8*3840}
    s_lshl_b32 m0, s{sLW}, 10
    s_mov_b32 s{sCNT}, 0
    """)
    if opts.get('thr') or opts.get('latewo'):
        a(f's_lshr_b32 s{sFA}, s{sP}, 2\ns_xor_b32 s{sFA}, s{sFA}, s{sP}\ns_and_b32 s{sFA}, s{sFA}, 1')
    TH = opts.get('thr', 0)
    if TH:
        a(f's_cmp_eq_u32 s{sFA}, 0\ns_cbranch_scc1 L_l_loopf')
    for tg in ('', 'f') if TH else ('',):
        a(f'L_l_loop{tg}:')
        SPL = opts.get('split', 8)
        order = opts.get('ord', list(range(12))) + [12]
        msk = lambda k: '-1' if k < 6 else sr(sMK if k < 10 else sMQ, 2)
        cur = '-1'
        for i in range(12):
            k = order[i]
            if msk(k) != cur:
                cur = msk(k)
                a(f's_mov_b64 exec, {cur}')
            if i == 0 and k:
                a(f's_add_u32 m0, m0, {4096*k}')
            if opts.get('nodma'):
                pass
            elif k < 6:
                a(f'buffer_load_dwordx4 v{VX+k}, {sr(SRX,4)}, s{sSX} offen lds')
            else:
                a(f'buffer_load_dwordx4 v{VW+k-6}, {sr(SRW,4)}, s{sSW} offen lds')
            a(f's_add_u32 m0, m0, {4096*(order[i+1]-k)}')
            assert i != opts.get('setup_at', 3) or cur == '-1'
            if tg:
                a(f's_waitcnt vmcnt({TH})')
            if i == opts.get('setup_at', 3):
                a(f's_cmp_eq_u32 s{sCNT}, 0\ns_cbranch_scc1 L_l_setup\nL_l_back{tg}:')
            if i + 1 == SPL:
                a(f"""
                s_cmp_eq_u32 s{sCNT}, 0
                s_cbranch_scc1 L_l_first{tg}
                s_waitcnt vmcnt({SPL})
                s_barrier
                L_l_first{tg}:""")
        a(f"""
        s_mov_b64 exec, -1
        s_cmp_lt_u32 m0, {2*SLOT}
        s_cselect_b32 s{sT1}, {3*SLOT}, 0
        s_add_u32 m0, m0, s{sT1}
        s_sub_u32 m0, m0, {2*SLOT}
        s_add_u32 s{sSX}, s{sSX}, 128
        s_add_u32 s{sSW}, s{sSW}, {64*3840}
        s_add_u32 s{sCNT}, s{sCNT}, 1
        s_cmp_lt_u32 s{sCNT}, 10
        s_cbranch_scc1 L_l_loop{tg}
        """)
        if TH and not tg:
            a('s_branch L_l_after')
    a('L_l_after:')
    b = Asm()
    b(f"""
    ;@reset
    L_l_setup:
    s_cmp_ge_u32 s{S_IDX}, 10
    s_cselect_b32 s{sT0}, 10, 0
    s_cselect_b32 s{sT1}, 4, 0
    s_sub_u32 s{sT0}, s{S_IDX}, s{sT0}
    s_lshl_b32 s{sT0}, s{sT0}, 7
    s_mul_i32 s{sWO}, s{sLW}, {8*1280}
    s_add_u32 s{sWO}, s{sWO}, s{sT0}
    s_lshl_b32 s{sWB}, s{sLW}, 10
    s_add_u32 s{sWB}, s{sWB}, {WOB}
    """)
    srd(b, SRWO, S_WO, 640 * 1280)
    b(f's_cmp_ge_u32 s{S_IDX}, 20\ns_cselect_b32 s{SRWO+2}, 0, s{SRWO+2}')
    srd(b, SRO, S_WS, OBYTES, 8192 * opts.get('flip', 0))
    srd(b, SRK, S_WS, KVBYTES, KVOFF + 8192 * opts.get('flip', 0))
    kv_slot(b)
    b(f"""
    s_mul_i32 s{sT1}, s{sRT}, 6
    s_add_u32 s{sT1}, s{sT1}, s{sLW}
    """)
    tile_base(b, sC1, sT1, sT0)
    b(f's_add_u32 s{sT1}, s{sT1}, 4\ns_cmp_ge_u32 s{sLW}, 2\ns_cselect_b32 s{sT1}, 64, s{sT1}')
    tile_base(b, sC2, sT1, sT0)
    b(f"""
    s_lshr_b32 s{sT0}, s{sPQ}, 1
    s_lshl_b32 s{sT0}, s{sT0}, 14
    s_and_b32 s{sT1}, s{sPQ}, 1
    s_mul_i32 s{sT1}, s{sT1}, 2560
    s_add_u32 s{sT0}, s{sT0}, s{sT1}
    s_add_u32 s{sC1}, s{sC1}, s{sT0}
    s_add_u32 s{sC2}, s{sC2}, s{sT0}
    v_lshlrev_b32 v{VCL}, 4, v{LANE}
    v_mov_b32 v{VP}, -1
    v_mov_b32 v{VP+1}, -1
    v_mov_b32 v{VP+2}, -1
    v_mov_b32 v{VP+3}, -1
    v_mov_b32 v{VZ}, 0
    v_mov_b32 v{VHV}, 0
    v_and_b32 v14, 15, v{LANE}
    v_lshrrev_b32 v15, 4, v{LANE}
    s_lshl_b32 s{sT0}, s{sLW}, 6
    v_add_u32 v16, s{sT0}, v14
    s_xor_b32 s{sT1}, s{sSP}, 1
    s_lshl_b32 s{sT1}, s{sT1}, 12
    v_lshl_add_u32 v17, v15, 16, s{sT1}
    """)
    for c in range(4):
        b(f"""v_add_u32 v18, {16*c}, v16
        v_min_u32 v18, 239, v18
        v_lshl_add_u32 v{VK+c}, v18, 4, v17""")
    b(f"""
    v_lshrrev_b32 v17, 1, v15
    v_lshl_add_u32 v16, v17, 4, v16
    v_and_b32 v17, 1, v15
    v_lshlrev_b32 v17, 3, v17
    v_lshl_add_u32 v{VKW}, v16, 4, v17
    v_add_u32 v{VKW}, {KVI}, v{VKW}
    v_and_b32 v16, 1, v14
    v_lshlrev_b32 v16, 4, v16
    v_mov_b32 v17, 0x3f80
    v_lshlrev_b32 v16, v16, v17
    v_lshrrev_b32 v17, 1, v14
    """)
    for m in range(0, 8, 2):
        b(f'v_cmp_eq_u32 vcc, {m}, v17\nv_cmp_eq_u32 {sr(sM,2)}, {m+1}, v17\nv_cndmask_b32 v{SEL+m}, 0, v16, vcc\nv_cndmask_b32 v{SEL+m+1}, 0, v16, {sr(sM,2)}')
    b(f"""
    v_lshl_add_u32 v{VH}, v14, 16, s{sT1}
    s_lshl_b32 s{sHN}, s{sRT}, 4
    s_add_u32 s{sHN}, s{sHN}, s{sSP}
    s_lshl_b32 s{sHN}, s{sHN}, 12
    s_andn2_b32 s{sHN2}, s{sHN}, 0x2000
    s_bfe_u32 s{sT0}, s{sHN}, 0x1000d
    s_lshl_b32 s{sT0}, s{sT0}, 6
    s_add_u32 s{sHN2}, s{sHN2}, s{sT0}
    s_cmp_ge_u32 s{sRT}, 5
    s_cselect_b32 s{sT0}, 0x2000, 0
    s_add_u32 s{sHN2}, s{sHN2}, s{sT0}
    s_cmp_eq_u32 s{sLW}, 0
    s_cselect_b32 s{sHN}, s{sHN}, {BIG}
    s_cselect_b32 s{sHN2}, s{sHN2}, {BIG}
    s_mov_b32 s{sK1}, {4*16*KVS}
    s_mov_b32 s{sK2}, {8*16*KVS}
    s_mov_b64 {sr(sH,2)}, 0xfff
    """)
    if TH:
        b(f's_cmp_eq_u32 s{sFA}, 0\ns_cbranch_scc1 L_l_backf')
    b('s_branch L_l_back')

    def wo(i0, i1):
        for i in (list(range(5, 20)) + list(range(5)))[i0:i0 if opts.get('nowo') else i1]:
            a(f's_add_u32 m0, s{sWB}, {4096*i}\ns_add_u32 s{sT0}, s{sWO}, {32*1280*i}')
            a(f'buffer_load_dwordx4 v{VWO}, {sr(SRWO,4)}, s{sT0} offen lds')
    W0 = opts.get('wo0', 6)
    W1 = opts.get('wo1', 15)
    a(f'global_load_dword v{VC}, v{VZ}, {sr(S_DBG,2)} sc1')
    LW = opts.get('latewo', 0)
    if LW:
        a(f's_cmp_eq_u32 s{sFA}, 0\ns_cbranch_scc1 L_l_f1')
        late.append(f';@reset\nL_l_f1:\ns_waitcnt vmcnt(1)\ns_barrier\ns_waitcnt vmcnt(0)\ns_branch L_l_f1b')
    wo(0, W0)
    a(f's_waitcnt vmcnt({1 if opts.get("nowo") else W0 + 1})\ns_barrier')
    wo(W0, W1)
    a(f's_waitcnt vmcnt({W1})\nL_l_f1b:')
    clear_check(a, late, 'L_l_clr', VC, VZ)
    if 'flip' not in opts:
        a(f's_cmp_gt_i32 s{sT2}, 0xffff\ns_cselect_b32 s{sT2}, 8192, 0\nv_mov_b32 v16, {FLIP}\nv_mov_b32 v15, s{sT2}')
        a(shift_ws(sT2))
    a('s_barrier')
    if LW == 3:
        a(f's_cmp_lg_u32 s{sFA}, 0\ns_cbranch_scc1 L_l_f3')
        wo(0, W1)
        a('L_l_f3:')
    elif LW:
        a(f's_cmp_eq_u32 s{sFA}, 0\ns_cbranch_scc1 L_l_f2')
    wo(W1, 20)
    a('L_l_f2:')
    if opts.get('cre', 0):
        a(f"""
        s_getpc_b64 s[24:25]
        L_l_pc:
        s_lshl2_add_u32 s{sT0}, s{S_IDX}, s{sLW}
        s_lshl_b32 s{sT0}, s{sT0}, 8
        s_add_u32 s{sT0}, s{sT0}, L_c_tail-L_l_pc
        v_lshl_add_u32 v14, v{LANE}, 7, s{sT0}
        v_min_u32 v14, L_end-L_l_pc, v14
        s_mov_b64 exec, 3
        global_load_dword v31, v14, s[24:25] ;touch
        s_mov_b64 exec, -1
        """)
    for so in (sC1, sC2):
        a(f"""buffer_store_dwordx4 {vr(VP,4)}, v{VCL}, {sr(SRO,4)}, s{so} offen sc1
        buffer_store_dwordx4 {vr(VP,4)}, v{VCL}, {sr(SRO,4)}, s{so} offen offset:1024 sc1
        s_mov_b32 exec_hi, 0
        buffer_store_dwordx4 {vr(VP,4)}, v{VCL}, {sr(SRO,4)}, s{so} offen offset:2048 sc1
        s_mov_b32 exec_hi, -1""")
    a(f"""
    s_mov_b32 s{sCNT}, 0
    s_waitcnt vmcnt(0)
    """)
    if 'flip' not in opts:
        a('ds_write_b32 v16, v15\ns_waitcnt lgkmcnt(0)')
    stamp(a, 2)
    a(f"""
    s_setprio 3
    s_barrier
    """)
    if opts.get('early1', 1) == 1:
        a(f's_mov_b64 exec, 1\nbuffer_store_dword v{VZ}, v{VZ}, {sr(SRK,4)}, s{sHN} offen offset:3840 sc1')
    if LW == 2:
        a(f's_mov_b64 exec, -1\ns_cmp_lg_u32 s{sFA}, 0\ns_cbranch_scc1 L_l_poll')
        wo(0, 20)
        a(';@reset')
    a(f"""
    L_l_poll:
    s_mov_b64 exec, {sr(sH,2)}
    buffer_load_dword v{VHV}, v{VH}, {sr(SRK,4)}, 0 offen offset:3840 sc1
    s_mov_b64 exec, -1
    s_cmp_lg_u32 s{sCNT}, 0
    s_cbranch_scc1 L_l_nob
    s_barrier
    """)
    if LW == 1:
        a(f's_cmp_lg_u32 s{sFA}, 0\ns_cbranch_scc1 L_l_nob')
        wo(0, 20)
        a(';@reset')
    a(f"""
    L_l_nob:
    s_waitcnt vmcnt(0)
    {"s_sleep %d" % opts.get('psleep', 1) if opts.get('psleep', 1) else ""}
    s_add_u32 s{sCNT}, s{sCNT}, 1
    s_cmp_ge_u32 s{sCNT}, {CAP}
    s_cbranch_scc1 L_l_got1
    v_cmp_eq_u32 {sr(sH,2)}, -1, v{VHV}
    """)
    a(f's_cmp_lg_u32 s{sH}, 0\ns_cbranch_scc1 L_l_poll')
    stamp(a, 4)
    E2 = 1

    def loads(a, m):
        for c in range(4):
            a(f'buffer_load_dwordx4 {vr(LD+16*m+4*c,4)}, v{VK+c}, {sr(SRK,4)}, {("0", f"s{sK1}", f"s{sK2}")[m]} offen sc1')

    def reduce(a):
        for m in range(3):
            for c in range(4):
                r, d = LD + 16 * m + 4 * c, RD + 4 * (c >> 1)
                a(f'{MF16} {vr(d,4)}, {vr(SEL+4*(c&1),4)}, {vr(r,4)}, {"0" if m == 0 and not c & 1 else vr(d,4)}')
                a(f'v_max3_u32 v11, v{r}, v{r+1}, {"v11" if c else "0"}\nv_max3_u32 v11, v11, v{r+2}, v{r+3}')
            a(f'v_cmp_eq_u32 {sr(sM+2*m,2)}, -1, v11')
        a(f's_or_b64 vcc, {sr(sM,2)}, {sr(sM+2,2)}\ns_or_b64 vcc, vcc, {sr(sM+4,2)}\ns_cbranch_scc1 L_l_again')
    for m in range(3):
        loads(a, m)
    reduce(a)
    a('L_l_got1:')
    la = late.append
    la(';@reset\nL_l_again:')
    for m in range(3):
        la(f's_mov_b64 exec, {sr(sM+2*m,2)}\ns_cbranch_execz L_l_sk{m}')
        loads(la, m)
        la(f'L_l_sk{m}:')
    la(f"""
    s_mov_b64 exec, -1
    s_add_u32 s{sCNT}, s{sCNT}, 1
    s_cmp_ge_u32 s{sCNT}, {CAP}
    s_cbranch_scc1 L_l_got1
    s_waitcnt vmcnt(0)
    """)
    reduce(la)
    la('s_branch L_l_got1')
    stamp(a, 5)
    for i in range(4):
        a(f'v_cvt_pk_bf16_f32 v{12+i}, v{RD+2*i}, v{RD+2*i+1}')
    a(f"""
    ds_write_b64 v{VKW}, v[12:13]
    ds_write_b64 v{VKW}, v[14:15] offset:512
    s_waitcnt lgkmcnt(0)
    s_barrier
    """)
    if E2 == 1:
        a(f's_mov_b64 exec, 1\nbuffer_store_dword v{VZ}, v{VZ}, {sr(SRK,4)}, s{sHN2} offen offset:3968 sc1\ns_mov_b64 exec, -1')
    stamp(a, 3)
    stamp(a, 6, final=True)
    a('s_endpgm')
    a(b.lines)


def gen_c(a, opts, stamp, late):
    sHH, sPG, sDEL, sCNT, sC = 60, 61, 62, 63, 64
    sHM = 66
    sO1, sO2, sOB, sEPS, sQ0, sHN, sH2, sH, sO0, sNV = 68, 69, 70, 71, 72, 48, 49, 50, 62, 44
    AX, AW, AE, AKV, AO = 2, 4, 8, 16, 24
    ACC, FR, WP, PK = 32, 128, 184, 216
    PKT = (216, 232, 168)
    ONE = 248
    AS = 251
    T = lambda i: PK + i
    a(f's_and_b32 s{sHH}, s{S_WAVE}, 1\ns_lshr_b32 s{sPG}, s{S_WAVE}, 1')
    c32, hf, r4, cq, fh, q4, c16 = (T(i) for i in range(7))
    t0, t1, t2, t3 = (T(i) for i in range(8, 12))
    a(f'''
    v_and_b32 v{c32}, 31, v{LANE}
    v_lshrrev_b32 v{hf}, 5, v{LANE}
    v_bfe_u32 v{r4}, v{LANE}, 2, 2
    v_and_b32 v{cq}, 3, v{LANE}
    v_bfe_u32 v{fh}, v{LANE}, 4, 1
    v_lshrrev_b32 v{q4}, 4, v{LANE}
    v_and_b32 v{c16}, 15, v{LANE}
    s_mov_b32 s{sHM}, 0
    s_mov_b32 s{sHM+1}, -1
    v_bfe_u32 v{t0}, v{LANE}, 1, 3
    v_xor_b32 v{t0}, v{t0}, v{q4}
    v_lshlrev_b32 v{t0}, 4, v{t0}
    v_lshl_add_u32 v{t0}, v{c16}, 7, v{t0}
    s_mul_i32 s{sT0}, s{sPG}, {96*128}
    v_add_u32 v{AX}, s{sT0}, v{t0}
    v_xor_b32 v{AX+1}, 64, v{AX}
    s_and_b32 s{sT0}, s{sP}, 3
    s_lshl_b32 s{sT0}, s{sT0}, 4
    s_and_b32 s{sT1}, s{sPQ}, 3
    s_lshl_b32 s{sT1}, s{sT1}, 4
    s_add_u32 s{sT2}, s{sT1}, 88
    s_mul_i32 s{sT3}, s{sHH}, 40
    s_add_u32 s{sT0}, s{sT0}, s{sT3}
    s_add_u32 s{sT1}, s{sT1}, s{sT3}
    s_add_u32 s{sT1}, s{sT1}, 16384
    s_lshl_b32 s{sT3}, s{sHH}, 3
    s_sub_u32 s{sT2}, s{sT2}, s{sT3}
    s_and_b32 s{sT2}, s{sT2}, 127
    s_add_u32 s{sT2}, s{sT2}, 16384
    v_lshl_add_u32 v{t0}, v{q4}, 4, v{r4}
    v_lshlrev_b32 v{t0}, 6, v{t0}
    v_add_u32 v{t0}, {WOFF}, v{t0}
    v_lshlrev_b32 v{t1}, 5, v{fh}
    v_and_b32 v{t2}, 1, v{cq}
    v_lshrrev_b32 v{t3}, 1, v{cq}
    v_lshl_add_u32 v{t3}, v{t2}, 1, v{t3}
    v_lshl_add_u32 v{AW}, v{t3}, 3, s{sT0}
    v_lshl_add_u32 v{AW+2}, v{t3}, 3, s{sT1}
    s_add_u32 s{sT0}, s{sT0}, 32
    s_add_u32 s{sT1}, s{sT1}, 32
    v_lshl_add_u32 v{AW+1}, v{t2}, 13, s{sT0}     ; k4, v4
    v_mov_b32 v{t2}, s{sT1}
    v_mov_b32 v{t3}, s{sT2}
    v_cmp_eq_u32 vcc, 2, v{cq}
    v_cndmask_b32 v{AW+1}, v{AW+1}, v{t2}, vcc
    v_cmp_eq_u32 vcc, 3, v{cq}
    v_cndmask_b32 v{AW+1}, v{AW+1}, v{t3}, vcc
    v_and_b32 v{t2}, 64, v{AW}
    v_mad_u32_u24 v{t2}, v{t2}, 7, v{t0}
    v_xad_u32 v{AW}, v{AW}, v{t1}, v{t2}
    v_and_b32 v{t2}, 64, v{AW+1}
    v_mad_u32_u24 v{t2}, v{t2}, 7, v{t0}
    v_xad_u32 v{AW+1}, v{AW+1}, v{t1}, v{t2}
    v_and_b32 v{t2}, 64, v{AW+2}
    v_mad_u32_u24 v{t2}, v{t2}, 7, v{t0}
    v_xad_u32 v{AW+2}, v{AW+2}, v{t1}, v{t2}
    ''')
    a(f'''
    s_lshl_b32 s{sT0}, s{sP}, 1
    s_add_u32 s{sT0}, s{sT0}, s{sHH}
    s_mul_i32 s{sT0}, s{sT0}, 800
    s_lshl_b32 s{sT1}, s{sPQ}, 1
    s_add_u32 s{sT1}, s{sT1}, s{sHH}
    s_mul_i32 s{sT1}, s{sT1}, 800
    v_lshlrev_b32 v29, 4, v{LANE}
    s_lshl_b32 s{sT2}, s{S_WAVE}, 11
    s_add_u32 s{sT2}, s{sT2}, {WPB}
    s_mov_b32 m0, s{sT2}
    s_waitcnt lgkmcnt(0)
    ''')
    srd(a, SRX, S_WPHI, 32 * 800)
    a(f'''
    buffer_load_dwordx4 v29, {sr(SRX,4)}, s{sT0} offen lds
    s_add_u32 m0, m0, 1024
    buffer_load_dwordx4 v29, {sr(SRX,4)}, s{sT1} offen lds
    ''')
    srd(a, SRO, S_WS, OBYTES, 8192 * opts.get('flip', 0))
    srd(a, SRK, S_WS, KVBYTES, KVOFF + 8192 * opts.get('flip', 0))
    kv_slot(a)
    main_a, a = a, Asm()
    a(f'''
    v_and_b32 v{t0}, 9, v{LANE}
    v_bfe_u32 v{t1}, v{LANE}, 2, 1
    v_lshl_or_b32 v{t0}, v{t1}, 1, v{t0}
    v_bfe_u32 v{t1}, v{LANE}, 1, 1
    v_lshl_or_b32 v{t0}, v{t1}, 2, v{t0}         ; sigma
    s_lshl_b32 s{sT0}, s{sHH}, 1
    s_add_u32 s{sT0}, s{sT0}, s{sPG}
    s_mul_i32 s{sT0}, s{sT0}, {96*128}
    v_lshl_add_u32 v{t1}, v{c32}, 7, s{sT0}
    v_mul_u32_u24 v{t2}, 5, v{hf}
    ''')
    for i in (0, 1, 2, 3, 4, 7):
        a(f'v_add_u32 v{t3}, {i}, v{t2}' if i < 5 else f'v_add_u32 v{t3}, 10, v{hf}')
        a(f'v_xor_b32 v{t3}, v{t3}, v{t0}\nv_lshl_add_u32 v{AE+i}, v{t3}, 3, v{t1}')
    a(f'''
    v_lshl_add_u32 v{t1}, v{c16}, 7, s{sT0}
    v_lshl_add_u32 v{t3}, v{fh}, 1, v{hf}
    v_add_u32 v{t3}, 12, v{t3}
    v_xor_b32 v{t3}, v{t3}, v{t0}
    v_lshl_add_u32 v{AE+5}, v{t3}, 3, v{t1}
    ''')
    a(f'''
    v_and_b32 v{t0}, 1, v{r4}
    v_lshrrev_b32 v{t1}, 1, v{r4}
    v_lshl_or_b32 v{t0}, v{t1}, 2, v{t0}
    v_lshl_or_b32 v{t0}, v{fh}, 3, v{t0}
    v_xor_b32 v{t0}, v{t0}, v{cq}
    v_lshl_add_u32 v{t1}, v{q4}, 3, v{r4}
    s_mul_i32 s{sT0}, s{sHH}, {192*128}
    v_lshl_add_u32 v{t1}, v{t1}, 7, s{sT0}
    v_lshl_add_u32 v{AKV}, v{t0}, 3, v{t1}
    v_xor_b32 v{AKV+2}, 32, v{AKV}
    v_xor_b32 v{AKV+4}, 64, v{AKV}
    s_lshl_b32 s{sT0}, s{sPG}, 5
    s_xor_b32 s{sT0}, s{sT0}, 0x60
    v_xor_b32 v{AKV+6}, s{sT0}, v{AKV}
    ''')
    for i in range(4):
        a(f'v_xor_b32 v{AKV+2*i+1}, 16, v{AKV+2*i}')
    a(f'''
    v_bfe_u32 v{t0}, v{LANE}, 2, 1
    v_bfe_u32 v{t1}, v{LANE}, 3, 1
    v_lshl_add_u32 v{t1}, v{t0}, 1, v{t1}
    v_lshl_add_u32 v{t1}, v{t1}, 2, v{cq}
    v_add_u32 v{t2}, 80, v{cq}
    v_cmp_le_u32 vcc, 16, v{c32}
    v_cndmask_b32 v{t1}, v{t1}, v{t2}, vcc
    v_cndmask_b32 v{t0}, 8, 7, vcc
    v_mov_b32 v{t2}, 84
    v_cmp_le_u32 vcc, 24, v{c32}
    v_cndmask_b32 v{t1}, v{t1}, v{t2}, vcc
    s_mul_i32 s{sT0}, s{sHH}, 1920
    s_add_u32 s{sT0}, s{sT0}, {KVI}
    v_lshl_add_u32 v{t1}, v{t1}, 4, s{sT0}
    ''')
    oq = lambda ph: ph & 3 if ph < 8 else 4
    op = lambda ph: 8 * (ph >> 2) if ph < 8 else 8 * (ph - 8)
    for t in range(5):
        a(f'''v_cndmask_b32 v{t2}, {oq(t)}, {oq(5+t)}, {sr(sHM,2)}
        v_cndmask_b32 v{t3}, {op(t)}, {op(5+t)}, {sr(sHM,2)}
        v_lshl_add_u32 v{t2}, v{t2}, v{t0}, v{t3}
        v_add_u32 v{AO+t}, v{t1}, v{t2}''')
    a(f'''
    s_lshl_b32 s{sT0}, s{sRT}, 4
    s_add_u32 s{sT0}, s{sT0}, s{sSP}
    s_lshl_b32 s{sT0}, s{sT0}, 12
    s_cmp_eq_u32 s{S_WAVE}, 3
    s_cselect_b32 s{sHN}, s{sT0}, {BIG}
    s_mul_i32 s{sT1}, s{sHH}, 1920
    s_add_u32 s{sT0}, s{sT0}, s{sT1}
    s_mul_i32 s{sT1}, s{sPG}, {1280 - 128}
    s_add_u32 s{sT0}, s{sT0}, s{sT1}
    v_lshl_add_u32 v{t1}, v{c16}, 4, s{sT0}
    s_lshl_b32 s{sT1}, s{sPG}, 3
    v_mov_b32 v{t3}, {BIG}
    v_cmp_gt_u32 vcc, s{sT1}, v{c16}
    v_cndmask_b32 v{t1}, v{t1}, v{t3}, vcc
    s_sub_u32 s{sT1}, 8, s{sPG}
    v_lshl_add_u32 v{AS}, v{q4}, s{sT1}, v{t1}
    s_lshl_b32 s{sT1}, 4, s{sT1}
    v_add_u32 v{t2}, s{sT1}, v{t1}
    v_cmp_gt_u32 {sr(sQ0,2)}, 16, v{LANE}
    v_cndmask_b32 v{AS+1}, v{t3}, v{t2}, {sr(sQ0,2)}
    s_mul_i32 s{sT0}, s{sRT}, 6
    s_mul_i32 s{sT1}, s{sPG}, 3
    s_add_u32 s{sT0}, s{sT0}, s{sT1}
    ''')
    for t in range(3):
        a(f'''s_cmp_lt_u32 s{sT0}, {64 - t}
        s_cselect_b32 s{sT1}, 0x3f80, 0
        v_mov_b32 v{ONE+t}, s{sT1}''')
    a(f'''
    ''')
    for t, d in enumerate((sO0, sO1, sO2)):
        tile_base(a, d, sT0, sT1)
        if t < 2:
            a(f's_add_u32 s{sT0}, s{sT0}, 1')
    a(f'''
    s_lshr_b32 s{sT0}, s{sPQ}, 1
    s_lshl_b32 s{sT0}, s{sT0}, 14
    s_and_b32 s{sT1}, s{sPQ}, 1
    s_lshl1_add_u32 s{sT1}, s{sT1}, s{sHH}
    s_mul_i32 s{sT1}, s{sT1}, 1280
    s_add_u32 s{sT0}, s{sT0}, s{sT1}
    v_lshl_add_u32 v{AS+2}, v{LANE}, 4, s{sT0}
    v_mov_b32 v{t2}, s{sO2}
    v_mov_b32 v{t1}, s{sO0}
    v_cndmask_b32 v{t2}, v{t2}, v{t1}, {sr(sQ0,2)}
    v_mov_b32 v{t1}, s{sO1}
    v_cndmask_b32 v{t2}, v{t2}, v{t1}, {sr(sHM,2)}
    v_lshl_add_u32 v{t2}, v{c16}, 4, v{t2}
    v_add_u32 v{t2}, s{sT0}, v{t2}
    v_cmp_gt_u32 vcc, 48, v{LANE}
    v_cndmask_b32 v{AS+3}, v{t3}, v{t2}, vcc
    ''')
    a(f'''
    v_lshrrev_b32 v{t0}, 1, v{cq}
    v_lshl_add_u32 v{t0}, v{fh}, 1, v{t0}        ; a
    v_mul_u32_u24 v{t1}, 40, v{r4}
    v_add_u32 v{t1}, s{sT2}, v{t1}
    v_lshl_add_u32 v{t0}, v{t0}, 3, v{t1}
    v_mul_u32_u24 v{t3}, 160, v{hf}
    v_add_u32 v{t2}, v{t0}, v{t3}
    v_add_u32 v{t3}, v{t1}, v{t3}
    s_waitcnt vmcnt(0)
    ''')
    for w in range(2):
        for o in range(2):
            b = WP + 16 * w + 8 * o
            for t in range(2):
                a(f'ds_read_b64_tr_b16 {vr(b+2*t,2)}, v{t3 if o else t2} offset:{1024*w + 320*t + 32*o}')
            a(f'ds_read_b64_tr_b16 {vr(b+4,2)}, v{t1 if o else t0} offset:{1024*w + 640 + 32*o}')
    a(f'''
    v_bfe_u32 v29, v{LANE}, 2, 1
    v_mov_b32 v30, 0x80008000
    v_mul_lo_u32 v29, v29, v30
    ''')
    for w in range(2):
        for o in range(2):
            b = WP + 16 * w + 8 * o
            for i in range(6):
                a(f'v_xor_b32 v{b+i}, v29, v{b+i}')
            for i in (4, 5):
                a(f'v_cndmask_b32 v{b+i}, 0, v{b+i}, {sr(sHM,2)}' if w else f'v_cndmask_b32 v{b+i}, v{b+i}, 0, {sr(sHM,2)}')
            a(f'v_mov_b32 v{b+6}, 0\nv_mov_b32 v{b+7}, 0')
    a(f's_mov_b32 s{sC}, {f32(LOG2E)}')
    a(f'''
    v_mov_b32 v31, 0
    ''')
    fill = [l for l in a.lines if not l.startswith(';')]
    a = main_a
    if opts.get('m16hack'):
        a([f'v_mov_b32 v{ACC+i}, 0' for i in range(96)])

    KM, VM, LF, QM = (lambda t, o=o: PKT[t] + o for o in (0, 4, 8, 12))

    def pack(t):
        b = ACC + 32 * t
        cv = [f'v_cvt_pk_bf16_f32 v{PKT[t]+i}, v{b+2*i}, v{b+2*i+1}' for i in range(16)]
        sw = [f'v_permlane16_swap_b32 v{PKT[t]+4*f+i}, v{PKT[t]+4*f+i+2}' for f in range(4) for i in range(2)]
        return cv[:4] + cv[8:12] + sw[:2] + cv[4:8] + sw[4:6] + cv[12:] + [f'v_cndmask_b32 v{LF(t)+2}, v{LF(t)+2}, v{ONE+t}, {sr(sHM,2)}']

    def vwr(t):
        return [f'ds_write_b64 v{AE+5}, {vr(VM(t),2)} offset:{4096*t}', f'ds_write_b64 v{AE+5}, {vr(VM(t)+2,2)} offset:{4096*t+2048}',
                f'ds_write_b64 v{AE+7}, {vr(LF(t)+2,2)} offset:{4096*t}']

    def wphi(t, w):
        b = FR if (t, w) == (0, 1) else ACC + 32 * t
        m = QM(t) if w else KM(t)
        o = []
        for s in range(2):
            for j in range(2):
                d = vr(b + 16 * j, 16)
                o.append(f'{MF32} {d}, {vr(WP+16*w+8*j+4*s,4)}, {vr(LF(t) if s else m,4)}, {d if s else "0"}')
        return o

    def softmax(t, ph, b=None):
        b = b or ACC + 32 * t
        m, m2, s, s2 = b + 20, b + 21, b + 22, b + 24
        o = [f'v_max3_f32 v{m}, v{b}, v{b+1}, v{b+2}', f'v_max3_f32 v{m2}, v{b+3}, v{b+4}, v{b+5}']
        for i in range(6, 20, 2):
            x = m if i % 4 == 2 else m2
            o.append(f'v_max3_f32 v{x}, v{x}, v{b+i}, v{b+i+1}')
        o += [f'v_max_f32 v{m}, v{m}, v{m2}', f'v_mul_f32 v{m}, s{sC}, v{m}']
        fm = [f'v_pk_fma_f32 {vr(b+2*i,2)}, {vr(b+2*i,2)}, {sr(sC,2)}, {vr(m,2)} op_sel_hi:[1,0,0] neg_lo:[0,0,1] neg_hi:[0,0,1]' for i in range(10)]
        ex = [f'v_exp_f32 v{b+i}, v{b+i}' for i in range(20)]
        ad = {1: f'v_pk_add_f32 {vr(s,2)}, {vr(b,2)}, {vr(b+2,2)}'}
        for i in range(2, 10):
            ad[i] = f'v_pk_add_f32 {vr(s,2)}, {vr(s,2)}, {vr(b+2*i,2)}'
        o += fm[:2]
        for i in range(10):
            o += ex[2 * i:2 * i + 2]
            if i + 2 < 10:
                o.append(fm[i + 2])
            if i - 1 in ad:
                o.append(ad[i - 1])
        o += [ad[9], f'v_add_f32 v{s}, v{s}, v{s+1}', f'v_rcp_f32 v{s}, v{s}']
        tail = []
        for i in range(10):
            tail.append(f'v_pk_mul_f32 {vr(b+2*i,2)}, {vr(b+2*i,2)}, {vr(s,2)} op_sel_hi:[1,0]')
        cv = [f'v_cvt_pk_bf16_f32 v{ph+i}, v{b+2*i}, v{b+2*i+1}' for i in range(10)]
        return o, tail, cv
    XF = FR

    def wreg(ch, f, ks):
        return ((152 if ch & 1 else 232) if f < 2 else 152) + 8 * f + 4 * ks

    def wread(ch, f, ks):
        if opts.get('noread'):
            return ['s_nop 0'] * 2
        return [f'ds_read_b64_tr_b16 {vr(wreg(ch,f,ks)+2*t,2)}, v{AW+(0,0,1,2)[f]} offset:{4096*ks + 256*t + (8192 if f == 1 else 0)}' for t in range(2)]

    def xread(tt):
        if opts.get('noread'):
            return ['s_nop 0'] * 2
        return [f'ds_read_b128 {vr(XF+8*(tt%3)+4*ks,4)}, v{AX+ks} offset:{2048*tt}' for ks in range(2)]

    def block(ch, tt):
        d = lambda f: vr(ACC + 32 * (tt >> 1) + 8 * f + 4 * (tt & 1), 4)
        if opts.get('nomfma'):
            return ['s_nop 0'] * 8
        return [f'{MF16} {d(f)}, {vr(wreg(ch,f,ks),4)}, {vr(XF+8*(tt%3)+4*ks,4)}, {"0" if ch == 0 and ks == 0 else d(f)}' for f in range(4) for ks in range(2)]

    def bar(ch):
        assert ch < 8 or not any(x.startswith('ds_') for x in fill)
        a('s_barrier')
        if ch in (0, 9):
            stamp(a, 7 if ch else 0)
    take = lambda n: [fill.pop(0) for _ in range(min(n, len(fill)))]
    a('s_setprio 2')
    bar(0)
    x0 = xread(0)
    a(wread(0, 0, 0) + x0[:1] + wread(0, 0, 1) + x0[1:] + sum([wread(0, f, ks) for f in range(1, 4) for ks in range(2)], []) + xread(1))
    rd, ep = xread(2), []
    for ch in range(10):
        dl = 2 * SLOT if ch % 3 == 0 else -SLOT
        ex = [f'v_add_u32 v{AX+i}, {dl}, v{AX+i}' for i in range(5)] if ch < 9 else []
        NB = opts.get('barlast', 5) if ch == 8 else 4
        for tt in range(6):
            if tt == NB:
                assert not rd and not ex
                a('s_waitcnt lgkmcnt(0)')
                bar(ch + 1)
                if ch < 9:
                    x0 = xread(0)
                    rd = wread(ch + 1, 0, 0) + x0[:1] + wread(ch + 1, 0, 1) + x0[1:] + wread(ch + 1, 1, 0) + wread(ch + 1, 1, 1)
            if tt == 5 and ch < 9:
                rd += xread(1)
            for n, m in enumerate(block(ch, tt)):
                a(m)
                if ch == 9 and (tt, n) in ((2, 3), (4, 3)):
                    a(ep); ep = pack(tt // 2 - 1)
                if tt == 5 and n >= 4 and ch < 9:
                    rd += wread(ch + 1, n >> 1, n & 1)
                if ch == 9 and tt >= 4 and n % 4 == 1:
                    if (tt, n) == (4, 1):
                        a(ep); ep = []
                    a([wphi(0, 0)[2 * (tt - 4) + n // 4]] + ep[:4]); ep = ep[4:]
                elif rd:
                    k = 3 if NB == 5 and tt == 5 else 2 if tt == 5 or (tt == 4 and n < 2) else 1
                    a(rd[:k]); rd = rd[k:]
                elif tt == 3 and ex:
                    a(ex.pop(0))
                elif ep:
                    k = 1 if ep[0].startswith('v_perm') else 2
                    a(ep[:k]); ep = ep[k:]
                else:
                    a(take(2 if n & 1 else 1))
            if tt < 3:
                rd += xread(tt + 3)
            elif tt == 5 and ch < 9:
                a(rd)
                rd = xread(2)
        assert ch < 8 or not fill, len(fill)
    a(ep)
    a(';@age 0')
    stamp(a, 1)
    w1 = wphi(1, 0)
    a(interleave(w1, pack(2), start=1, ratio=7))
    pw = []
    for t in range(3):
        ph = FR + 12 * t
        o, tail, cv = softmax(t, ph)
        if t == 0:
            o = interleave(wphi(2, 0), o, ratio=5)
        pw += vwr(t)
        pw = ['\n'.join(pw[i:i + 2]) for i in range(0, len(pw), 2)]
        hint1 = f's_mov_b64 exec, 1\nbuffer_store_dword v31, v31, {sr(SRK,4)}, s{sHN} offen offset:3840 sc1\ns_mov_b64 exec, -1'
        if opts.get('early1', 1) == 7 - 2 * t:
            a(hint1)
        a(interleave(o, pw, start=opts.get('w0st', 50) if t == 0 else 0))
        if opts.get('early1', 1) == 6 - 2 * t:
            a(hint1)
        a(tail[:2])
        pw = []
        for i in range(10):
            if i + 2 < 10:
                a(tail[i + 2])
            a(cv[i])
            if i & 1:
                (a if t == 2 else pw.append)(f'ds_write_b64 v{AE+i//2}, {vr(ph+i-1,2)} offset:{4096*t}')
    a('s_waitcnt lgkmcnt(0)\ns_barrier')
    stamp(a, 2)
    a('L_c_tail:')
    KB = ACC

    def kvrd(ks):
        return [f'ds_read_b64_tr_b16 {vr(KB+16*ks+4*j+2*t,2)}, v{AKV+2*j+t} offset:{(32*ks+4*t)*128}' for j in (3, 0, 1, 2) for t in range(2)]
    qm = [wphi(t, 1) for t in range(3)]
    qsw = [[f'v_permlane16_swap_b32 v{QM(t)+i}, v{QM(t)+i+2}' for i in range(2)] for t in range(3)]
    pend = sum([kvrd(ks) for ks in range(6)], [])
    if 'flip' not in opts:
        pend.insert(8, f'ds_read_b32 v29, v31 offset:{FLIP}')
        pend += [f'v_readfirstlane_b32 s{sT0}, v29', 's_nop 0', f's_and_b32 s{sT0}, s{sT0}, 8192'] + shift_ws(sT0)
    a(pend[:4] + qsw[0] + pend[4:6] + [qm[0][0]] + pend[6:10] + [qm[0][1]] + pend[10:14])
    pend = pend[14:]
    for ks in range(6):
        for j in range(3):
            d = vr(KM(j), 4)
            a(f'{MF16} {d}, {vr(KB+16*ks+4*j,4)}, {vr(KB+16*ks+12,4)}, {d if ks else "0"}')
            if j == 2 and ks < 2:
                a(qm[0][2 + ks])
            a(pend[:3]); pend = pend[3:]
    a(qsw[1] + qsw[2])
    assert not pend
    S0, S1 = VM(0), VM(1)
    for j in (0, 1, 2):
        for i in range(2):
            a(f'v_cvt_pk_bf16_f32 v{(S0, S0+2, S1)[j]+i}, v{KM(j)+2*i}, v{KM(j)+2*i+1}')
    a(f'buffer_store_dwordx4 {vr(S0,4)}, v{AS}, {sr(SRK,4)}, 0 offen sc1')
    a(f'v_permlane16_swap_b32 v{S1}, v{S1+2}\nv_permlane16_swap_b32 v{S1+1}, v{S1+3}')
    a(f'buffer_store_dwordx4 {vr(S1,4)}, v{AS+1}, {sr(SRK,4)}, 0 offen sc1')
    if not opts.get('early1', 1):
        a(f's_mov_b64 exec, 1\nbuffer_store_dword v31, v31, {sr(SRK,4)}, s{sHN} offen offset:3840 sc1\ns_mov_b64 exec, -1')
    stamp(a, 3)
    if opts.get('ack'):
        a('s_waitcnt vmcnt(0)')
        stamp(a, 0)
    a('s_setprio 0\ns_barrier')
    for t in range(3):
        ph = FR + 12 * t
        o, tail, cv = softmax(t, ph, FR if t == 0 else None)
        if opts.get('skipq') and t == 2:
            o = o[-3:]
        if t == 0:
            a(interleave(qm[1] + qm[2], o, ratio=5))
        else:
            a(o)
        a(tail[:2])
        for i in range(10):
            if i + 2 < 10:
                a(tail[i + 2])
            a(cv[i])
        a(f'v_mov_b32 v{ph+10}, 0\nv_mov_b32 v{ph+11}, 0')
    KA = WP
    a(f'''
    v_mov_b32 v{KA+10}, 0
    v_mov_b32 v{KA+11}, 0
    s_mov_b32 s{sEPS}, {f32(1e-6)}
    ''')
    if opts.get('h2_k1', -1) >= 0:
        a(f'''
        s_cmp_ge_u32 s{S_IDX}, 10
        s_cselect_b32 s{sT1}, 4, 0
        s_lshl_b32 s{sT2}, s{S_XCD}, 3
        s_add_u32 s{sT2}, s{sT2}, s{sT1}
        s_add_u32 s{sT2}, s{sT2}, s{S_WAVE}
        s_mul_i32 s{sH2}, s{sT2}, 10923
        s_and_b32 s{sH2}, s{sH2}, 0xffff0000
        v_and_b32 v22, 15, v{LANE}
        v_lshlrev_b32 v22, 12, v22
        v_bfe_u32 v21, v{LANE}, 4, 1
        v_lshl_add_u32 v22, v21, 7, v22
        ''')
    a(f'''
    s_setprio 2
    s_waitcnt lgkmcnt(0)
    s_barrier
    ''')
    stamp(a, 4)
    for t in range(5):
        a(f'ds_read_b64 {vr(KA+2*t,2)}, v{AO+t}')
    if opts.get('h2_k1', -1) >= 0:
        a(f's_mov_b32 exec_hi, 0\nbuffer_load_dword v21, v22, {sr(SRK,4)}, s{sH2} offen offset:3840 sc1\ns_mov_b32 exec_hi, -1')
    om = [[f'{MF32} {vr(ACC+16*t,16)}, {vr(KA+4*s,4)}, {vr(FR+12*t+4*s,4)}, {vr(ACC+16*t,16) if s else "0"}' for s in range(3)] for t in range(3)]

    def ofin(t):
        b, o, so = ACC + 16 * t, PK + 8 * t, f's{(sO0, sO1, sO2)[t]}'
        mul = [f'v_pk_mul_f32 {vr(b+2*i,2)}, {vr(b+2*i,2)}, {vr(b+12,2)} op_sel_hi:[1,0]' for i in range(6)]
        cv = [f'v_cvt_pk_bf16_f32 v{o+i}, v{b+2*i}, v{b+2*i+1}' for i in range(6)]
        lo = (PK + 4, PK + 12, PK + 6)[t]
        cv[4:] = [f'v_cvt_pk_bf16_f32 v{lo+i}, v{b+8+2*i}, v{b+9+2*i}' for i in range(2)]
        st = [f'buffer_store_dwordx4 {vr(o,4)}, v{AS+2}, {sr(SRO,4)}, {so} offen sc1']
        head = [f'v_add_f32 v{b+12}, s{sEPS}, v{b+12}', f'v_rcp_f32 v{b+12}, v{b+12}']
        if t == 2:
            head += [f'v_cndmask_b32 v{PK+4+i}, v{PK+4+i}, v{PK+12+i}, {sr(sHM,2)}' for i in range(2)]
            return head + mul[4:] + mul[:4] + cv[4:] + cv[:4] + [f'v_permlane16_swap_b32 v{PK+4+i}, v{PK+6+i}' for i in range(2)] + st + \
                [f'buffer_store_dwordx4 {vr(PK+4,4)}, v{AS+3}, {sr(SRO,4)}, 0 offen offset:1024 sc1']
        return head + mul + cv + st
    a(om[0] + om[1][:2] + ['s_nop 5', om[1][2], 's_nop 2'])
    a(interleave(om[2], ofin(0), ratio=5))
    a(ofin(1) + ofin(2))
    if not opts.get('early2', 1):
        a(f's_mov_b64 exec, 1\nbuffer_store_dword v31, v31, {sr(SRK,4)}, s{sHN} offen offset:3968 sc1\ns_mov_b64 exec, -1')
    stamp(a, 5)
    a(f'''
    s_cmp_ge_u32 s{S_IDX}, 20
    s_cbranch_scc1 L_c_done
    {"s_mov_b32 s99, 0" if opts.get('diag') else ""}
    s_mov_b32 s{sCNT}, 0
    s_mov_b64 {sr(sNV,2)}, -1
    L_c_g2:
    s_cmp_ge_u32 s{S_IDX}, 10
    s_cselect_b32 s{sT0}, 10, 0
    s_cselect_b32 s{sT1}, 4, 0
    s_sub_u32 s{sT0}, s{S_IDX}, s{sT0}
    s_lshl_b32 s{sT2}, s{S_XCD}, 3
    s_add_u32 s{sT2}, s{sT2}, s{sT1}
    s_add_u32 s{sT2}, s{sT2}, s{S_WAVE}
    ''')
    tile_base(a, sOB, sT2, sT1)
    a(f'''
    s_mul_i32 s{sH2}, s{sT2}, 10923
    s_and_b32 s{sH2}, s{sH2}, 0xffff0000
    s_cmp_ge_u32 s{sT2}, 30
    s_cselect_b32 s{sT1}, 0x2000, 0
    s_add_u32 s{sH2}, s{sH2}, s{sT1}
    s_mul_i32 s{sT2}, s{sT2}, {32*2560}
    s_lshl_b32 s{sT0}, s{sT0}, 7
    s_add_u32 s{sT2}, s{sT2}, s{sT0}
    v_lshlrev_b32 v2, 4, v{LANE}
    v_and_b32 v14, 31, v{LANE}
    v_lshrrev_b32 v15, 5, v{LANE}
    v_lshrrev_b32 v16, 4, v{LANE}
    v_mul_u32_u24 v16, 1280, v16
    v_and_b32 v17, 15, v{LANE}
    v_lshl_add_u32 v3, v17, 4, v16
    v_and_b32 v19, 13, v17
    v_lshlrev_b32 v19, 12, v19
    v_bfe_u32 v20, v17, 1, 1
    v_lshl_add_u32 v19, v20, 6, v19
    v_mov_b32 v20, 0
    s_mul_i32 s{sT0}, s{S_WAVE}, {32*144}
    v_mul_u32_u24 v16, 144, v14
    v_lshl_add_u32 v16, v15, 5, v16
    v_add_u32 v8, s{sT0}, v16
    v_lshrrev_b32 v16, 3, v{LANE}
    v_and_b32 v17, 7, v{LANE}
    v_lshlrev_b32 v17, 4, v17
    v_mul_u32_u24 v18, 144, v16
    v_add3_u32 v9, v17, v18, s{sT0}
    v_mul_u32_u24 v18, 2560, v16
    v_add3_u32 v10, v17, v18, s{sT2}
    v_add_u32 v11, {8*2560}, v10
    v_add_u32 v12, {16*2560}, v10
    v_add_u32 v13, {24*2560}, v10
    v_bfe_u32 v14, v{LANE}, 2, 2                 ; r
    v_and_b32 v16, 1, v{LANE}
    v_bfe_u32 v17, v{LANE}, 4, 1
    v_lshl_add_u32 v16, v16, 1, v17
    v_bfe_u32 v17, v{LANE}, 1, 1
    v_lshl_add_u32 v16, v16, 1, v17
    v_bfe_u32 v17, v{LANE}, 3, 1
    v_lshl_add_u32 v16, v17, 3, v16
    v_lshlrev_b32 v16, 3, v16
    v_lshl_add_u32 v16, v14, 7, v16
    v_add_u32 v16, {WOB}, v16
    v_lshl_add_u32 v4, v15, 10, v16
    v_xor_b32 v5, 64, v4
    v_mul_u32_u24 v15, {40*128}, v15
    v_add_u32 v6, v15, v16
    v_xor_b32 v7, 64, v6
    ''')
    sG = [sOB] + [72 + g for g in range(1, 8)]
    a([f's_add_u32 s{sG[g]}, s{sOB}, {16384*g}' for g in range(1, 8)])
    AC, WF, OF, NR, NW = (32, 64, 192, 3, 16) if opts.get('o_ahead', 2) == 2 else (32, 64, 176, 4, 14)

    def old(g):
        so = f's{sG[g]}'
        b = OF + 20 * (g % NR)
        return [f'buffer_load_dwordx4 {vr(b+4*h,4)}, v2, {sr(SRO,4)}, {so} offen offset:{1280*h} sc1' for h in range(4)] + \
               [f'buffer_load_dwordx4 {vr(b+16,4)}, v3, {sr(SRO,4)}, {so} offen offset:1024 sc1']

    def ochk(g):
        b = OF + 20 * (g % NR)
        if opts.get('chk1', 1):
            return [f'v_max3_u32 v14, v{b+16}, v{b}, v{b+4}', f'v_max3_u32 v14, v14, v{b+8}, v{b+12}', 'v_cmp_eq_u32 vcc, -1, v14']
        return [f'v_max3_u32 v14, v{b+18}, v{b+19}, 0'] + [f'v_max3_u32 v14, v14, v{b+2*i}, v{b+2*i+1}' for i in range(9)] + ['v_cmp_eq_u32 vcc, -1, v14']
        return [f'v_max_u32 v14, v{b}, v{b+1}'] + [f'v_max3_u32 v14, v14, v{b+2*i}, v{b+2*i+1}' for i in range(1, 10)] + ['v_cmp_eq_u32 vcc, -1, v14']

    def wrd(k):
        g, h = divmod(k, 5)
        b = WF + 8 * (k % NW)
        o = (g % 6) * 80 * 128
        r = []
        if k == 30:
            r += [f'v_add_u32 v{4+i}, {6*80*128}, v{4+i}' for i in range(4)]
        for j in range(2):
            for t in range(2):
                if h < 4:
                    r.append(f'ds_read_b64_tr_b16 {vr(b+4*j+2*t,2)}, v{4+j} offset:{o + (20*h+4*t)*128}')
                else:
                    r.append(f'ds_read_b64_tr_b16 {vr(b+4*j+2*t,2)}, v{6+j} offset:{o + (20*t+16)*128}')
        return r
    AH, NCK = opts.get('o_ahead', 2), opts.get('nck', 8)
    LK = opts.get('g2pre', NW)
    pre = [x for k in range(LK) for x in wrd(k)]
    wq = [(k, x) for k in range(LK, 40) for x in wrd(k)]
    wrate, wacc = len(wq) / 68, 0.0
    SG = WF + 64 if NW == 16 else WF + 32

    def fin(j):
        cv = [f'v_cvt_pk_bf16_f32 v{SG+8*j+i}, v{AC+16*j+2*i}, v{AC+16*j+2*i+1}' for i in range(8)]
        return cv[:4] + [f'ds_write_b128 v8, {vr(SG+8*j,4)} offset:{64*j}'] + cv[4:] + [f'ds_write_b128 v8, {vr(SG+8*j+4,4)} offset:{64*j+16}']
    K1, K2, NP0 = opts.get('h2_k1', -1), opts.get('h2_k', 0), opts.get('np0', 24)
    assert K2 == 0 and (K1 < 0 or opts.get('early1', 1) == 1)
    a(pre[:NP0])
    if K1 >= 0:
        a(f'''
        v_cmp_eq_u32 vcc, -1, v21
        s_mov_b64 {sr(sH,2)}, 0xffff
        s_bcnt1_i32_b32 s{sT0}, vcc_lo
        s_and_b32 s{sT1}, vcc_lo, 0xffff
        s_cselect_b32 s{sT0}, 99, s{sT0}
        s_cmp_gt_u32 s{sT0}, {K1}
        s_cbranch_scc1 L_c_poll
        L_c_go:
        ''')
        b = late.append
        b(';@reset')
    else:
        b = a
        a(f's_mov_b64 {sr(sH,2)}, 0xffff')
    b('L_c_poll:')
    if K2 >= 16:
        b(f's_waitcnt vmcnt({opts.get("o_wait", 0)})')
    else:
        b(f'''
        s_mov_b64 exec, {sr(sH,2)}
        buffer_load_dword v20, v19, {sr(SRK,4)}, s{sH2} offen offset:3968 sc1
        s_mov_b64 exec, -1
        {"s_sleep %d" % opts.get('psleep', 1) if opts.get('psleep', 1) else ""}
        s_add_u32 s{sCNT}, s{sCNT}, 1
        v_cmp_eq_u32 {sr(sH,2)}, -1, v20
        s_bcnt1_i32_b32 s{sT0}, s{sH}
        s_cmp_ge_u32 s{sCNT}, {CAP}
        s_cselect_b32 s{sT0}, 0, s{sT0}
        s_cmp_gt_u32 s{sT0}, {K2}
        s_cbranch_scc1 L_c_poll
        ''')
    if K1 >= 0:
        b('s_branch L_c_go')
    if opts.get('ack') or opts.get('st0'):
        stamp(a, 1)
    a(old(0))
    n1 = NP0 + opts.get('np1', 20)
    a(pre[NP0:n1])
    a(old(1))
    a(pre[n1:])
    if AH == 3:
        a(old(2))
    a(ochk(0))
    for g in range(8):
        if g < NCK:
            a(f's_cbranch_vccnz L_c_fail{g}\nL_c_ok{g}:')
            if g == 0:
                stamp(a, 7 if opts.get('st0') else 99)
            late.append(f';@reset\nL_c_fail{g}:')
            if opts.get('diag'):
                late.append(f's_add_u32 s99, s99, {1 << (4 * g)}')
            for gg in range(g, min(8, g + (1 if opts.get('lite', 1) else AH))):
                late.extend(old(gg))
            late.extend(ochk(g))
            late.append(f'''s_add_u32 s{sCNT}, s{sCNT}, 1
            s_cmp_ge_u32 s{sCNT}, {CAP}
            s_cbranch_scc1 L_c_ok{g}
            s_cbranch_vccnz L_c_fail{g}''')
            if opts.get('lite', 1):
                for gg in range(g + 1, min(8, g + AH)):
                    late.extend(old(gg))
            late.append(f's_branch L_c_ok{g}')
        ld = old(g + AH) if g + AH < 8 else []
        ck = ochk(g + 1) if g + 1 < NCK else []
        hj = [(h, j) for h in range(5) for j in range(2)] if g < 7 else [(h, j) for j in range(2) for h in range(5)]
        for n, (h, j) in enumerate(hj):
            k = 5 * g + h
            d = vr(AC + 16 * j, 16)
            if not (opts.get('skipg2') and g >= 8 - opts['skipg2'] and 0 < n < 9):
                a(f'{MF32} {d}, {vr(WF+8*(k%NW)+4*j,4)}, {vr(OF+20*(g%NR)+4*h,4)}, {d if k else "0"}')
            wacc += wrate
            while wq and wacc >= 1 and wq[0][0] - NW <= k - 1 + j:
                assert wq[0][0] > k + 1
                a(wq.pop(0)[1]); wacc -= 1
            b = OF + 20 * (g % NR) + 16
            if n < 5:
                a(ld[n:n + 1])
            n0 = 0 if g < NCK else 5 if g < 7 else 1
            if n in (n0, n0 + 1):
                a(f'v_permlane16_swap_b32 v{b+n-n0}, v{b+2+n-n0}')
            if len(ck) == 3:
                a(ck[:2] if n == 7 else ck[2:] if n == 8 else [])
            elif ck and n >= 5:
                a(ck[(0, 2, 4, 7, 9)[n-5]:(2, 4, 7, 9, 11)[n-5]])
            if g == 7 and n >= 5:
                a({5: ['s_nop 5'], 6: ['s_nop 3'], 7: fin(0)[:5], 8: fin(0)[5:], 9: []}[n])
    assert not wq
    a(';@age 0')
    stamp(a, 0 if opts.get('st0') else 99)
    bad = 'v_cmp_o_f32' if opts.get('force_redo') else 'v_cmp_u_f32'
    a(f'{bad} vcc, v{AC}, v{AC}\ns_and_b64 vcc, vcc, {sr(sNV,2)}\ns_cbranch_scc1 L_c_scan')
    late.append(f';@reset\nL_c_scan:\ns_waitcnt lgkmcnt(0)\ns_mov_b32 s{sT0}, s{sOB}\nv_mov_b32 v14, 0\nL_c_scan1:')
    late.extend(x.replace(f's{sOB} offen', f's{sT0} offen') for x in old(0))
    late.extend(f'v_max3_u32 v14, v14, v{OF+2*i}, v{OF+2*i+1}' for i in range(10))
    late.append(f'''s_add_u32 s{sT0}, s{sT0}, 16384
    s_cmp_le_u32 s{sT0}, s{sG[7]}
    s_cbranch_scc1 L_c_scan1
    v_cmp_eq_u32 vcc, -1, v14
    s_mov_b64 {sr(sNV,2)}, 0
    s_add_u32 s{sCNT}, s{sCNT}, 1
    s_cmp_ge_u32 s{sCNT}, {CAP}
    s_cbranch_scc1 L_c_g2
    s_cbranch_vccnz L_c_scan
    s_branch L_c_g2''')
    a(fin(1))
    for i in range(4):
        a(f'ds_read_b128 {vr(WF+16+4*i,4)}, v9 offset:{i*8*144}')
    for i in range(4):
        a(f'global_store_dwordx4 v{10+i}, {vr(WF+16+4*i,4)}, {sr(S_OUT,2)} {opts.get("outf", "sc1")}')
    a('L_c_done:')
    stamp(a, 6, final=True)
```

```python
from asmlib import *
import struct


def f32(x):
    return '0x%08x' % struct.unpack('<I', struct.pack('<f', x))[0]


LOG2E = 1.4426950408889634
ROWS = 2080
XBASE = 32 * ROWS
XM = 57344
UBASE = 57 * ROWS
USTR = 4640
BAND = UBASE + 8 * USTR
TSTR = 8192
TQ, TG, TY = 1216, 2432, 3456
G4O = TG - 32 * 4
G8O = TG + 132 * 4 - 50 * 4
assert BAND + 7 * 1024 <= 163840

S_WAVE = 3
S_U, S_LOGA, S_AIM, S_CRE, S_CIM, S_LOGDT, S_DSK, S_OUT, S_DBG, S_WS = 16, 18, 20, 22, 24, 26, 28, 30, 32, 34


def cmul(d, x, y, t=None):
    if t is None:
        t = d
        assert d != x and d != y
    return [f'v_pk_mul_f32 {vr(t,2)}, {vr(x,2)}, {vr(y,2)} op_sel:[0,0] op_sel_hi:[0,1]',
            f'v_pk_fma_f32 {vr(d,2)}, {vr(x,2)}, {vr(y,2)}, {vr(t,2)} op_sel:[1,1,0] op_sel_hi:[1,0,1] neg_lo:[0,1,0]']


def hmul(d, x, y):
    return [f'v_pk_mul_f16 v{d}, v{x}, v{y} op_sel:[0,0] op_sel_hi:[0,1]',
            f'v_pk_fma_f16 v{d}, v{x}, v{y}, v{d} op_sel:[1,1,0] op_sel_hi:[1,0,1] neg_lo:[0,1,0]']


def zipl(*ls):
    out = []
    for i in range(max(map(len, ls))):
        for l in ls:
            if i < len(l):
                out.append(l[i])
    return out


def gen_b(a, S_BIDX, hooks):
    LANE = 1
    PAR = 2
    UD = 16
    sD, sT0, sT1, sT2, sLD, sDS, sUL = 40, 41, 42, 43, 44, 45, 46
    SRDU = 48
    a(f'''
    s_lshl_b32 s{sD}, s{S_BIDX}, 3
    s_add_u32 s{sD}, s{sD}, s{S_WAVE}            ; channel
    s_mul_i32 s{sT0}, s{sD}, 384
    v_mul_u32_u24 v14, 6, v{LANE}
    v_and_b32 v14, -4, v14
    v_add_u32 v14, s{sT0}, v14
    s_lshr_b32 s{sT1}, s{sD}, 1
    s_lshl_b32 s{sT1}, s{sT1}, 2
    s_add_u32 s{sT2}, s{sT1}, {2047*1280}
    ''')
    hooks['before_params'](a)
    a('s_waitcnt lgkmcnt(0)')
    for k, sp in enumerate((S_LOGA, S_AIM, S_CRE, S_CIM)):
        a(f'global_load_dwordx2 {vr(UD+2*k,2)}, v14, {sr(sp,2)}')
    a(f'''
    s_load_dword s{sLD}, {sr(S_LOGDT,2)}, s{sT1}
    s_load_dword s{sDS}, {sr(S_DSK,2)}, s{sT1}
    s_load_dword s{sUL}, {sr(S_U,2)}, s{sT2}
    ''')
    hooks['mid_params'](a)
    a(f'''
    v_mul_u32_u24 v15, {2*1280}, v0
    s_mov_b32 s{SRDU}, s{S_U}
    s_mov_b32 s{SRDU+1}, s{S_U+1}
    s_mov_b32 s{SRDU+2}, {2048*1280}
    s_mov_b32 s{SRDU+3}, 0x20000
    s_lshl_b32 s{sT0}, s{S_BIDX}, 4
    v_subrev_u32 v14, 1280, v15
    ''')
    hooks['after_params'](a)
    sUO = 47
    a(f's_mov_b32 s{sUO}, s{sT0}')
    uld = [f'buffer_load_dwordx4 {vr(UD,4)}, v14, {sr(SRDU,4)}, s{sUO} offen',
           f'buffer_load_dwordx4 {vr(UD+4,4)}, v15, {sr(SRDU,4)}, s{sUO} offen']
    U2 = 248
    uld2 = [f's_add_u32 s{sUO}, s{sUO}, {1023*1280}',
            f'buffer_load_dwordx4 {vr(U2,4)}, v15, {sr(SRDU,4)}, s{sUO} offen',
            f'buffer_load_dwordx4 {vr(U2+4,4)}, v15, {sr(SRDU,4)}, s{sUO} offen offset:1280']
    hooks['after_u'](a)
    bt = [(off + 21 - h, 2 * h + 1) for off, h in ((-20, 1), (-16, 2), (-12, 1), (-8, 2), (-16, 4), (-8, 3))] + [(1, 7), (0, 1)]
    lo_pack = sum(l << (4 * i) for i, (l, w) in enumerate(bt))
    wd_pack = sum(w << (4 * i) for i, (l, w) in enumerate(bt))
    I16, QD = 32, 33
    a(f'''
    v_and_b32 v{I16}, 15, v{LANE}
    v_lshrrev_b32 v{QD}, 4, v{LANE}
    s_lshl_b32 s{sT1}, s{S_WAVE}, 2
    s_lshr_b32 s{sT2}, {hex(wd_pack)}, s{sT1}
    s_and_b32 s{sT2}, s{sT2}, 15
    s_bfm_b32 s{sT2}, s{sT2}, 0                   ; (1<<wid)-1
    s_lshr_b32 s{sT1}, {hex(lo_pack)}, s{sT1}
    s_and_b32 s{sT1}, s{sT1}, 15
    s_lshl_b32 s{sT2}, s{sT2}, s{sT1}
    v_lshlrev_b32 v34, v{I16}, s{sT2}
    v_lshlrev_b32 v35, 3, v{QD}
    v_lshrrev_b32 v34, v35, v34
    s_movk_i32 s{sT1}, 0x3f80
    s_cmp_eq_u32 s{S_WAVE}, 6
    s_cselect_b32 s{sT1}, 0xffff, s{sT1}
    s_mov_b32 s{sT2}, 0x10001
    ''')
    for r in range(4):
        a(f'''v_bfe_u32 v{36+r}, v34, {2*r}, 2
        v_lshl_or_b32 v{36+r}, v{36+r}, 15, v{36+r}
        v_and_b32 v{36+r}, s{sT2}, v{36+r}
        v_mul_u32_u24 v{36+r}, s{sT1}, v{36+r}''')
    a(f'''
    v_lshlrev_b32 v35, 4, v0
    v_add_u32 v35, {BAND}, v35
    s_cmp_eq_u32 s{S_WAVE}, 7
    s_cbranch_scc1 L_b_noband
    ds_write_b128 v35, v[36:39]
    L_b_noband:
    ''')
    AX, AY, AX1 = 34, 35, 132
    sM0Y, sM0X = 52, 53
    slot0 = [0, 1, 2, 3, 4, 5, 6, 7, 8, 8, 10, 11, 11, 11, 14, 15]
    slot1 = [x - 9 for x in (16, 17, 18, 19, 20, 13, 13, 13, 21, 22, 23, 24, 13, 13, 13, 13)]
    pk = lambda l: sum(x << (4 * i) for i, x in enumerate(l))
    a(f'''
    s_lshl_b32 s{sM0Y}, s{S_WAVE}, 8
    s_add_u32 s{sM0X}, s{sM0Y}, {XM}
    v_lshl_add_u32 v37, v{QD}, 4, s{sM0Y}
    v_mov_b32 v39, {ROWS}
    v_mad_u32_u24 v{AY}, v{I16}, v39, v37
    v_add_u32 v37, {XBASE}, v37
    v_lshlrev_b32 v36, 2, v{I16}
    s_mov_b32 s54, {hex(pk(slot0[:8]))}
    s_mov_b32 s55, {hex(pk(slot0[8:]))}
    v_lshrrev_b64 v[40:41], v36, s[54:55]
    v_and_b32 v40, 15, v40
    v_mad_u32_u24 v{AX}, v40, v39, v37
    s_mov_b32 s54, {hex(pk(slot1[:8]))}
    s_mov_b32 s55, {hex(pk(slot1[8:]))}
    v_lshrrev_b64 v[40:41], v36, s[54:55]
    v_and_b32 v40, 15, v40
    v_mad_u32_u24 v{AX1}, v40, v39, v37
    s_mov_b32 m0, s{sM0X}
    v_mov_b32 v36, 0x3c00
    v_mov_b32 v38, 0
    ds_write_addtid_b32 v36 offset:{XBASE-XM}
    ds_write_addtid_b32 v38 offset:{XBASE-XM+13*ROWS}
    ''')
    a(f'''
    s_mul_i32 s{sT1}, s{S_WAVE}, {USTR}
    s_add_u32 s{sT1}, s{sT1}, {UBASE}
    v_mov_b32 v36, 0
    v_mov_b32 v37, 0
    v_lshl_add_u32 v38, v{LANE}, 3, s{sT1}
    ds_write_b64 v38, v[36:37]
    v_cmp_ne_u32 vcc, 0, v{LANE}
    v_mov_b32 v39, {512*8}
    v_cndmask_b32 v39, 0, v39, vcc
    v_add_u32 v38, v38, v39
    s_waitcnt lgkmcnt(0)
    s_bitcmp1_b32 s{sD}, 0
    s_cselect_b32 s{sT1}, 16, 0
    s_lshr_b32 s{sUL}, s{sUL}, s{sT1}
    s_and_b32 s{sUL}, s{sUL}, 0xffff
    s_lshr_b32 s{sLD}, s{sLD}, s{sT1}
    s_lshl_b32 s{sLD}, s{sLD}, 16
    s_lshr_b32 s{sDS}, s{sDS}, s{sT1}
    s_lshl_b32 s{sDS}, s{sDS}, 16
    v_writelane_b32 v36, s{sUL}, 1
    s_mov_b64 exec, 15
    ds_write_b64 v38, v[36:37] offset:512
    s_mov_b64 exec, -1
    ''')
    sDT, sC2, sL2E, sI2P = 54, 56, 58, 59
    l2e_hi = struct.unpack('<f', struct.pack('<f', LOG2E))[0]
    a(f'''
    s_mov_b32 s{sL2E}, {f32(LOG2E)}
    s_mov_b32 s{sI2P}, {f32(0.15915494309189535)}
    v_mov_b32 v36, s{sLD}
    v_mul_f32 v37, s{sL2E}, v36
    v_fma_f32 v38, v36, s{sL2E}, -v37
    v_fmac_f32 v38, {f32(LOG2E - l2e_hi)}, v36
    v_exp_f32 v37, v37
    v_mul_f32 v38, {f32(0.6931471805599453)}, v38
    v_fma_f32 v37, v37, v38, v37
    v_cvt_pk_bf16_f32 v37, v37, v37
    v_lshlrev_b32 v37, 16, v37
    v_add_f32 v38, v37, v37
    v_readfirstlane_b32 s{sDT}, v37
    v_readfirstlane_b32 s{sC2}, v38
    ''')
    ACC = 40
    W = {k: 56 + 2 * i for i, k in enumerate((1, 2, 4, 6, 8, 64, 128, 192, 256, 512, 768, 1024, 1032))}
    H = {k: 136 + i for i, k in enumerate(W)}
    HY = 150
    Y0 = 82
    T0 = 98
    CV = 114
    FR = 176
    hooks['pre_loop'](a)
    a(f'v_and_b32 v36, 1, v{LANE}\nv_lshlrev_b32 v36, 4, v36')
    hooks['wait_params'](a)
    for k in range(4):
        r = UD + 2 * k
        a(f'''v_alignbit_b32 v{r}, v{r+1}, v{r}, v36
        v_lshrrev_b32 v{r+1}, v36, v{r+1}
        v_lshlrev_b32 v{PAR+k}, 16, v{r}
        v_and_b32 v{PAR+4+k}, 0xffff0000, v{r}
        v_lshlrev_b32 v{PAR+8+k}, 16, v{r+1}''')
    sSC = 66
    a(f'''
    v_max3_f32 v36, abs(v{PAR+2}), abs(v{PAR+3}), abs(v{PAR+6})
    v_max3_f32 v36, v36, abs(v{PAR+7}), abs(v{PAR+10})
    v_max_f32 v36, v36, abs(v{PAR+11})
    ''')
    for c in ('row_shr:1', 'row_shr:2', 'row_shr:4', 'row_shr:8', 'row_bcast:15', 'row_bcast:31'):
        a(f'v_max_u32_dpp v36, v36, v36 {c} row_mask:0xf bank_mask:0xf')
    a(f'''
    v_readlane_b32 s{sT1}, v36, 63
    s_lshr_b32 s{sT1}, s{sT1}, 23
    s_max_u32 s{sT1}, s{sT1}, 1
    s_min_u32 s{sT1}, s{sT1}, 253
    s_lshl_b32 s{sT1}, s{sT1}, 23
    s_sub_u32 s{sSC}, {254 << 23}, s{sT1}
    v_mov_b32 v134, s{sC2}
    v_mul_f32 v134, s{sT1}, v134
    s_mov_b32 s{sC2}, s{sSC}
    ''')
    hooks['st'](a, 0)
    late = []
    xs = {1: 1, 2: 2, 3: 3, 4: 4, 5: 5, 6: 6, 7: 7, 256: 8, 258: 10, 260: 11, 262: 14, 264: 15,
          512: 16, 516: 17, 1032: 18, 1288: 19, 1024: 20, 768: 21, 772: 22, 1544: 23, 1800: 24}
    t = lambda i: T0 + 2 * i
    al, be = T0, T0 + 1
    xo = lambda p: XBASE - XM + xs[p] * ROWS
    cvt = lambda d, v, conj=0: [f'v_cvt_pk_f16_f32 v{d}, v{v}, {"-" if conj else ""}v{v+1}']
    basex = lambda p: cvt(H[p], W[p]) + ([('wr', H[p], xo(p))] if p in xs else [])
    leaf = lambda x, y, off: [('leaf', x, y, off)]

    def mf(it):
        m = [f'v_mfma_f32_16x16x32_f16 {vr(ACC+8*rt+4*ct,4)}, {vr(FR+16*rt+4*ks,4)}, {vr(FR+32+16*ct+4*ks,4)}, {vr(ACC+8*rt+4*ct,4) if it or ks else "0"}'
             for rt, ct in ((0, 0), (0, 1), (1, 1), (1, 0)) for ks in range(4)]
        return m
    cvn = 0
    for it in range(3):
        P = PAR + 4 * it
        if hooks['kprio']:
            a(f's_setprio {3 - it}')
        base = f'''
        v_mul_f32 v{P}, s{sL2E}, v{P}
        v_mul_f32 v{be}, s{sDT}, v{P+1}
        v_exp_f32 v{P}, v{P}
        v_mul_f32 v{be}, s{sI2P}, v{be}
        v_cvt_pk_bf16_f32 v{P}, v{P}, v{P}
        v_lshlrev_b32 v{P}, 16, v{P}
        v_fract_f32 v{T0+2}, v{be}
        v_mul_f32 v{al}, s{sDT}, v{P}
        v_mul_f32 v{T0+3}, 0x42800000, v{be}
        v_mul_f32 v{al}, s{sL2E}, v{al}
        v_fract_f32 v{T0+3}, v{T0+3}
        v_mul_f32 v{T0+5}, 0x42800000, v{al}
        v_cos_f32 v{W[1]}, v{T0+2}
        v_sin_f32 v{W[1]+1}, v{T0+2}
        v_exp_f32 v{T0+4}, -v{al}
        v_cos_f32 v{W[64]}, v{T0+3}
        v_sin_f32 v{W[64]+1}, v{T0+3}
        v_exp_f32 v{T0+6}, -v{T0+5}
        v_pk_mul_f32 {vr(W[1],2)}, {vr(W[1],2)}, {vr(T0+4,2)} op_sel_hi:[1,0]
        v_pk_mul_f32 {vr(Y0,2)}, {vr(P+2,2)}, {sr(sC2,2)} op_sel_hi:[1,0]
        v_pk_mul_f32 {vr(W[64],2)}, {vr(W[64],2)}, {vr(T0+6,2)} op_sel_hi:[1,0]
        s_mov_b32 m0, s{sM0X}'''.strip().split('\n')
        st = basex(1)
        for p, x, y in ((2, 1, 1), (4, 2, 2), (8, 4, 4), (6, 4, 2), (128, 64, 64), (256, 128, 128), (512, 256, 256), (768, 512, 256),
                        (1024, 512, 512), (1032, 1024, 8), (192, 128, 64)):
            st += cmul(W[p], W[x], W[y]) + (basex(p) if p not in (128, 192) else [])
        for p, x, y in ((3, 2, 1), (5, 4, 1), (7, 6, 1), (258, 256, 2), (260, 256, 4), (262, 256, 6), (264, 256, 8), (516, 512, 4), (772, 768, 4),
                        (1288, 1032, 256), (1544, 1032, 512), (1800, 1032, 768)):
            st += leaf(H[x], H[y], xo(p))
        st.append(f's_mov_b32 m0, s{sM0Y}')
        for p in (64, 128, 192):
            st += cvt(H[p], W[p], 1)
        for j in range(8):
            y = Y0 + 2 * (j & 1)
            st += cvt(HY + j, y, 1) + [('wr', HY + j, j * ROWS)]
            if j < 7:
                st += cmul(Y0 + 2 - 2 * (j & 1), y, W[8])
            for m in (1, 2, 3):
                st += leaf(HY + j, H[64 * m], (j + 8 * m) * ROWS)
        st = base + st
        if it:
            m = mf(it - 1)
            for k in range(16):
                st.insert(22 + 3 * k, m[k])
        pend = []
        for x in st:
            if isinstance(x, tuple):
                r = x[1]
                if x[0] == 'leaf':
                    r = CV + cvn % 16
                    cvn += 1
                    a(hmul(r, x[1], x[2]))
                pend.append(f'ds_write_addtid_b32 v{r} offset:{x[-1]}')
                if len(pend) == hooks['kgrp']:
                    a(pend); pend = []
            else:
                if x.startswith('s_mov_b32 m0'):
                    a(pend); pend = []
                a(x)
        a(pend)
        for ks in range(4):
            a(f'ds_read_b128 {vr(FR+4*ks,4)}, v{AX} offset:{64*ks}\nds_read_b128 {vr(FR+32+4*ks,4)}, v{AY} offset:{64*ks}')
        a([f'ds_read_b128 {vr(FR+48+4*ks,4)}, v{AY} offset:{16*ROWS + 64*ks}' for ks in range(4)])
        a([f'ds_read_b128 {vr(FR+16+4*ks,4)}, v{AX1} offset:{9*ROWS + 64*ks}' for ks in range(4)])
        if it < 2:
            hooks['side'](a, late.append, it)
    if hooks['kprio']:
        a('s_setprio 0')
    a(mf(2))
    a([f'v_permlane16_swap_b32 v{ACC+8*rt+r}, v{ACC+8*rt+4+r}' for rt in range(2) for r in range(4)])
    a([f'v_pk_mul_f32 {vr(ACC+2*i,2)}, {vr(ACC+2*i,2)}, v[134:135] op_sel_hi:[1,0]' for i in range(7)])
    hooks['after_loop'](a)

    sP0, sP1 = 62, 63
    sTB = 64
    P, Q = 56, 60
    a(f'''
    s_mul_i32 s{sTB}, s{S_WAVE}, {USTR}
    s_add_u32 s{sTB}, s{sTB}, {UBASE + 528}
    v_mov_b32 v36, 0
    v_writelane_b32 v36, s{sDS}, 0
    v_add_f32 v{ACC}, v{ACC}, v36
    v_mov_b32_dpp v37, v{ACC+7} wave_shr:1 row_mask:0xf bank_mask:0xf bound_ctrl:1
    ''')
    for tt in range(4):
        a(f'v_cvt_pk_bf16_f32 v{P+tt}, v{ACC+2*tt+1}, v{ACC+2*tt}')
        a(f'v_cvt_pk_bf16_f32 v{Q+tt}, v{ACC+2*tt}, v{ACC+2*tt-1 if tt else 37}')
    sS, sF = 65, 66
    LO, HI, ZZ = 0x0100, 0x0302, 0x0c0c
    sel = {16: (HI, HI), 17: (LO, HI), 18: (LO, LO), 48: (HI, HI), 49: (HI, HI), 50: (LO, LO), 51: (ZZ, LO)}
    a(f'''
    v_cvt_pk_bf16_f32 v64, v{ACC+9}, v{ACC+8}
    v_cvt_pk_bf16_f32 v65, v{ACC+10}, v{ACC+11}
    v_cvt_pk_bf16_f32 v66, v{ACC+12}, v{ACC+12}
    v_mov_b32 v67, 0x0c0c0c0c
    v_readfirstlane_b32 s{sS}, v64
    v_readfirstlane_b32 s{sF}, v66
    ''')
    for ln, (lo, hi) in sel.items():
        a(f's_mov_b32 s{sT1}, {hex(lo | hi << 16)}\nv_writelane_b32 v67, s{sT1}, {ln}')
    a(f'''
    v_writelane_b32 v64, 0, 0
    v_perm_b32 v67, s{sS}, s{sS}, v67
    v_lshl_add_u32 v68, v{LANE}, 4, s{sTB}
    v_mov_b32 v72, 0
    v_mov_b32 v73, 0
    v_mov_b32 v74, 0
    v_mov_b32 v75, 0
    v_lshl_add_u32 v69, v{LANE}, 2, s{sTB}
    v_bfe_u32 v70, v{LANE}, 4, 1
    v_lshl_add_u32 v70, v70, 10, v69
    v_lshrrev_b32 v71, 5, v{LANE}
    v_mov_b32 v76, {TQ - 128}
    v_mad_u32_u24 v70, v71, v76, v70
    v_lshl_add_u32 v76, v71, 5, v{LANE}             ; 64*half + j
    v_and_b32 v77, 1, v{LANE}
    v_lshlrev_b32 v76, 1, v76
    v_lshlrev_b32 v77, 2, v77
    v_sub_u32 v76, v76, v77
    s_add_u32 s{sT1}, s{sTB}, {G8O + 65*4 + 2}
    v_add_u32 v76, s{sT1}, v76
    ''')
    if hooks['ubar'] == 0:
        a(uld)
    a(f'''
    ds_write_b128 v68, v[72:75] offset:{TG}
    ds_write_b128 v68, {vr(P,4)} offset:64
    ds_write_b128 v68, {vr(Q,4)} offset:{TQ+64}
    ds_write_b32 v70, v67
    ds_write_b32 v69, v64 offset:{G4O + 64*4}
    ds_write_b16 v76, v65
    ds_write_b16_d16_hi v76, v65 offset:64
    ''')
    AK, AK2, AU, AG4, AG8, AB = 2, 3, 4, 5, 6, 7
    a(f'''
    v_add_u32 v8, 5, v{I16}
    v_lshrrev_b32 v8, 1, v8                          ; (i+5)>>1
    v_lshlrev_b32 v9, 2, v{QD}
    v_sub_u32 v8, v8, v9
    v_add_u32 v8, 13, v8                             ; z0-3+16
    v_and_b32 v10, 1, v{I16}
    v_mul_u32_u24 v10, {TQ}, v10
    v_lshl_add_u32 v{AK}, v8, 2, v10
    v_add_u32 v{AK}, s{sTB}, v{AK}
    v_add_u32 v{AK2}, 1024, v{AK}
    s_mul_i32 s{sT1}, s{S_WAVE}, {USTR}
    s_add_u32 s{sT1}, s{sT1}, {UBASE}
    v_lshl_add_u32 v8, v{I16}, 1, v{QD}
    v_lshl_add_u32 v{AU}, v8, 4, s{sT1}
    v_sub_u32 v8, v{I16}, v9
    s_add_u32 s{sT1}, s{sTB}, {G4O + 4*(64 - 4 + 2 - 3)}
    v_lshl_add_u32 v{AG4}, v8, 3, s{sT1}
    s_add_u32 s{sT1}, s{sTB}, {G8O + 4*(64 + 1 - 3)}
    v_lshl_add_u32 v{AG8}, v8, 2, s{sT1}
    v_lshlrev_b32 v{AB}, 4, v{LANE}
    v_add_u32 v{AB}, {BAND}, v{AB}
    ''')
    a(f'''
    s_lshl_b32 s{sT1}, s{S_WAVE}, 13
    v_lshl_add_u32 v68, v{LANE}, 3, s{sT1}
    v_lshlrev_b32 v69, 3, v0
    v_lshl_add_u32 v70, v{I16}, 2, v{QD}
    s_lshl_b32 s{sT1}, s{S_WAVE}, 6
    v_add_u32 v70, s{sT1}, v70
    v_mul_u32_u24 v70, {4*2560}, v70
    s_lshl_b32 s{sT1}, s{S_BIDX}, 4
    s_add_u32 s{sT1}, s{sT1}, {1280 + 2560}
    v_add_u32 v70, s{sT1}, v70
    v_add_u32 v71, {2*2560}, v70
    ''')
    YA = 8
    VV = 40
    AP = 56
    F32 = YA
    pool = list(range(72, 248, 4))

    def r2(r, ad, o):
        return [f'ds_read2_b32 {vr(r,2)}, v{ad} offset0:{o+3} offset1:{o+2}', f'ds_read2_b32 {vr(r+2,2)}, v{ad} offset0:{o+1} offset1:{o}']

    def load(key, r):
        k = key[0]
        if k == 'K':
            return r2(r, AK, 16 * key[1]) if key[1] < 16 else r2(r, AK2, 0)
        if k in ('U', 'U2'):
            return [f'ds_read_b128 {vr(r,4)}, v{AU} offset:{64*(key[1]+8)}']
        if k == 'UB':
            return [f'ds_read_b128 {vr(r,4)}, v{AU} offset:{64*(8*key[1]+8)-32}']
        if k == 'G4':
            return r2(r, AG4, 32 * (key[1] - 2) + 4 * (1 - key[2]))
        if k == 'G8':
            return r2(r, AG8, 16 * (key[1] - 4))
        if k == 'B':
            return [f'ds_read_b128 {vr(r,4)}, v{AB} offset:{1024*key[1]}']
    seq = []
    started = set()

    def mm(R, ka, kb):
        c = vr(YA + 4 * R, 4) if R in started else '0'
        started.add(R)
        A = '{0}' if isinstance(ka, tuple) else vr(ka, 4)
        keys = ([ka] if isinstance(ka, tuple) else []) + [kb]
        B = '{%d}' % (len(keys) - 1)
        return (f'v_mfma_f32_16x16x32_bf16 {vr(YA+4*R,4)}, {A}, {B}, {c}', keys)
    stages = hooks['stages']

    def utr(r, off):
        return [f'v_perm_b32 v{VV+c}, v{r+4+(c>>1)}, v{r+(c>>1)}, s{sP1 if c & 1 else sP0}' for c in range(8)] + \
               [f'ds_write_b32 v2, v{VV+c} offset:{c*USTR + off}' for c in range(8)]

    def yout(R):
        return [(f'v_cvt_pk_bf16_f32 v{YA+4*R}, v{YA+4*R}, v{YA+4*R+1}', []), (f'v_cvt_pk_bf16_f32 v{YA+4*R+1}, v{YA+4*R+2}, v{YA+4*R+3}', []),
                (f'ds_write_b64 v68, {vr(YA+4*R,2)} offset:{TY+512*R}', [])]
    for R in range(8):
        dense = []
        for c in (7, 6, 5, 4, 3, 2, 1, 0):
            for ka in ((32, 16, 8, 0) if c == 0 else (c + 8, c)):
                m = 8 * R - ka
                if m >= -8:
                    dense.append(mm(R, ('K', ka) if ka < 32 else F32, ('U' if ka < 32 or R >= hooks['u2'] else 'U2', m)))
        b2, b3, cv2, cv3, sg = [], [], [], [], []
        n = R
        if n < 6:
            b2 = [(f'v_mfma_f32_16x16x32_bf16 {vr(VV+4*e,4)}, {{0}}, {{1}}, 0', [('UB', n), ('B', e, n // hooks['bres'])]) for e in range(4)]
            for hh in range(2):
                for m in range(4):
                    r = 2 * hh + (m >> 1); e = 2 * (m & 1)
                    cv2.append((f'v_cvt_pk_bf16_f32 v{AP+4*hh+m}, v{VV+4*e+r}, v{VV+4*(e+1)+r}', []))
            for dl in (2, 3, 4):
                for hh in range(2):
                    if n + dl < 8:
                        sg.append(mm(n + dl, AP + 4 * hh, ('G4', dl, hh)))
        if n < 4:
            b3 = [(f'v_mfma_f32_16x16x32_bf16 {vr(VV+4*e,4)}, {{0}}, {{1}}, 0', [('UB', n), ('B', 4 + e, n // hooks['bres'])]) for e in range(2)]
            cv3 = [(f'v_cvt_pk_bf16_f32 v{AP+8+m}, v{VV+m}, v{VV+4+m}', []) for m in range(4)]
        s3 = [mm(n + dl, AP + 8, ('G8', dl)) for dl in range(4, 8) if n < 4 and n + dl < 8]
        if R == 2:
            cv3 = cv3 + [(f'v_and_b32 v{F32+m}, s{sF}, {{0:{m}}}', [('B', 6, 0)]) for m in range(4)]
        k0 = 4 if len(dense) > 12 else 3
        seq += b2 + interleave(dense, cv2, ratio=1 if len(dense) > 12 else 2, start=k0) + b3
        seq += interleave(sg + s3[:0], cv3, ratio=2, start=3 if cv3 else 0) if sg else cv3
        seq += interleave(s3, yout(R), ratio=1) if s3 else yout(R)
        if R == stages[0]:
            assert R <= 2
            seq += [(x, []) for x in utr(U2, 2048)]
        if R in stages:
            lo = ([-1] + [x for x in stages if x < R])[-1] + 1
            seq.append((f's_waitcnt lgkmcnt(0)\ns_barrier\ns_sub_u32 s{sT1}, s{S_WAVE}, {lo}\ns_cmp_le_u32 s{sT1}, {R-lo}\ns_cbranch_scc1 L_b_out{R}\nL_b_back{R}:', []))
            late.append(f';@reset\nL_b_out{R}:')
            for c in range(8):
                late.append(f'ds_read_b64 {vr(VV+2*c,2)}, v69 offset:{TY + c*TSTR}')
            for r in range(4):
                o = AP + 4 * (r % 3)
                for d in range(4):
                    late.append(f'v_perm_b32 v{o+d}, v{VV+4*d+2+(r>>1)}, v{VV+4*d+(r>>1)}, s{sP1 if r & 1 else sP0}')
                late.append(f'global_store_dwordx4 v{70+(r>>1)}, {vr(o,4)}, {sr(S_OUT,2)} offset:{-2560 if not r & 1 else 0} {hooks["bf"]}')
            if R in hooks['wbst']:
                late.append(f's_cmp_lg_u32 s5, 31\ns_cbranch_scc1 L_b_back{R}\ns_cmp_lg_u32 s{S_WAVE}, {R}\ns_cbranch_scc1 L_b_back{R}\nbuffer_wbl2 sc1')
            late.append(f's_branch L_b_back{R}')
    first, last = {}, {}
    mi, cnt = [], 0
    for txt, keys in seq:
        mi.append(cnt)
        cnt += txt.startswith('v_mfma')
    for i, (_, keys) in enumerate(seq):
        for k in keys:
            first.setdefault(k, i); last[k] = i
    order = sorted(first, key=lambda k: first[k])
    reg, nxt, pend = {}, 0, []
    for k in [k for k in order if k[0] in ('K', 'G4', 'G8') or (k[0] == 'B' and k[1] < 6 and k[2] == 0)]:
        order.remove(k)
        reg[k] = pool.pop(0)
        a(load(k, reg[k]))
    if hooks['ubar'] == 1:
        a(uld)
    a('s_waitcnt lgkmcnt(0)\ns_barrier')
    if hooks['ubar'] == 2:
        a(uld)
    a(f'''
    s_mov_b32 s{sP0}, 0x05040100
    s_mov_b32 s{sP1}, 0x07060302
    v_lshlrev_b32 v2, 2, v0
    v_add_u32 v2, {UBASE + 65*8}, v2
    ''')
    if hooks['u2at'] == 0:
        a(uld2)
    a(utr(UD, 0))
    if hooks['u2at'] == 1:
        a(uld2)
    a('s_waitcnt lgkmcnt(0)\ns_barrier')
    if hooks['u2at'] == 2:
        a(uld2)
    hooks['after_barrier'](a)
    LOOK = hooks['look']

    class FragFmt:
        def __init__(self, r): self.r = r
        def __format__(self, spec): return vr(self.r + int(spec)) if spec else vr(self.r, 4)
    ends = [mi[i] for i, (t, _) in enumerate(seq) if 's_barrier' in t]
    prio = {}
    for lo, hi in zip([0] + ends, ends):
        for q, fr in enumerate((0, 0.45, 0.75, 0.92)):
            prio[lo + int(fr * (hi - lo))] = 3 - q
    for i, (txt, keys) in enumerate(seq):
        look = lambda k: LOOK * (2 if k[0] in 'KG4G8' else 1)
        while nxt < len(order) and mi[first[order[nxt]]] <= mi[i] + LOOK and pool:
            k = order[nxt]; nxt += 1
            reg[k] = pool.pop(0)
            pend += [(mi[first[k]], x) for x in load(k, reg[k])]
        if txt.startswith('v_mfma'):
            if mi[i] in prio and hooks['prio']:
                a(f's_setprio {prio[mi[i]]}')
            cntr = 0 if i and seq[i - 1][0].startswith('v_mfma') else 1
            while pend and (pend[0][0] <= mi[i] + 3 or cntr < 2):
                x = pend.pop(0)[1]; cntr += 1
                if hooks['cx'] != 'nord':
                    a(x)
        assert all(k in reg for k in keys) and all(p[0] > mi[i] or not keys for p in pend), (i, txt)
        if 'L_b_out7' in txt:
            hooks['st'](a, 4)
        if hooks['cx'] == 'nord' and 0:
            pass
        a(txt.format(*[FragFmt(reg[k]) for k in keys]))
        for k in sorted(set(keys)):
            if last[k] == i:
                pool.append(reg[k])
        if txt.startswith(f'v_perm_b32 v{VV+7}'):
            pool += [U2, U2 + 4]
        if txt.startswith('ds_write_b64 v68') and f'offset:{TY}' not in txt:
            pool.append(int(txt.split('v[')[1].split(':')[0]))
    a(';@age 0')
    hooks['st'](a, 5)
    hooks['end'](a)
    a('s_endpgm')
    a(late)
```

```python
import sys, json
from asmlib import *
import gen_b, gen_a
NAME = 'concat_heads__linear_kernel_hedgehog__ssm_conv_s4d__prompt'
HEAD = open('cdna_kernels/%s.s.ref' % NAME).read().split('; @launch')[0]
STAMP_OFF = 64 << 20

def build(opts=None):
    opts = opts or {}
    a = Asm()
    diag = opts.get('diag')
    amp = opts.get('amp')
    role = ['L']
    def stamp(a, i, final=False):
        if i == 99: return
        if amp:
            r = role[0]
            if final: role[0] = {'L': 'C', 'C': 'B', 'B': ''}[r]
            if r != amp[0]: return
            if i == amp[1]: a('s_memrealtime s[80:81]')
            if final:
                if opts.get('rel'):
                    if amp[1] == 8: a('s_mov_b32 s80, s96')
                    a('''s_waitcnt vmcnt(0) lgkmcnt(0)
                    L_amp1:
                    s_sleep 2
                    s_memrealtime s[82:83]
                    s_waitcnt lgkmcnt(0)
                    s_sub_u32 s82, s82, s96
                    s_cmp_lt_u32 s82, 5000
                    s_cbranch_scc1 L_amp1
                    v_mov_b32 v2, 0
                    global_load_dword v3, v2, s[32:33] offset:192 sc1
                    s_waitcnt vmcnt(0)
                    v_readfirstlane_b32 s96, v3
                    s_sub_u32 s96, 0, s96''')
                a(f'''s_waitcnt vmcnt(0) lgkmcnt(0)
                s_sub_u32 s80, s80, s96
                s_mul_i32 s80, s80, {amp[2]}
                s_add_u32 s80, s80, {opts.get('spin', 10000)}''')
                if opts.get('wbl2'):
                    a('''L_amp0:
                    s_sleep 2
                    s_memrealtime s[82:83]
                    s_waitcnt lgkmcnt(0)
                    s_sub_u32 s82, s82, s96
                    s_cmp_lt_u32 s82, 5000
                    s_cbranch_scc1 L_amp0
                    buffer_wbl2 sc1
                    s_waitcnt vmcnt(0)''')
                a('''L_amp:
                s_sleep 2
                s_memrealtime s[82:83]
                s_waitcnt lgkmcnt(0)
                s_sub_u32 s82, s82, s96
                s_cmp_lt_u32 s82, s80
                s_cbranch_scc1 L_amp''')
            return
        if not diag: return
        a(f'{"s_memtime" if opts.get("cyc") else "s_memrealtime"} s[{80+2*i}:{81+2*i}]')
        if final:
            a('s_waitcnt lgkmcnt(0)\nv_mov_b32 v2, 0')
            if opts.get('chunks') and role[0] == 'C': a('v_mov_b32 v2, v255')
            role[0] = {'L': 'C', 'C': 'B'}.get(role[0], 'x')
            for k in range(9):
                a(f'v_writelane_b32 v2, s{80+2*k}, {k}')
            a('s_getreg_b32 s80, hwreg(HW_REG_HW_ID)\ns_getreg_b32 s81, hwreg(HW_REG_XCC_ID)\nv_writelane_b32 v2, s80, 30\nv_writelane_b32 v2, s81, 31\nv_writelane_b32 v2, s99, 29')
            a(f's_lshl_b32 s80, s2, 3\ns_add_u32 s80, s80, s3\ns_lshl_b32 s80, s80, 8\ns_add_u32 s80, s80, {STAMP_OFF}\nv_lshl_add_u32 v3, v1, 2, s80\nglobal_store_dword v3, v2, s[34:35]')
    if diag or amp: a('s_memtime s[96:97]' if opts.get('cyc') else 's_memrealtime s[96:97]')
    a('''
    s_load_dwordx8 s[8:15], s[0:1], 0''')
    if not opts.get('ksplit'):
        a('s_load_dwordx16 s[16:31], s[0:1], 32\ns_load_dwordx4 s[32:35], s[0:1], 96')
    a('''
    s_cmp_ge_u32 s2, 256
    s_cbranch_scc1 L_end
    v_lshrrev_b32 v2, 6, v0
    v_and_b32 v1, 63, v0
    s_and_b32 s4, s2, 7
    v_readfirstlane_b32 s3, v2
    s_lshr_b32 s5, s2, 3
    ''')
    a('s_add_u32 s101, s4, 1\ns_bfe_u32 s101, s101, 0x10001\ns_cselect_b32 s100, 20, 24\ns_cselect_b32 s98, 0, 20')
    if opts.get('cpf', 1):
        a(f'''
        s_getpc_b64 s[6:7]
        L_pc:
        s_lshl_b32 s36, s5, 10
        v_lshl_add_u32 v2, v2, 7, s36
        v_lshl_add_u32 v2, v1, 15, v2
        v_min_u32 v2, L_end-L_pc, v2
        s_mov_b64 exec, 3
        global_load_dword v31, v2, s[6:7] ;touch
        s_mov_b64 exec, -1
        ''')
    if opts.get('probe'):
        ptr, n = opts['probe']
        a(f'''s_waitcnt lgkmcnt(0)
        s_cmp_lg_u32 s3, 0
        s_cbranch_scc1 L_probe_done
        s_mul_i32 s36, s2, {n*128}
        v_mov_b32 v2, s36
        s_mov_b32 s37, {n}
        L_probe:
        global_load_dword v3, v2, s[{ptr}:{ptr+1}]
        s_waitcnt vmcnt(0)
        v_add_u32 v2, 128, v2
        s_sub_u32 s37, s37, 1
        s_cmp_lg_u32 s37, 0
        s_cbranch_scc1 L_probe
        L_probe_done:
        s_barrier''')
    if opts.get('rel'):
        a('''s_lshr_b32 s36, s2, 3
        s_or_b32 s36, s36, s3
        s_cbranch_scc1 L_norel
        s_waitcnt lgkmcnt(0)
        s_sub_u32 s36, 0, s96
        v_mov_b32 v2, 0
        v_mov_b32 v3, s36
        s_mov_b64 exec, 1
        global_atomic_umax v2, v3, s[32:33] offset:192
        s_mov_b64 exec, -1
        L_norel:''')
    top, a = a, Asm()
    a(';@reset\nL_A:')
    if opts.get('noA'):
        a('s_waitcnt lgkmcnt(0)')
        for k in range(8): stamp(a, k)
        stamp(a, 6, final=True)
        role[0] = 'L'
        a('s_endpgm')
    gen_a.gen_a(a, opts, stamp)
    part_a, a = a, Asm()
    if opts.get('ksplit'):
        a('s_load_dwordx16 s[16:31], s[0:1], 32\ns_load_dwordx4 s[32:35], s[0:1], 96')
    a('''
    s_sub_u32 s5, s5, s100
    s_and_b32 s7, s4, 3
    s_mul_i32 s6, s7, 12
    s_sub_u32 s6, s6, 4
    s_max_i32 s6, s6, 0
    s_lshr_b32 s7, s4, 2
    s_mul_i32 s7, s7, 40
    s_add_u32 s7, s7, s6
    s_add_u32 s6, s7, s5
    ''')
    nop = lambda a: None
    PF = opts.get('pf', 1)
    NALL = opts.get('nall', 1)
    noclear = opts.get('noclear')
    SX, SW, sOW, sA, sB, sUT = 72, 76, 39, 36, 37, 61
    BAT = opts.get('bat', [4, 5, 0])
    NI1 = 5 * BAT[0]
    sOX, sDX, sDW, sMX, sMW = 38, 67, 61, 68, 70
    def pf(a, n, lbl):
        a(f'''s_add_u32 s{sB}, s{sOX}, {128*n}
        {lbl}:
        s_mov_b64 exec, s[{sMX}:{sMX+1}]
        s_add_u32 s{sA}, s{sOX}, s{sDX}
        buffer_load_dword v31, v160, s[{SX}:{SX+3}], s{sOX} offen ;touch
        buffer_load_dword v31, v160, s[{SX}:{SX+3}], s{sA} offen ;touch
        s_add_u32 s{sA}, s{sA}, s{sDX}
        s_mul_i32 s{sOW}, s{sOX}, {64*3840//128}
        buffer_load_dword v31, v160, s[{SX}:{SX+3}], s{sA} offen ;touch
        s_mov_b64 exec, s[{sMW}:{sMW+1}]
        s_add_u32 s{sA}, s{sOW}, s{sDW}
        buffer_load_dword v31, v162, s[{SW}:{SW+3}], s{sOW} offen ;touch
        buffer_load_dword v31, v162, s[{SW}:{SW+3}], s{sA} offen ;touch
        s_addk_i32 s{sOX}, 128
        s_cmp_lt_u32 s{sOX}, s{sB}
        s_cbranch_scc1 {lbl}
        s_mov_b64 exec, -1''')
    C1 = opts.get('clr1', 1)
    def before_params(a):
        a(f'''s_cmp_lg_u32 s101, 0
        s_cselect_b32 s{sDX}, 27, 46
        s_cselect_b32 s{sDW}, {'32, 48' if opts.get('sets') else '24, 36'}
        s_cselect_b32 s{sB}, 0, 960
        s_bfm_b64 s[{sMX}:{sMX+1}], s{sDX}, 0
        s_bfm_b64 s[{sMW}:{sMW+1}], s{sDW}, 0
        s_mul_i32 s{sA}, s5, s{sDX}
        s_mul_i32 s{sA}, s{sA}, 3
        s_add_u32 s{sA}, s{sA}, s{sB}
        v_add_u32 v160, s{sA}, v1
        v_mul_u32_u24 v160, 1280, v160
        s_mul_i32 s{sDX}, s{sDX}, 1280
        ''')
        if opts.get('sets'):
            gen_a.set_bases(a, opts, sA, sB)
            a(f'''s_mul_i32 s{sDW}, s{sDW}, 320
            s_sub_u32 s{sB}, s{sB}, s{sA}
            v_bfe_u32 v161, v1, 1, 1
            v_mul_i32_i24 v161, s{sB}, v161
            s_mul_i32 s{sB}, s5, s{sDW}
            s_lshl1_add_u32 s{sA}, s{sB}, s{sA}
            v_and_b32 v162, 1, v1
            v_lshl_add_u32 v162, v162, 7, s{sA}
            v_add_u32 v162, v161, v162
            v_lshrrev_b32 v161, 2, v1
            v_mul_u32_u24 v161, 1280, v161
            v_add_u32 v162, v161, v162''')
        else:
            a(f'''
        s_mul_i32 s{sDW}, s{sDW}, 1280
        s_mul_hi_u32 s{sDW}, s{sDW}, 0x55555556
        v_mul_u32_u24 v161, 21846, v1
        v_lshrrev_b32 v161, 16, v161
        v_mul_u32_u24 v161, 896, v161
        s_lshr_b32 s{sB}, s4, 1
        s_mul_i32 s{sB}, s{sB}, 320
        s_and_b32 s{sB}, s{sB}, 0xff80
        s_mul_i32 s{sA}, s5, s{sDW}
        s_lshl1_add_u32 s{sB}, s{sA}, s{sB}
        v_lshl_add_u32 v162, v1, 7, s{sB}
        v_add_u32 v162, v161, v162
        ''')
        a(f'''
        s_movk_i32 s{sOX}, {256 if opts.get('t2') else 128}
        s_mul_i32 s{sA}, {"s6, 9216" if C1 else "s40, 1152"}
        s_add_u32 s{sA}, s{sA}, {gen_a.KVOFF}
        v_lshl_add_u32 v163, v1, 4, s{sA}
        v_mov_b32 v164, -1
        v_mov_b32 v165, -1
        v_pk_mov_b32 v[166:167], v[164:165], v[164:165]''')
    def mid_params(a):
        if C1:
            a(f's_cmp_lg_u32 s3, 7\ns_cbranch_scc1 L_b_noclr\ns_mov_b32 s57, {gen_a.KVOFF - 4096}\ns_load_dword s57, s[34:35], s57')
            for i in range(9):
                if i in (4, 8): a('v_add_u32 v163, 4096, v163')
                a(f'global_store_dwordx4 v163, v[164:167], s[34:35] offset:{1024*(i%4)} sc1')
            a('L_b_noclr:')
        else:
            a('''global_store_dwordx4 v163, v[164:167], s[34:35] sc1
            s_mov_b64 exec, 0xff
            global_store_dwordx4 v163, v[164:167], s[34:35] offset:1024 sc1
            s_mov_b64 exec, -1''')
        gen_a.srd(a, SX, 8, 2048 * 1280)
        gen_a.srd(a, SW, 10, 640 * 3840)
        a('s_barrier\ns_cmp_lg_u32 s3, 0\ns_cbranch_scc1 L_b_nopf')
        pf(a, BAT[0], 'L_b_pf0')
        a('s_branch L_b_nopf\n;@split\nL_b_nopf:')
    after_params = nop
    def wait_params(a):
        a(f'''s_waitcnt vmcnt({NI1}) lgkmcnt(0)
        s_cmp_eq_u32 s3, 0
        s_cbranch_scc1 L_b_w0
        s_waitcnt vmcnt(0)
        L_b_w0:
        {"" if C1 else "s_barrier"}
        s_cmp_lg_u32 s3, 7
        s_cbranch_scc1 L_b_w1
        ;@manual
        s_mul_i32 s{sA}, s6, 9216
        s_add_u32 s{sA}, s{sA}, {gen_a.KVOFF}
        s_mov_b32 s{sB}, 0
        s_mov_b32 s{sOW}, 0
        s_load_dword s{sOW}, s[34:35], s{sA} glc
        L_b_r0:
        s_add_u32 s{sB}, s{sB}, 1
        s_lshr_b32 s57, s{sB}, 12
        s_or_b32 s57, s57, s{sOW}
        s_cbranch_scc0 L_b_r0
        s_waitcnt lgkmcnt(0)
        s_add_u32 s{sA}, s{sA}, 8192
        s_mov_b32 s{sOX}, 0
        s_mov_b32 s{sOW}, 0
        s_load_dword s{sOW}, s[34:35], s{sA} glc
        L_b_r1:
        s_add_u32 s{sOX}, s{sOX}, 1
        s_lshr_b32 s57, s{sOX}, 12
        s_or_b32 s57, s57, s{sOW}
        s_cbranch_scc0 L_b_r1
        s_waitcnt lgkmcnt(0)
        ;@auto
        s_sub_u32 s{sB}, s{sB}, s{sOX}
        s_max_i32 s{sB}, s{sB}, {-opts.get('vclamp', 8)}
        s_min_i32 s{sB}, s{sB}, {opts.get('vclamp', 8)}
        s_lshr_b32 s{sA}, s{sA}, 11
        s_xor_b32 s{sA}, s{sA}, s4
        s_bitcmp1_b32 s{sA}, 2
        s_cselect_b32 s{sA}, 1, -1
        s_mul_i32 s{sA}, s{sA}, s{sB}
        s_lshl_b32 s{sA}, s{sA}, 16
        s_add_u32 s{sA}, s{sA}, 1
        v_mov_b32 v162, 0
        v_mov_b32 v163, s{sA}
        s_mov_b64 exec, 1
        global_atomic_add v162, v163, s[32:33]
        s_mov_b64 exec, -1
        L_b_w1:
        ;@reset''')
    def side(a0, a, it):
        a0(f's_cmp_eq_u32 s3, 0\ns_cbranch_scc1 L_b_side{it}\nL_b_sb{it}:')
        a(f';@reset\nL_b_side{it}:')
        if it == 0:
            pf(a, BAT[1], 'L_b_pf1')
            a('s_branch L_b_sb0')
            return
        if BAT[2]:
            pf(a, BAT[2], 'L_b_pf2')
        a(f'''s_cmp_eq_u32 s101, 0
        s_cbranch_scc1 L_b_nowo
        s_lshr_b32 s{sA}, s4, 1
        s_mul_i32 s{sA}, s{sA}, 12
        s_add_u32 s{sA}, s{sA}, s5
        s_mul_i32 s{sA}, s{sA}, 135
        v_add_u32 v163, s{sA}, v1
        v_min_u32 v163, {6399 - 90}, v163
        v_lshlrev_b32 v163, 7, v163
        s_mov_b32 exec_hi, 0x1fff
        global_load_dword v31, v163, s[14:15] ;touch
        v_add_u32 v163, {45*128}, v163
        global_load_dword v31, v163, s[14:15] ;touch
        v_add_u32 v163, {45*128}, v163
        global_load_dword v31, v163, s[14:15] ;touch
        s_mov_b64 exec, -1
        L_b_nowo:
        v_lshrrev_b32 v161, s101, v1
        v_mul_u32_u24 v161, 1280, v161
        v_and_b32 v160, s101, v1
        v_lshl_add_u32 v160, v160, 7, v161
        s_cmp_lg_u32 s101, 0
        s_cselect_b32 s{sDX}, 29, 43
        s_lshl_b32 s{sA}, s{sDX}, s101
        s_bfm_b64 exec, s{sA}, 0
        s_mul_i32 s{sDX}, s{sDX}, 1280
        s_mul_i32 s{sA}, s5, s{sDX}
        s_mul_i32 s{sA}, s{sA}, 6
        s_lshl_b32 s{sB}, s7, 4
        s_and_b32 s{sB}, s{sB}, 0xff80
        s_add_u32 s{sA}, s{sA}, s{sB}''')
        for i in range(6):
            a(f'buffer_load_dword v31, v160, s[48:51], s{sA} offen ;touch\ns_add_u32 s{sA}, s{sA}, s{sDX}')
        a('s_mov_b64 exec, -1\ns_branch L_b_sb1')
    def after_loop(a):
        stamp(a, 1)
    slot = lambda a, k: None
    def end(a):
        if opts.get('bwb'):
            a(f's_cmp_lg_u32 s3, 7\ns_cbranch_scc1 L_b_nowb\ns_cmp_lt_u32 s5, {opts["bwb"]}\ns_cbranch_scc1 L_b_nowb\ns_waitcnt vmcnt(0)\nbuffer_wbl2 sc1\nL_b_nowb:')
        stamp(a, 3)
        if diag: a('s_waitcnt vmcnt(0)')
        stamp(a, 6, final=True)
    def pre_loop(a):
        if opts.get('pfonly'):
            wait_params(a)
            if opts['pfonly'] == 1:
                a('s_cmp_lg_u32 s3, 0\ns_cbranch_scc1 L_z')
                pf(a, 5, 'L_zz')
            a('L_z:')
            for k in (0, 1, 2, 3, 4, 5): stamp(a, k)
            stamp(a, 6, final=True)
            a('s_endpgm')
            hooks['wait_params'] = nop
    hooks = dict(pre_loop=pre_loop, mid_params=mid_params, before_params=before_params, after_params=after_params, after_u=nop, st=stamp, wait_params=wait_params, slot=slot, side=side,
                 after_loop=after_loop, before_barrier=nop, after_barrier=lambda a: stamp(a, 2), end=end)
    hooks['nou'] = opts.get('nou')
    hooks.update(stages=opts.get('stages', [2, 4, 6, 7]), look=opts.get('look', 6), age=opts.get('age', 5), ubar=opts.get('ubar', 2), prio=opts.get('cprio', 1), cx=opts.get('cx'), u2at=opts.get('u2at', 2), kprio=opts.get('kprio', 1), kgrp=opts.get('kgrp', 4), wbst=opts.get('wbst', []), bf=opts.get('bf', ''), bres=opts.get('bres', 8), u2=opts.get('u2', 6))
    gen_b.gen_b(a, 6, hooks)
    k = a.lines.index(';@split')
    if opts.get('bhead', 0):
        top('s_cmp_lt_u32 s5, s100\ns_cbranch_scc1 L_A')
        top(a.lines[:k] + part_a.lines + [';@reset'] + a.lines[k:])
    else:
        top('s_cmp_ge_u32 s5, s100\ns_cbranch_scc1 L_B')
        top(part_a.lines + [';@reset', 'L_B:'] + a.lines)
    a = top
    a('L_end:')
    body = a.finish()
    if opts.get('align', 1):
        body = align8(body)
    txt = HEAD + '; @launch grid=(256,1,1) block=(512,1,1) lds=163840\n'
    txt += f'''.amdgcn_target "amdgcn-amd-amdhsa--gfx950"
.text
.globl {NAME}_kernel
.p2align 8
.type {NAME}_kernel,@function
{NAME}_kernel:
'''
    txt += '\n'.join(l if l.endswith(':') else '    ' + l for l in body if not l.startswith(';@'))
    txt += f'''
    s_endpgm
.section .rodata,"a"
.p2align 6
.amdhsa_kernel {NAME}_kernel
  .amdhsa_next_free_vgpr 256
  .amdhsa_next_free_sgpr 102
  .amdhsa_accum_offset 256
  .amdhsa_group_segment_fixed_size 0
  .amdhsa_kernarg_size 112
  .amdhsa_user_sgpr_count 2
  .amdhsa_user_sgpr_kernarg_segment_ptr 1
  .amdhsa_system_sgpr_workgroup_id_x 1
.end_amdhsa_kernel
'''
    return txt
if __name__ == '__main__':
    out = sys.argv[1] if len(sys.argv) > 1 else 'k.s'
    opts = json.loads(sys.argv[2]) if len(sys.argv) > 2 else {}
    open(out, 'w').write(build(opts))
```
